```python
import torch

def _softmax(x, axis=-1):
    return torch.softmax(x, dim=axis)
def _gelu(x):
    return torch.nn.functional.gelu(x, approximate="tanh")
def _silu(x):
    return torch.nn.functional.silu(x)
def _sigmoid(x):
    return torch.sigmoid(x)
def _layernorm(x, axis=-1, eps=1e-5):
    m = x.mean(dim=axis, keepdim=True)
    v = x.var(dim=axis, keepdim=True, unbiased=False)
    return (x - m) / torch.sqrt(v + eps)
def _scatter_add(tgt, idx, src, axis=0):
    return tgt.clone().index_add_(axis, idx, src)
def _segment_sum(src, seg, n):
    out = torch.zeros((n,) + src.shape[1:], dtype=src.dtype)
    return out.index_add_(0, seg, src)
def _pad(x, pw):
    flat = tuple(v for pair in reversed(pw) for v in pair)
    return torch.nn.functional.pad(x, flat)

kernel_name = 'interleave_layers__sliding_local_dilated__dense_activation_mish__prompt'

def setup_inputs():

    _w = (lambda a: (lambda t: t.to(torch.bfloat16) if t.is_floating_point() else t)(torch.as_tensor(a)))
    def _A_setup():
        B, S, D = 1, 2048, 576
        return {
            "x": _w((lambda *s: torch.randn(*s, dtype=torch.bfloat16) * 0.05)(B, S, D)),
            "wqkv": _w((lambda *s: torch.randn(*s, dtype=torch.bfloat16) * 0.05)(D, 3 * D)),
            "wo": _w((lambda *s: torch.randn(*s, dtype=torch.bfloat16) * 0.05)(D, D)),
        }
    _A_in = _A_setup()

    def _B_setup():
        B, S, D, F = 1, 2048, 576, 4608
        return {
            "x": _w((lambda *s: torch.randn(*s, dtype=torch.bfloat16) * 0.05)(B, S, D)),
            "w1": _w((lambda *s: torch.randn(*s, dtype=torch.bfloat16) * 0.8)(D, F) * (D ** -0.5)),
            "b1": _w((lambda *s: torch.randn(*s, dtype=torch.bfloat16) * 0.8)(F)),
            "w2": _w((lambda *s: torch.randn(*s, dtype=torch.bfloat16) * 0.8)(F, D) * (F ** -0.5)),
        }
    _B_in = _B_setup()

    return {
        "A_x": _A_in["x"],
        "A_wqkv": _A_in["wqkv"],
        "A_wo": _A_in["wo"],
        "B_x": _B_in["x"],
        "B_w1": _B_in["w1"],
        "B_b1": _B_in["b1"],
        "B_w2": _B_in["w2"],
    }

def reference(A_x, A_wqkv, A_wo, B_x, B_w1, B_b1, B_w2):
    def _A_ref(x, wqkv, wo):
        B, S, D = x.shape
        H = 32; Dh = D // H
        W, dil = 8, 2
        qkv = (lambda x, *d: x.permute(*d))((x @ wqkv).reshape(B, S, 3, H, Dh), 2, 0, 3, 1, 4)
        q, k, v = qkv[0], qkv[1], qkv[2]
        scale = Dh ** -0.5
        pos = torch.arange(S)
        off = torch.arange(W) * dil
        idx = pos[:, None] - off[None, :]
        mask = idx >= 0
        idx_c = torch.where(mask, idx, 0).reshape(-1)
        kg = k[:, :, idx_c, :].reshape(B, H, S, W, Dh)
        vg = v[:, :, idx_c, :].reshape(B, H, S, W, Dh)
        logits = torch.einsum("bhsd,bhswd->bhsw", q, kg) * scale
        logits = torch.where(mask[None, None, :, :], logits, -1e9)
        attn = _softmax(logits, axis=-1)
        o = torch.einsum("bhsw,bhswd->bhsd", attn, vg)
        return (lambda x, *d: x.permute(*d))(o, 0, 2, 1, 3).reshape(B, S, D) @ wo

    def _B_ref(x, w1, b1, w2):
        h = torch.einsum("bsd,df->bsf", x, w1) + b1
        sp = torch.log1p(torch.exp(-torch.abs(h))) + torch.where(h > 0, h, torch.zeros_like(h))
        act = h * torch.tanh(sp)
        return torch.einsum("bsf,fd->bsd", act, w2)

    x = A_x
    x = x + _A_ref(_layernorm(x, axis=-1), A_wqkv, A_wo)
    x = x + _B_ref(_layernorm(x, axis=-1), B_w1, B_b1, B_w2)
    x = x + _A_ref(_layernorm(x, axis=-1), A_wqkv, A_wo)
    x = x + _B_ref(_layernorm(x, axis=-1), B_w1, B_b1, B_w2)
    return x
```

```python
import re

def vr(b, n=1):
    return "v%d" % b if n == 1 else "v[%d:%d]" % (b, b + n - 1)

def ar(b, n=1):
    return "a%d" % b if n == 1 else "a[%d:%d]" % (b, b + n - 1)

def sr(b, n=1):
    return "s%d" % b if n == 1 else "s[%d:%d]" % (b, b + n - 1)

def ur(u, n=1):
    return vr(u, n) if u < 256 else ar(u - 256, n)


class B:
    def __init__(self):
        self.L = []
        self.vmq = []
        self.lgq = []

    def fork(self):
        o = B()
        o.vmq = list(self.vmq)
        o.lgq = list(self.lgq)
        return o

    def __call__(self, text, vm=None, lg=None):
        for t in text.split("\n"):
            self.L.append(t)
        mn = text.split()[0] if text.strip() else ""
        if "\n" not in text:
            if mn.startswith(("global_", "buffer_")) and not mn.startswith(("buffer_inv", "buffer_wbl2")):
                self.vmq.append(vm)
                assert len(self.vmq) <= 63, "vmcnt overflow: " + text
            elif mn.startswith("ds_"):
                self.lgq.append(lg)

    def _need(self, q, tags):
        last = -1
        for i, t in enumerate(q):
            if t in tags:
                last = i
        return last

    def wait(self, vm=(), lg=()):
        if not isinstance(vm, (list, tuple, set)): vm = (vm,)
        if not isinstance(lg, (list, tuple, set)): lg = (lg,)
        parts = []
        i = self._need(self.vmq, set(vm))
        if i >= 0:
            n = len(self.vmq) - 1 - i
            parts.append("vmcnt(%d)" % n)
            self.vmq = self.vmq[i + 1:]
        i = self._need(self.lgq, set(lg))
        if i >= 0:
            n = len(self.lgq) - 1 - i
            if n > 15:
                n = 15
            parts.append("lgkmcnt(%d)" % n)
            self.lgq = self.lgq[len(self.lgq) - n:] if n else []
        if parts:
            self.L.append("s_waitcnt " + " ".join(parts))
            return True
        return False

    def pending(self, vm=(), lg=()):
        if not isinstance(vm, (list, tuple, set)): vm = (vm,)
        if not isinstance(lg, (list, tuple, set)): lg = (lg,)
        return self._need(self.vmq, set(vm)) >= 0 or self._need(self.lgq, set(lg)) >= 0

    def wait_all(self, vm=True, lg=True):
        parts = []
        if vm:
            parts.append("vmcnt(0)"); self.vmq = []
        if lg:
            parts.append("lgkmcnt(0)"); self.lgq = []
        self.L.append("s_waitcnt " + " ".join(parts))

    def extend(self, other):
        self.L.extend(other.L)

    def text(self):
        return "\n".join(self.L) + "\n"


_REG = re.compile(r"(?<![\w.])([vas])(?:(\d+)|\[(\d+):(\d+)\])(?![\w])")
TRANS = ("v_exp_f32", "v_log_f32", "v_rcp_f32", "v_rsq_f32", "v_sqrt_f32", "v_sin_f32", "v_cos_f32")


def _regs(op):
    out = set()
    for m in _REG.finditer(op):
        k = m.group(1)
        lo = int(m.group(2) if m.group(2) is not None else m.group(3))
        hi = int(m.group(2) if m.group(2) is not None else m.group(4))
        for r in range(lo, hi + 1):
            out.add((k, r))
    if re.search(r"\bvcc\b", op):
        out.add(("s", "vcc"))
    if re.search(r"\bm0\b", op):
        out.add(("s", "m0"))
    if re.search(r"\bexec\b", op):
        out.add(("s", "exec"))
    return out


def _split(rest):
    ops, depth, cur = [], 0, ""
    for ch in rest:
        if ch == "[": depth += 1
        if ch == "]": depth -= 1
        if ch == "," and depth == 0:
            ops.append(cur.strip()); cur = ""
        else:
            cur += ch
    if cur.strip():
        ops.append(cur.strip())
    return ops


class Ins:
    pass


def parse(line):
    s = line.split(";")[0].strip()
    if not s or s.startswith(".") or s.endswith(":"):
        return None
    p = s.split(None, 1)
    i = Ins()
    i.text = s
    i.mn = p[0]
    ops = _split(p[1]) if len(p) > 1 else []
    mn = i.mn
    i.mfma = mn.startswith("v_mfma")
    i.valu = mn.startswith("v_") and not i.mfma
    i.trans = mn.replace("_e64", "").replace("_e32", "") in TRANS
    i.dot = mn.startswith("v_dot")
    i.vmem = mn.startswith(("global_", "buffer_")) and not mn.startswith(("buffer_inv", "buffer_wbl2"))
    i.ds = mn.startswith("ds_")
    i.salu = mn.startswith("s_")
    i.dpp = "_dpp" in mn
    i.sdwa = "_sdwa" in mn
    i.perml = mn.startswith("v_permlane")
    i.rdlane = mn.startswith(("v_readlane", "v_readfirstlane"))
    i.dma = i.vmem and ("_lds_" in mn or re.search(r"\blds\b", s) is not None)
    i.w, i.r = set(), set()
    i.srcc, i.ab = set(), set()
    i.stdata = set()
    R = [_regs(o) for o in ops]
    if i.mfma:
        i.w = R[0]; i.ab = R[1] | R[2]; i.srcc = R[3]; i.r = i.ab | i.srcc
        i.passes = 8 if "32x32" in mn else 4
    elif i.perml:
        i.w = R[0] | R[1]; i.r = R[0] | R[1]
    elif i.valu:
        i.w = set(R[0])
        k = 1
        if mn.startswith(("v_add_co", "v_sub_co", "v_addc_co", "v_subb_co", "v_subrev_co")):
            i.w |= R[1]; k = 2
        for x in R[k:]: i.r |= x
        if mn.startswith(("v_fmac", "v_dot2c", "v_pk_fmac")) or i.dpp or mn.startswith("v_writelane"):
            i.r |= R[0]
        if mn.startswith("v_cmpx"):
            i.w.add(("s", "exec"))
    elif i.vmem:
        store = "store" in mn or "atomic" in mn
        if i.dma:
            for x in R: i.r |= x
            i.r.add(("s", "m0"))
        elif store:
            for x in R: i.r |= x
            d = R[1] if mn.startswith("global_") else R[0]
            if "x4" in mn or "x3" in mn: i.stdata = d
        else:
            i.w = R[0]
            for x in R[1:]: i.r |= x
    elif i.ds:
        if mn.startswith(("ds_read", "ds_bpermute", "ds_permute", "ds_swizzle")):
            i.w = R[0]
            for x in R[1:]: i.r |= x
        else:
            for x in R: i.r |= x
    elif i.salu:
        if mn.startswith(("s_cmp", "s_waitcnt", "s_nop", "s_barrier", "s_branch", "s_cbranch", "s_endpgm", "s_sleep", "s_setprio", "s_bitcmp")):
            for x in R: i.r |= x
        else:
            if R: i.w = set(R[0])
            for x in R[1:]: i.r |= x
            if "saveexec" in mn: i.w.add(("s", "exec"))
    i.states = 1
    if mn == "s_nop":
        i.states = int(ops[0], 0) + 1
    return i


def check_hazards(lines, name=""):
    ins = [x for x in (parse(l) for l in lines) if x is not None]
    errs = []
    for n, c in enumerate(ins):
        dist = 0
        for k in range(n - 1, max(n - 24, -1), -1):
            p = ins[k]
            if p.mn in ("s_endpgm", "s_branch"):
                break
            need = 0
            vw = {x for x in p.w if x[0] in "va"}
            sw = {x for x in p.w if x[0] == "s"}
            if p.mfma:
                big = {4: 8, 8: 12}[p.passes]
                if c.mfma:
                    if vw & c.ab: need = max(need, big)
                    if vw & c.srcc and not (c.srcc == p.w and c.passes == p.passes):
                        need = max(need, {4: 6, 8: 10}[p.passes])
                    if vw & c.w and not (vw & c.srcc):
                        need = max(need, 0)
                elif (c.valu or c.vmem or c.ds) and (vw & (c.r | c.w)):
                    need = max(need, big)
                if c.valu and (p.srcc & c.w):
                    need = max(need, {4: 3, 8: 7}[p.passes])
            if p.valu:
                if c.mfma and (vw & c.r): need = max(need, 3 if p.dot else 2)
                if (c.dpp or c.perml) and (vw & c.r): need = max(need, 2)
                if c.rdlane and (vw & c.r): need = max(need, 1)
                if p.trans and c.valu and not c.trans and (vw & c.r): need = max(need, 1)
                if p.trans and (c.vmem or c.ds or c.trans) and (vw & c.r): need = max(need, 1)
                if p.sdwa and c.valu and (vw & (c.r | c.w)): need = max(need, 1)
                if p.dot and (vw & (c.r | c.w)) and (c.valu or c.vmem or c.ds):
                    same_acc = c.dot and c.mn == p.mn and not (vw & (c.r - c.w))
                    if not same_acc: need = max(need, 3)
                if c.vmem and (sw & c.r): need = max(need, 5)
                if c.valu and (sw & c.r): need = max(need, 4 if c.rdlane else 2)
                if ("s", "exec") in sw and (c.dpp or c.mfma or c.perml or c.rdlane): need = max(need, 5)
            if p.stdata and (c.valu or c.ds or c.vmem) and (p.stdata & c.w):
                need = max(need, 2)
            if p.salu and ("s", "m0") in p.w and c.dma:
                need = max(need, 1)
            if dist < need:
                errs.append("%s: need %d have %d: [%s] -> [%s]" % (name, need, dist, p.text, c.text))
            dist += p.states
    return errs
```

```python
import struct
from asmlib import *
from layout import *


def f32(x):
    return struct.unpack("<I", struct.pack("<f", x))[0]


def entry(b, name):
    b(".p2align 8")
    b(".globl %s" % name)
    b(".type %s,@function" % name)
    b("%s:" % name)


def entry2(b, stem):
    entry(b, stem + "a_kernel")
    b("s_mov_b32 s3, 0")
    b("s_branch L_%s_body" % stem)
    entry(b, stem + "b_kernel")
    b("s_mov_b32 s3, 1")
    b("L_%s_body:" % stem)


def load_args(b):
    b("s_load_dwordx16 s[4:19], s[0:1], 0")
    b("s_load_dwordx4 s[20:23], s[0:1], 64")


def decode_wg(b, cfg, rb, col):
    R = cfg["R"]
    C = 8 // R
    lc = C.bit_length() - 1
    per = 8 // C
    lp = per.bit_length() - 1
    b("s_and_b32 s40, s2, 7")
    b("s_lshr_b32 s41, s2, 3")
    b("s_lshr_b32 s%d, s40, %d" % (rb, lc))
    b("s_mul_i32 s%d, s%d, %d" % (rb, rb, 32 // R))
    b("s_lshr_b32 s42, s41, %d" % lp)
    b("s_add_u32 s%d, s%d, s42" % (rb, rb))
    b("s_and_b32 s%d, s40, %d" % (col, C - 1))
    b("s_lshl_b32 s%d, s%d, %d" % (col, col, lp))
    b("s_and_b32 s42, s41, %d" % (per - 1))
    b("s_add_u32 s%d, s%d, s42" % (col, col))


def add64(b, dst, src, off):
    b("s_add_u32 s%d, s%d, %s" % (dst, src, off))
    b("s_addc_u32 s%d, s%d, 0" % (dst + 1, src + 1))


def layer_ptrs(b, xin=None, xout=None, lws=None):
    add64(b, 44, 22, X2_OFF)
    b("s_cmp_eq_u32 s3, 0")
    if xin is not None:
        b("s_cselect_b32 s%d, s4, s44" % xin)
        b("s_cselect_b32 s%d, s5, s45" % (xin + 1))
    if xout is not None:
        b("s_cselect_b32 s%d, s44, s18" % xout)
        b("s_cselect_b32 s%d, s45, s19" % (xout + 1))
    if lws is not None:
        b("s_cselect_b32 s43, %d, %d" % (0, LAYER_SZ))
        b("s_add_u32 s43, s43, %d" % LAYER_OFF)
        add64(b, lws, 22, "s43")


def xlane_sum_g(b, v, t):
    b("v_mov_b32 %s, %s" % (vr(t), vr(v)))
    b("s_nop 1")
    b("v_permlane16_swap_b32 %s, %s" % (vr(v), vr(t)))
    b("s_nop 0")
    b("v_add_f32 %s, %s, %s" % (vr(v), vr(v), vr(t)))
    b("v_mov_b32 %s, %s" % (vr(t), vr(v)))
    b("s_nop 1")
    b("v_permlane32_swap_b32 %s, %s" % (vr(v), vr(t)))
    b("s_nop 0")
    b("v_add_f32 %s, %s, %s" % (vr(v), vr(v), vr(t)))


def stamp(b, cfg, n):
    if cfg.get("stamp"):
        b("s_memrealtime s[%d:%d]" % (80 + 2 * n, 81 + 2 * n))
        if n == 0:
            for r in range(82, 96):
                b("s_mov_b32 s%d, 0" % r)


def stamp_end(b, cfg, kidx, layered=True):
    if not cfg.get("stamp"):
        return
    b("s_waitcnt vmcnt(0)")
    b("s_memrealtime s[94:95]")
    b("s_mov_b64 exec, -1")
    b("s_lshl_b32 s96, s2, 6")
    b("s_add_u32 s96, s96, %d" % (STAMP_OFF + kidx * STAMP_K))
    if layered:
        b("s_mul_i32 s97, s3, %d" % (4 * STAMP_K))
        b("s_add_u32 s96, s96, s97")
    b("s_waitcnt lgkmcnt(0)")
    b("v_mov_b32 v1, s96")
    b("v_cmp_eq_u32 vcc, 0, v0")
    b("s_and_saveexec_b64 s[98:99], vcc")
    lab = "L_stamp_%d_%d" % (kidx, len(b.L))
    b("s_cbranch_execz %s" % lab)
    for q in range(4):
        for r in range(4):
            b("v_mov_b32 v%d, s%d" % (4 + r, 80 + 4 * q + r))
        b("global_store_dwordx4 v1, v[4:7], s[22:23] offset:%d" % (16 * q))
        b("s_nop 1")
    b("%s:" % lab)
    b.vmq = []
```

```python
from asmlib import *
from layout import *
from common import *

NWG0 = 177
LDS0 = 85 * 1008 + 16
FR = 16


def tr_reads(b, plan):
    for j in range(18):
        for h in range(2):
            base, imm = plan(j, h)
            assert 0 <= imm < 65536
            b("ds_read_b64_tr_b16 %s, %s offset:%d" % (vr(FR + 4 * j + 2 * h, 2), vr(base), imm))
        if j % 6 == 5:
            b.wait_all(vm=False)


def centre(b):
    b("v_mov_b32 v12, 0x3f803f80")
    b("v_mov_b32 v13, 0")
    b("v_mov_b32 v14, 0")
    for r in range(0, 72, 2):
        b("v_dot2c_f32_bf16 v13, %s, v12" % vr(FR + r))
        b("v_dot2c_f32_bf16 v14, %s, v12" % vr(FR + r + 1))
    b("s_nop 2")
    b("v_add_f32 v13, v13, v14")
    xlane_sum_g(b, 13, 14)
    b("v_mul_f32 v13, 0x%08x, v13" % f32(1.0 / 576))
    for r in range(72):
        x = FR + r
        t = 90 + 2 * (r & 1)
        b("v_lshlrev_b32 %s, 16, %s" % (vr(t), vr(x)))
        b("v_and_b32 %s, 0xffff0000, %s" % (vr(t + 1), vr(x)))
        b("v_sub_f32 %s, %s, v13" % (vr(t), vr(t)))
        b("v_sub_f32 %s, %s, v13" % (vr(t + 1), vr(t + 1)))
        b("v_cvt_pk_bf16_f32 %s, %s, %s" % (vr(x), vr(t), vr(t + 1)))


def stores(b, vdst, sstride, second=None):
    for j in range(18):
        b("global_store_dwordx4 %s, %s, s[22:23]" % (vr(vdst), vr(FR + 4 * j, 4)))
        if second is not None:
            b("global_store_dwordx4 %s, %s, s[22:23] offset:%d" % (vr(vdst), vr(FR + 4 * j, 4), second))
        b("v_add_u32 %s, %s, %s" % (vr(vdst), sstride, vr(vdst)))
    b.vmq = []


def load128(b, stride):
    b("v_lshrrev_b32 v8, 3, v1")
    b("v_mul_u32_u24 v8, %d, v8" % stride)
    b("v_and_b32 v9, 7, v1")
    b("v_lshl_add_u32 v8, v9, 4, v8")
    b("s_mul_i32 s34, s24, %d" % (144 * stride))
    b("s_add_u32 s32, s32, s34")
    b("s_mul_i32 s34, s24, %d" % (144 * 128))
    b("s_mov_b32 m0, s34")
    for n in range(18):
        b("s_nop 0")
        b("buffer_load_dwordx4 v8, s[28:31], s32 offen lds")
        b("s_add_u32 s32, s32, %d" % (8 * stride))
        b("s_add_u32 m0, m0, 1024")
    b.wait_all()
    b("s_barrier")


def srd(b, ptr, size):
    b("s_mov_b32 s28, s%d" % ptr)
    b("s_and_b32 s29, s%d, 0xffff" % (ptr + 1))
    b("s_mov_b32 s30, %d" % size)
    b("s_mov_b32 s31, 0x20000")


def div9(b, dst, rem, src):
    b("s_mul_i32 s%d, s%d, 57" % (dst, src))
    b("s_lshr_b32 s%d, s%d, 9" % (dst, dst))
    b("s_mul_i32 s%d, s%d, 9" % (rem, dst))
    b("s_sub_u32 s%d, s%d, s%d" % (rem, src, rem))


def col128(b, dst):
    b("v_lshl_add_u32 %s, v3, 3, %s" % (vr(dst), vr(dst)))
    b("s_lshl_b32 s35, s24, 5")
    b("v_add_u32 %s, s35, %s" % (vr(dst), vr(dst)))


def gen_k0(cfg):
    assert all((x * 57) >> 9 == x // 9 for x in range(72))
    b = B()
    entry(b, "k0_kernel")
    b("s_cmp_ge_u32 s2, %d" % NWG0)
    b("s_cbranch_scc1 L_k0_end")
    load_args(b)
    stamp(b, cfg, 0)
    b("v_and_b32 v1, 63, v0")
    b("v_lshrrev_b32 v2, 6, v0")
    b("v_and_b32 v3, 3, v1")
    b("v_readfirstlane_b32 s24, v2")
    b("v_bfe_u32 v4, v1, 2, 2")
    b("v_lshrrev_b32 v5, 4, v1")
    b("v_and_b32 v6, 15, v1")
    b("v_lshlrev_b32 v7, 4, v1")
    b("s_waitcnt lgkmcnt(0)")
    b("s_cmp_ge_u32 s2, 168")
    b("s_cbranch_scc1 L_k0_wo")
    b("s_cmp_ge_u32 s2, 144")
    b("s_cbranch_scc1 L_k0_wq")
    b("s_cmp_ge_u32 s2, 72")
    b("s_cbranch_scc1 L_k0_w2")

    b("s_cmp_eq_u32 s24, 4")
    b("s_cbranch_scc1 L_k0_bias")
    srd(b, 12, D * F * 2)
    b("s_lshl_b32 s32, s2, 7")
    load128(b, F * 2)
    b("v_lshl_add_u32 v10, v5, 2, v4")
    b("v_lshlrev_b32 v10, 7, v10")
    col128(b, 10)
    b("v_lshl_add_u32 v11, v5, 3, v4")
    b("v_lshlrev_b32 v11, 7, v11")
    b("v_add_u32 v11, 0x10000, v11")
    col128(b, 11)
    tr_reads(b, lambda j, h: (10, 4096 * j + 2048 * h) if j < 16 else (11, 4096 * (j - 16) + 512 * h))
    centre(b)
    div9(b, 36, 37, 2)
    b("s_lshl_b32 s36, s36, 2")
    b("s_add_u32 s36, s36, s24")
    b("s_mul_i32 s36, s36, %d" % WM_STREAM)
    b("s_mul_i32 s37, s37, %d" % (18 * KB))
    b("s_add_u32 s36, s36, s37")
    b("s_add_u32 s36, s36, %d" % WM_OFF)
    b("v_add_u32 v8, s36, v7")
    stores(b, 8, "0x400")
    b("s_branch L_k0_fin")

    b("L_k0_bias:")
    b("s_lshl_b32 s32, s2, 6")
    b("v_add_u32 v8, s32, v1")
    b("v_lshlrev_b32 v9, 1, v8")
    b("global_load_ushort v10, v9, s[14:15]")
    b("v_lshlrev_b32 v8, 2, v8")
    b("v_add_u32 v8, %d, v8" % B1_OFF)
    b.wait_all()
    b("v_lshlrev_b32 v10, 16, v10")
    b("v_mul_f32 v10, 0x%08x, v10" % f32(LOG2E))
    b("global_store_dword v8, v10, s[22:23]")
    b("s_endpgm")
    b.vmq = []

    b("L_k0_w2:")
    b("s_cmp_eq_u32 s24, 4")
    b("s_cbranch_scc1 L_k0_end")
    srd(b, 16, D * F * 2)
    b("s_sub_u32 s38, s2, 72")
    div9(b, 36, 37, 38)
    b("s_mul_i32 s32, s36, %d" % (576 * 1152))
    b("s_lshl_b32 s33, s37, 7")
    b("s_add_u32 s32, s32, s33")
    load128(b, D * 2)
    b("v_lshl_add_u32 v10, v5, 2, v4")
    b("v_lshlrev_b32 v10, 7, v10")
    col128(b, 10)
    b("v_add_u32 v11, 0x10000, v10")
    tr_reads(b, lambda j, h: (10, 4096 * j + 2048 * h) if j < 16 else (11, 4096 * (j - 16) + 2048 * h))
    b("s_sub_u32 s38, s37, s36")
    b("s_add_u32 s38, s38, 7")
    b("s_and_b32 s38, s38, 7")
    b("s_add_u32 s38, s38, 1")
    b("s_cmp_eq_u32 s37, 8")
    b("s_cselect_b32 s38, 0, s38")
    b("s_mul_i32 s39, s38, 18")
    b("s_cmp_lt_u32 s38, 2")
    b("s_cselect_b32 s39, s38, s39")
    b("s_cselect_b32 s40, 2, 1")
    b("s_lshl_b32 s40, s40, 10")
    b("s_add_u32 s39, s39, 162")
    b("s_lshl_b32 s39, s39, 10")
    b("s_lshl_b32 s36, s36, 2")
    b("s_add_u32 s36, s36, s24")
    b("s_mul_i32 s36, s36, %d" % WM_STREAM)
    b("s_add_u32 s36, s36, s39")
    b("s_add_u32 s36, s36, %d" % WM_OFF)
    b("v_add_u32 v8, s36, v7")
    stores(b, 8, "s40")
    b("s_branch L_k0_fin")

    b("L_k0_wo:")
    b("s_cmp_eq_u32 s24, 4")
    b("s_cbranch_scc1 L_k0_end")
    srd(b, 8, D * D * 2)
    b("s_sub_u32 s37, s2, 168")
    b("s_lshl_b32 s32, s37, 7")
    load128(b, D * 2)
    b("v_lshrrev_b32 v10, 1, v5")
    b("v_mul_u32_u24 v10, 20, v10")
    b("v_and_b32 v11, 1, v5")
    b("v_lshl_add_u32 v10, v11, 3, v10")
    b("v_add_u32 v10, v10, v4")
    b("v_lshlrev_b32 v10, 7, v10")
    col128(b, 10)
    b("v_add_u32 v11, %d, v10" % (8 * 4608))
    b("v_mul_u32_u24 v12, 72, v5")
    b("v_add3_u32 v12, v12, v4, 16")
    b("v_lshlrev_b32 v12, 7, v12")
    col128(b, 12)
    tr_reads(b, lambda j, h: (10, 4608 * j + 512 * h) if j < 8 else
             (11, 4608 * (j - 8) + 512 * h) if j < 16 else (12, 36864 * (j - 16) + 4608 * h))
    b("s_cmp_eq_u32 s37, 8")
    b("s_cbranch_scc1 L_k0_wo8")
    b("s_mul_i32 s36, s37, %d" % WO_CG)
    b("s_lshl_b32 s38, s24, 10")
    b("s_add_u32 s36, s36, s38")
    b("s_add_u32 s36, s36, %d" % WO_OFF)
    b("v_add_u32 v8, s36, v7")
    stores(b, 8, "0x1400")
    b("s_branch L_k0_fin")
    b("L_k0_wo8:")
    b("s_mul_i32 s36, s24, %d" % (2 * WO_CG))
    b("s_add_u32 s36, s36, %d" % (WO_OFF + 4 * KB))
    b("v_lshrrev_b32 v8, 3, v6")
    b("v_mul_u32_u24 v8, %d, v8" % (WO_CG - 128))
    b("v_add3_u32 v8, v8, v7, s36")
    stores(b, 8, "0x1400", second=128)
    b("s_branch L_k0_fin")

    b("L_k0_wq:")
    srd(b, 6, D * 3 * D * 2)
    b("s_sub_u32 s38, s2, 144")
    b("s_mul_i32 s36, s38, 43")
    b("s_lshr_b32 s36, s36, 7")
    assert all((x * 43) >> 7 == x // 3 for x in range(24))
    b("s_mul_i32 s37, s36, 3")
    b("s_sub_u32 s37, s38, s37")
    b("s_mul_i32 s32, s37, 1152")
    b("s_mul_i32 s33, s36, 144")
    b("s_add_u32 s32, s32, s33")
    b("v_mul_u32_u24 v8, 57, v1")
    b("v_lshrrev_b32 v8, 9, v8")
    b("v_mul_u32_u24 v9, 9, v8")
    b("v_sub_u32 v9, v1, v9")
    b("v_mul_u32_u24 v8, 3456, v8")
    b("v_lshl_add_u32 v8, v9, 4, v8")
    b("s_mul_i32 s34, s24, %d" % (17 * 7 * 3456))
    b("s_add_u32 s32, s32, s34")
    b("s_mul_i32 s34, s24, %d" % (17 * 1008))
    b("s_mov_b32 m0, s34")
    for n in range(17):
        b("s_nop 0")
        b("buffer_load_dwordx4 v8, s[28:31], s32 offen lds")
        b("s_add_u32 s32, s32, %d" % (7 * 3456))
        b("s_add_u32 m0, m0, 1008")
    b.wait_all()
    b("s_barrier")
    b("v_lshl_add_u32 v10, v5, 3, v4")
    b("v_mul_u32_u24 v10, 144, v10")
    b("s_lshr_b32 s38, s24, 1")
    b("s_mul_i32 s38, s38, 72")
    b("s_and_b32 s39, s24, 1")
    b("s_mul_i32 s39, s39, 40")
    b("s_add_u32 s38, s38, s39")
    b("v_lshlrev_b32 v11, 3, v3")
    b("v_add_u32 v11, s38, v11")
    b("v_and_b32 v12, 1, v3")
    b("v_mul_u32_u24 v12, 72, v12")
    b("v_add_u32 v12, 32, v12")
    b("s_cmp_eq_u32 s24, 4")
    b("s_cselect_b64 vcc, -1, 0")
    b("v_cndmask_b32 v11, v11, v12, vcc")
    b("v_add_u32 v10, v10, v11")
    b("v_add_u32 v11, %d, v10" % (9 * 4608))
    tr_reads(b, lambda j, h: (10, 4608 * j + 576 * h) if j < 9 else (11, 4608 * (j - 9) + 576 * h))
    centre(b)
    b("s_mul_i32 s36, s36, %d" % (4 * 72 * KB))
    b("s_add_u32 s36, s36, %d" % WQ_OFF)
    b("s_cmp_eq_u32 s24, 4")
    b("s_cbranch_scc1 L_k0_wqt")
    b("s_mul_i32 s38, s24, %d" % (72 * KB))
    b("s_lshl_b32 s39, s37, 10")
    b("s_add_u32 s36, s36, s38")
    b("s_add_u32 s36, s36, s39")
    b("s_branch L_k0_wqs")
    b("L_k0_wqt:")
    b("s_add_u32 s36, s36, %d" % (3 * KB))
    b("v_cmp_gt_u32 vcc, 8, v6")
    b("s_cmp_eq_u32 s37, 0")
    b("s_cbranch_scc1 L_k0_wqq")
    b("s_cmp_eq_u32 s37, 1")
    b("s_cbranch_scc1 L_k0_wqk")
    b("s_not_b64 vcc, vcc")
    b("L_k0_wqk:")
    b("s_mov_b64 exec, vcc")
    b("s_branch L_k0_wqs")
    b("L_k0_wqq:")
    b("s_add_u32 s36, s36, %d" % (72 * KB))
    for r in range(72):
        b("v_cndmask_b32 %s, v12, %s, vcc" % (vr(FR + r), vr(FR + r)))
    b("L_k0_wqs:")
    b("v_add_u32 v8, s36, v7")
    stores(b, 8, "0x1000")

    b("L_k0_fin:")
    stamp_end(b, cfg, 0, layered=False)
    b("L_k0_end:")
    b("s_endpgm")
    return b, [("k0_kernel", 96, 96)], [("k0_kernel", NWG0, 320, LDS0)]
```

```python
from asmlib import *
from layout import *
from common import *

XT = 18 * KB
SB = 5 * XT
QO, KO, VO = 0, 80 * 144, 160 * 144
SUMO = 240 * 144
SSQO = SUMO + 320
RSO = SSQO + 320
LDS1 = SB + RSO + 320

ACC_Q, ACC_K, ACC_V, ACC_E = 16, 32, 52, 72
XB = 92
NXB = 3


def wreg(j, s):
    n = 4 * j + s
    return ur(256 + 4 * n, 4) if n < 64 else vr(224 + 4 * (n - 64), 4)


def xreg(j, m):
    return vr(XB + 20 * (j % NXB) + 4 * m, 4)


class WLoader:
    def __init__(self, b, ns):
        self.b, self.ns = b, ns

    def ops(self, j):
        out = []
        for s in range(self.ns):
            off = (j & 1) * 4096 - 4096 + 1024 * s
            out.append(("global_load_dwordx4 %s, v7, s[30:31] offset:%d" % (wreg(j, s), off), ("W", j)))
        return out

    def adv(self, j):
        return ["s_add_u32 s30, s30, 0x2000", "s_addc_u32 s31, s31, 0"] if j & 1 else []

    def now(self, j):
        for t, tag in self.ops(j):
            self.b(t, vm=tag)
        for t in self.adv(j):
            self.b(t)


def xdma(b, js, qs, tag):
    for j in js:
        b("s_add_u32 m0, s36, %d" % (960 * j))
        b("s_nop 0")
        b("global_load_lds_dwordx4 v8, s[32:33] offset:%d" % (64 * j), vm=tag)
    for q in qs:
        if q == 4:
            b("s_and_b32 s38, s24, 2")
            b("s_lshl_b32 s39, s38, 6")
            b("s_sub_u32 s34, s34, s39")
            b("s_subb_u32 s35, s35, 0")
            b("s_lshl_b32 s39, s38, 10")
            b("s_sub_u32 s37, s37, s39")
        b("s_add_u32 m0, s37, %d" % ((4096 - 256) * q))
        b("s_nop 0")
        b("global_load_lds_dwordx4 v8, s[34:35] offset:%d" % (256 * q), vm=tag)


def xread(j, m):
    base, off = (9, m * XT + j * KB) if m < 3 else (10, (m - 3) * XT + j * KB)
    return "ds_read_b128 %s, %s offset:%d" % (xreg(j, m), vr(base), off)


def gemm(b, cfg, kind):
    ns = 4 if kind == 0 else 3
    W = WLoader(b, ns)
    xdma(b, range(0, 6), (0, 1), "xA")
    for j in range(0, 3): W.now(j)
    xdma(b, range(6, 12), (2,), "xB")
    for j in range(3, 6): W.now(j)
    xdma(b, range(12, 18), (3, 4), "xC")
    for j in range(6, 9): W.now(j)
    stamp(b, cfg, 6)
    b.wait(vm="xA")
    b("s_barrier")
    stamp(b, cfg, 1)
    for j in range(2):
        for m in range(5):
            b(xread(j, m), lg=("X", j))
    for j in range(18):
        fill = []
        if j + 2 < 18:
            fill += [(xread(j + 2, m), None, ("X", j + 2)) for m in range(5)]
        if j + 9 < 18:
            fill += [(t, tag, None) for t, tag in W.ops(j + 9)]
        sc = W.adv(j + 9) if j + 9 < 18 else []
        b.wait(vm=[("W", j)], lg=[("X", j)])
        if j in (3, 6):
            assert not b.pending(vm="xB" if j == 3 else "xC")
            b("s_barrier")
        units = [(ACC_K + 4 * m, wreg(j, 1), m) for m in range(5)]
        units += [(ACC_V + 4 * m, wreg(j, 2), m) for m in range(5)]
        units += [(ACC_Q + 4 * (m - 1), wreg(j, 0), m) for m in range(1, 5)]
        if kind == 0:
            units += [(ACC_E + 4 * m, wreg(j, 3), m) for m in range(5)]
        elif kind == 1:
            units += [(ACC_E + 4 * m, xreg(j, m), m) for m in range(5)]
        for n, (acc, a, m) in enumerate(units):
            b("v_mfma_f32_16x16x32_bf16 %s, %s, %s, %s" % (vr(acc, 4), a, xreg(j, m), vr(acc, 4) if j else "0"))
            if fill:
                t, tv, tl = fill.pop(0)
                b(t, vm=tv, lg=tl)
            elif sc:
                b(sc.pop(0))
        assert not fill and not sc
    stamp(b, cfg, 2)
    b("s_nop 7")


def pack_write(b, acc, addr, off, t):
    b("v_cvt_pk_bf16_f32 %s, %s, %s" % (vr(t), vr(acc), vr(acc + 1)))
    b("v_cvt_pk_bf16_f32 %s, %s, %s" % (vr(t + 1), vr(acc + 2), vr(acc + 3)))
    b("ds_write_b64 %s, %s offset:%d" % (vr(addr), vr(t, 2), off))


def main_writes(b):
    n = 0
    for acc, reg, ms in ((ACC_K, KO, range(5)), (ACC_V, VO, range(5)), (ACC_Q - 4, QO, range(1, 5))):
        for m in ms:
            pack_write(b, acc + 4 * m, 11, reg + 2304 * m, XB + 2 * (n % 8))
            n += 1


def gen_k1(cfg):
    b = B()
    entry2(b, "k1")
    b("s_cmp_ge_u32 s2, 256")
    b("s_cbranch_scc1 L_k1_end")
    load_args(b)
    stamp(b, cfg, 0)
    b("v_and_b32 v1, 63, v0")
    b("v_lshrrev_b32 v2, 6, v0")
    b("v_lshrrev_b32 v5, 4, v1")
    b("v_readfirstlane_b32 s24, v2")
    b("v_and_b32 v6, 15, v1")
    b("v_lshlrev_b32 v7, 4, v1")
    decode_wg(b, cfg, 25, 26)
    b("v_lshrrev_b32 v8, 2, v1")
    b("v_mul_u32_u24 v8, 1152, v8")
    b("v_lshrrev_b32 v3, 5, v1")
    b("v_lshlrev_b32 v3, 1, v3")
    b("v_and_b32 v4, 3, v1")
    b("v_xor_b32 v3, v3, v4")
    b("v_lshl_add_u32 v8, v3, 4, v8")
    b("v_lshrrev_b32 v3, 3, v6")
    b("v_lshlrev_b32 v3, 1, v3")
    b("v_xor_b32 v3, v3, v5")
    b("v_lshl_add_u32 v9, v6, 2, v3")
    b("v_lshlrev_b32 v9, 4, v9")
    b("v_add_u32 v10, %d, v9" % (3 * XT))
    b("s_lshl_b32 s27, s25, 6")
    b("s_lshl_b32 s38, s24, 4")
    b("s_add_u32 s38, s38, s27")
    b("s_mul_i32 s38, s38, 1152")
    b("s_max_u32 s39, s27, 16")
    b("s_sub_u32 s39, s39, 16")
    b("s_mul_i32 s39, s39, 1152")
    b("s_lshl_b32 s46, s24, 6")
    b("s_add_u32 s39, s39, s46")
    b("s_add_u32 s36, s24, 1")
    b("s_mul_i32 s36, s36, %d" % XT)
    b("s_lshl_b32 s37, s24, 10")
    b("s_lshl_b32 s46, s26, 2")
    b("s_add_u32 s46, s46, s24")
    b("s_mul_i32 s46, s46, %d" % (72 * KB))
    b("s_add_u32 s46, s46, %d" % (WQ_OFF + 4096))
    b("s_waitcnt lgkmcnt(0)")
    stamp(b, cfg, 5)
    layer_ptrs(b, xin=28, lws=48)
    add64(b, 32, 28, "s38")
    add64(b, 34, 28, "s39")
    add64(b, 30, 22, "s46")
    b("v_mul_u32_u24 v11, 144, v6")
    b("v_lshl_add_u32 v12, v5, 3, v11")
    b("s_lshl_b32 s46, s24, 5")
    b("s_add_u32 s46, s46, %d" % SB)
    b("v_add_u32 v11, s46, v12")
    b("s_cmp_eq_u32 s24, 2")
    b("s_cbranch_scc1 L_k1_w2")
    b("s_cmp_eq_u32 s24, 3")
    b("s_cbranch_scc1 L_k1_w3")

    g = b.fork()
    gemm(g, cfg, 0)
    main_writes(g)
    g("s_cmp_eq_u32 s24, 1")
    g("s_cbranch_scc1 L_k1_e1")
    g("v_lshrrev_b32 v3, 1, v5")
    g("v_mul_u32_u24 v3, %d, v3" % (VO - KO - 16))
    g("v_add_u32 v3, v3, v12")
    g("v_add_u32 v3, %d, v3" % (SB + KO + 128))
    for m in range(5):
        pack_write(g, ACC_E + 4 * m, 3, 2304 * m, XB + 16 + 2 * m)
    g("s_branch L_k1_att")
    g("L_k1_e1:")
    g("v_add_u32 v3, %d, v12" % (SB + QO + 128))
    g("v_lshlrev_b32 v4, 2, v6")
    g("v_add_u32 v4, %d, v4" % (SB + SUMO))
    g("s_mov_b32 exec_lo, 0")
    g("s_mov_b32 exec_hi, 0x0000ffff")
    for m in range(5):
        g("ds_write_b32 v4, %s offset:%d" % (vr(ACC_E + 4 * m), 64 * m))
    g("s_mov_b32 exec_lo, -1")
    g("s_mov_b32 exec_hi, 0")
    for m in range(1, 5):
        pack_write(g, ACC_E + 4 * m, 3, 2304 * m, XB + 16 + 2 * m)
    g("s_mov_b64 exec, -1")
    g("s_branch L_k1_att")
    b.extend(g)

    b("L_k1_w2:")
    g = b.fork()
    gemm(g, cfg, 1)
    main_writes(g)
    g("v_and_b32 v3, 3, v6")
    g("v_cmp_eq_u32 s[50:51], 1, v3")
    g("v_cmp_eq_u32 s[52:53], 2, v3")
    g("v_cmp_eq_u32 s[54:55], 3, v3")
    g("v_lshlrev_b32 v4, 2, v6")
    g("v_add_u32 v4, %d, v4" % (SB + SSQO))
    for m in range(5):
        a = ACC_E + 4 * m
        for r in range(1, 4):
            g("v_cndmask_b32 %s, %s, %s, s[%d:%d]" % (vr(a), vr(a), vr(a + r), 48 + 2 * r, 49 + 2 * r))
    g("s_mov_b32 exec_lo, 0x00f0000f")
    g("s_mov_b32 exec_hi, 0xf0000f00")
    for m in range(5):
        g("ds_write_b32 v4, %s offset:%d" % (vr(ACC_E + 4 * m), 64 * m))
    g("s_mov_b64 exec, -1")
    g("s_branch L_k1_att")
    b.extend(g)

    b("L_k1_w3:")
    g = b.fork()
    gemm(g, cfg, 2)
    main_writes(g)
    b.extend(g)

    b("L_k1_att:")
    b.vmq, b.lgq = [], []
    Q, KR, VR, Z, RS, O, SEL = 16, 28, 124, 220, 228, 28, 46
    b("v_add_u32 v3, 2, v1")
    b("v_mul_u32_u24 v12, 144, v3")
    b("v_add_u32 v13, s46, v12")
    b("s_lshl_b32 s47, s24, 2")
    b("s_add_u32 s47, s47, %d" % (SB + 128))
    b("v_add_u32 v14, s47, v12")
    b("v_lshlrev_b32 v2, 2, v1")
    b("v_add_u32 v2, %d, v2" % SB)
    b("v_lshlrev_b32 v4, 2, v6")
    b("v_add_u32 v4, %d, v4" % SB)
    b.wait_all(vm=False)
    b("s_barrier")
    stamp(b, cfg, 3)
    b("ds_read_b32 v236, v2 offset:%d" % (SUMO + 64), lg="st")
    b("ds_read_b32 v237, v2 offset:%d" % (SSQO + 64), lg="st")
    b("ds_read_b32 v238, v4 offset:%d" % SUMO, lg="st")
    b("ds_read_b32 v239, v4 offset:%d" % SSQO, lg="st")

    def row(dst, reg, w, tag):
        off = reg + 288 * (7 - w)
        b("ds_read_b128 %s, v13 offset:%d" % (vr(dst, 4), off), lg=tag)
        b("ds_read_b128 %s, v13 offset:%d" % (vr(dst + 4, 4), off + 16), lg=tag)
        b("ds_read_b32 %s, v14 offset:%d" % (vr(dst + 8), off), lg=tag)

    row(Q, QO, 0, "q")
    row(KR, KO, 0, ("k", 0))
    row(KR + 12, KO, 1, ("k", 1))
    b.wait(lg="st")
    for t in (236, 238):
        b("v_mul_f32 %s, 0x%08x, %s" % (vr(t), f32(1.0 / 576), vr(t)))
        b("v_mul_f32 %s, 0x%08x, %s" % (vr(t + 1), f32(1.0 / 576), vr(t + 1)))
        b("v_fma_f32 %s, -%s, %s, %s" % (vr(t), vr(t), vr(t), vr(t + 1)))
        b("v_max_f32 %s, 0, %s" % (vr(t), vr(t)))
        b("v_add_f32 %s, 0x%08x, %s" % (vr(t), f32(1e-5), vr(t)))
        b("v_rsq_f32 %s, %s" % (vr(t), vr(t)))
    b("s_nop 0")
    b("ds_write_b32 v2, v236 offset:%d" % (RSO + 64))
    b("ds_write_b32 v4, v238 offset:%d" % RSO)
    b("v_add_u32 v3, %d, v2" % (RSO + 8))
    for w in range(0, 8, 2):
        b("ds_read2_b32 %s, v3 offset0:%d offset1:%d" % (vr(RS + w, 2), 2 * (7 - w), 2 * (6 - w)), lg="rs")
    for w in range(0, 8, 2):
        if w + 2 < 8:
            row(KR + 12 * (w + 2), KO, w + 2, ("k", w + 2))
            row(KR + 12 * (w + 3), KO, w + 3, ("k", w + 3))
        else:
            row(VR, VO, 0, ("v", 0))
            row(VR + 12, VO, 1, ("v", 1))
        b.wait(lg=["q", ("k", w), ("k", w + 1)])
        for d in range(9):
            for ww in (w, w + 1):
                k = KR + 12 * ww + d
                if d == 0:
                    b("v_dot2_f32_bf16 %s, %s, %s, 0" % (vr(Z + ww), vr(Q + d), vr(k)))
                else:
                    b("v_dot2_f32_bf16 %s, %s, %s, %s" % (vr(Z + ww), vr(Q + d), vr(k), vr(Z + ww)))
    for w in range(2, 5):
        row(VR + 12 * w, VO, w, ("v", w))
    b("v_mul_f32 v236, 0x%08x, v236" % f32(18 ** -0.5 * LOG2E))
    for w in range(8):
        b("v_mul_f32 %s, %s, %s" % (vr(Z + w), vr(Z + w), vr(RS + w)))
    for w in range(8):
        b("v_mul_f32 %s, %s, v236" % (vr(Z + w), vr(Z + w)))
    b("s_cmp_lg_u32 s25, 0")
    b("s_cbranch_scc1 L_k1_nomask")
    b("v_mov_b32 v237, 0x%08x" % f32(-1e9 * LOG2E))
    for w in range(1, 8):
        b("v_cmp_le_u32 vcc, %d, v1" % (2 * w))
        b("s_nop 1")
        b("v_cndmask_b32 %s, v237, %s, vcc" % (vr(Z + w), vr(Z + w)))
    b("L_k1_nomask:")
    b("v_max3_f32 v237, %s, %s, %s" % (vr(Z), vr(Z + 1), vr(Z + 2)))
    b("v_max3_f32 v238, %s, %s, %s" % (vr(Z + 3), vr(Z + 4), vr(Z + 5)))
    b("v_max3_f32 v237, v237, %s, %s" % (vr(Z + 6), vr(Z + 7)))
    b("v_max_f32 v237, v237, v238")
    for w in range(8):
        b("v_sub_f32 %s, %s, v237" % (vr(Z + w), vr(Z + w)))
    for w in range(8):
        b("v_exp_f32 %s, %s" % (vr(Z + w), vr(Z + w)))
    b.wait(lg=[("v", 0), ("v", 1)])
    for w in range(5, 8):
        row(VR + 12 * w, VO, w, ("v", w))
    b("v_add_f32 v237, %s, %s" % (vr(Z), vr(Z + 1)))
    b("v_add_f32 v238, %s, %s" % (vr(Z + 2), vr(Z + 3)))
    b("v_add_f32 v239, %s, %s" % (vr(Z + 4), vr(Z + 5)))
    b("v_add_f32 v240, %s, %s" % (vr(Z + 6), vr(Z + 7)))
    b("v_add_f32 v237, v237, v238")
    b("v_add_f32 v239, v239, v240")
    b("v_add_f32 v237, v237, v239")
    b("v_rcp_f32 v237, v237")
    for w in range(8):
        b("v_mul_f32 %s, %s, %s" % (vr(Z + w), vr(Z + w), vr(RS + w)))
    for w in range(8):
        b("v_mul_f32 %s, %s, v237" % (vr(Z + w), vr(Z + w)))
    for w in range(8):
        b("v_cvt_pk_bf16_f32 %s, %s, 0" % (vr(SEL + 2 * w), vr(Z + w)))
        b("v_cvt_pk_bf16_f32 %s, 0, %s" % (vr(SEL + 2 * w + 1), vr(Z + w)))
    for w in range(8):
        b.wait(lg=[("v", w)])
        for d in range(9):
            for hh in range(2):
                o = vr(O + 2 * d + hh)
                b("v_dot2_f32_bf16 %s, %s, %s, %s" % (o, vr(VR + 12 * w + d), vr(SEL + 2 * w + hh), o if w else "0"))
    stamp(b, cfg, 4)
    b("v_lshrrev_b32 v3, 4, v1")
    b("v_mul_u32_u24 v3, %d, v3" % XT)
    b("v_lshl_add_u32 v3, v6, 4, v3")
    b("s_mul_i32 s38, s25, %d" % (4 * XT))
    b("s_add_u32 s38, s38, %d" % L_O)
    b("s_lshl_b32 s39, s26, 11")
    b("s_lshl_b32 s40, s24, 9")
    b("s_add_u32 s39, s39, s40")
    b("s_add_u32 s39, s39, s38")
    b("v_add_u32 v4, s39, v3")
    b("s_lshl_b32 s39, s26, 8")
    b("s_lshl_b32 s40, s24, 2")
    b("s_add_u32 s39, s39, s40")
    b("s_add_u32 s39, s39, s38")
    b("s_add_u32 s39, s39, %d" % (16 * KB))
    b("v_add_u32 v3, s39, v3")
    for d in range(9):
        b("v_cvt_pk_bf16_f32 %s, %s, %s" % (vr(Q + d), vr(O + 2 * d), vr(O + 2 * d + 1)))
    sc = cfg.get("sc_o", "")
    b("global_store_dwordx4 v4, %s, s[48:49]%s" % (vr(Q, 4), sc))
    b("global_store_dwordx4 v4, %s, s[48:49] offset:256%s" % (vr(Q + 4, 4), sc))
    b("global_store_dword v3, %s, s[48:49]%s" % (vr(Q + 8), sc))
    stamp_end(b, cfg, 1)
    b("L_k1_end:")
    b("s_endpgm")
    return b, [("k1a_kernel", 512, 256), ("k1b_kernel", 512, 256)], LDS1
```

```python
from asmlib import *
from layout import *
from common import *

XT = 18 * KB
LDS2 = 92 * KB
ACC, RES, OF, WB = 16, 36, 48, 120
NWB = 3


def wreg(j, t):
    return vr(WB + 20 * (j % NWB) + 4 * t, 4)


def wread(j, t):
    n = 5 * j + t
    base, off = (7, n * KB) if n < 60 else (9, (n - 60) * KB)
    return "ds_read_b128 %s, %s offset:%d" % (wreg(j, t), vr(base), off)


def gen_k2(cfg):
    b = B()
    entry2(b, "k2")
    b("s_cmp_ge_u32 s2, 256")
    b("s_cbranch_scc1 L_k2_end")
    load_args(b)
    stamp(b, cfg, 0)
    b("v_and_b32 v1, 63, v0")
    b("v_lshrrev_b32 v2, 6, v0")
    b("v_lshrrev_b32 v5, 4, v1")
    b("v_readfirstlane_b32 s24, v2")
    b("v_and_b32 v6, 15, v1")
    b("v_lshlrev_b32 v7, 4, v1")
    b("v_add_u32 v9, %d, v7" % (60 * KB))
    decode_wg(b, cfg, 25, 26)
    b("s_lshl_b32 s27, s25, 2")
    b("s_add_u32 s27, s27, s24")
    b("s_mul_i32 s36, s27, %d" % XT)
    b("s_add_u32 s37, s36, %d" % (L_O + 4096))
    b("s_mul_i32 s38, s26, %d" % WO_CG)
    b("s_lshl_b32 s39, s24, 10")
    b("s_add_u32 s38, s38, s39")
    b("s_add_u32 s38, s38, %d" % WO_OFF)
    b("s_mov_b32 m0, s39")
    b("v_mul_u32_u24 v10, 1152, v6")
    b("v_and_b32 v3, 1, v5")
    b("v_lshl_add_u32 v11, v3, 3, v10")
    b("v_lshl_add_u32 v10, v5, 3, v10")
    b("s_mul_i32 s46, s27, %d" % (16 * 1152))
    b("s_lshl_b32 s47, s26, 7")
    b("s_add_u32 s47, s47, s46")
    b("v_add_u32 v10, s47, v10")
    b("s_lshl_b32 s47, s26, 4")
    b("s_add_u32 s47, s47, s46")
    b("s_add_u32 s47, s47, 1024")
    b("v_add_u32 v11, s47, v11")
    b("s_waitcnt lgkmcnt(0)")
    stamp(b, cfg, 5)
    layer_ptrs(b, xin=28, lws=48)
    add64(b, 30, 48, "s37")
    add64(b, 32, 22, "s38")

    def oload(js):
        for j in js:
            b("global_load_dwordx4 %s, v7, s[30:31] offset:%d" % (vr(OF + 4 * j, 4), (j % 8) * KB - 4096), vm=("o", j))
            if j % 8 == 7:
                b("s_add_u32 s30, s30, 0x2000")
                b("s_addc_u32 s31, s31, 0")

    def wdma(qs, tag):
        for q in qs:
            b("global_load_lds_dwordx4 v7, s[32:33]", vm=tag)
            b("s_add_u32 m0, m0, 0x1000")
            b("s_add_u32 s32, s32, 0x1000")
            b("s_addc_u32 s33, s33, 0")

    wdma(range(0, 8), "wA")
    oload(range(0, 6))
    wdma(range(8, 15), "wB")
    oload(range(6, 12))
    wdma(range(15, 23), "wC")
    oload(range(12, 18))
    for t in range(4):
        b("global_load_dwordx2 %s, v10, s[28:29] offset:%d" % (vr(RES + 2 * t, 2), 32 * t), vm="res")
    b("global_load_dwordx2 %s, v11, s[28:29]" % vr(RES + 8, 2), vm="res")
    stamp(b, cfg, 6)
    b.wait(vm="wA")
    b("s_barrier")
    stamp(b, cfg, 1)
    for j in range(2):
        for t in range(5):
            b(wread(j, t), lg=("W", j))
    for j in range(18):
        if j in (4, 10):
            b.wait(vm="wB" if j == 4 else "wC")
            b("s_barrier")
        b.wait(vm=[("o", j)], lg=[("W", j)])
        for t in range(5):
            a = vr(ACC + 4 * t, 4)
            b("v_mfma_f32_16x16x32_bf16 %s, %s, %s, %s" % (a, wreg(j, t), vr(OF + 4 * j, 4), a if j else "0"))
            if j + 2 < 18:
                b(wread(j + 2, t), lg=("W", j + 2))
    stamp(b, cfg, 2)
    b("s_lshl_b32 s37, s26, 11")
    b("s_add_u32 s37, s37, s36")
    b("s_add_u32 s37, s37, %d" % L_X1)
    b("v_add_u32 v12, s37, v7")
    b("s_lshl_b32 s37, s26, 8")
    b("s_add_u32 s37, s37, s36")
    b("s_add_u32 s37, s37, %d" % (L_X1 + 16 * KB))
    b("v_lshlrev_b32 v13, 4, v6")
    b("v_lshl_add_u32 v13, v5, 3, v13")
    b("v_add_u32 v13, s37, v13")
    b("s_lshl_b32 s37, s27, 10")
    b("s_lshl_b32 s38, s26, 3")
    b("s_add_u32 s37, s37, s38")
    b("s_add_u32 s37, s37, %d" % L_ST)
    b("v_lshlrev_b32 v14, 6, v6")
    b("v_add_u32 v14, s37, v14")
    b.wait(vm="res")
    T = OF
    for t in range(5):
        for p in range(2):
            r = RES + 2 * t + p
            a = ACC + 4 * t + 2 * p
            b("v_lshlrev_b32 %s, 16, %s" % (vr(T), vr(r)))
            b("v_and_b32 %s, 0xffff0000, %s" % (vr(T + 1), vr(r)))
            b("v_add_f32 %s, %s, %s" % (vr(a), vr(a), vr(T)))
            b("v_add_f32 %s, %s, %s" % (vr(a + 1), vr(a + 1), vr(T + 1)))
            b("v_cvt_pk_bf16_f32 %s, %s, %s" % (vr(r), vr(a), vr(a + 1)))
    sc = cfg.get("sc_x1", "")
    b("global_store_dwordx4 v12, %s, s[48:49]%s" % (vr(RES, 4), sc))
    b("global_store_dwordx4 v12, %s, s[48:49] offset:1024%s" % (vr(RES + 4, 4), sc))
    b("v_mov_b32 v2, 0x3f803f80")
    b("v_mov_b32 %s, 0" % vr(T + 2))
    b("v_mov_b32 %s, 0" % vr(T + 3))
    b("s_mov_b32 exec_hi, 0")
    b("global_store_dwordx2 v13, %s, s[48:49]%s" % (vr(RES + 8, 2), sc))
    for r in (8, 9, -1, 0, 1, 2, 3, 4, 5, 6, 7):
        if r < 0:
            b("s_mov_b32 exec_hi, -1")
            continue
        b("v_dot2c_f32_bf16 %s, %s, v2" % (vr(T + 2), vr(RES + r)))
        b("v_dot2c_f32_bf16 %s, %s, %s" % (vr(T + 3), vr(RES + r), vr(RES + r)))
    b("s_nop 2")
    xlane_sum_g(b, T + 2, T + 4)
    xlane_sum_g(b, T + 3, T + 4)
    b("s_mov_b64 exec, 0xffff")
    b("global_store_dwordx2 v14, %s, s[48:49]%s" % (vr(T + 2, 2), sc))
    stamp_end(b, cfg, 2)
    b("L_k2_end:")
    b("s_endpgm")
    return b, [("k2a_kernel", 184, 184), ("k2b_kernel", 184, 184)], LDS2
```

```python
from asmlib import *
from layout import *
from common import *

XT = 18 * KB
HB = 72 * KB
BB = 144 * KB
LDS3 = 148 * KB

ACC, BIAS, RS, TMP, PK, ST, WR = 16, 64, 72, 76, 78, 84, 104
NB = 30


def xreg(j, m):
    n = 4 * j + m
    return ar(4 * n, 4) if n < 64 else vr(224 + 4 * (n - 64), 4)


def wreg(n):
    return vr(WR + 4 * (n % NB), 4)


class M:
    pass


def build_mfmas(cfg):
    G = cfg.get("G", 6)
    std = [list(range(k, min(k + G, 18))) for k in range(0, 18, G)]
    GD = cfg.get("GD", 4)
    dbl = [list(range(k, min(k + GD, 16))) for k in range(0, 16, GD)] + [[16, 17]]
    out = []

    def add(seg, aset, m, j, n, src):
        x = M()
        x.seg, x.aset, x.m, x.j, x.n, x.src = seg, aset, m, j, n, src
        out.append(x)

    for t in range(9):
        for grp in std:
            for m in range(4):
                for j in grp:
                    add(("p1", t), t % 2, m, j, 18 * t + j, "X")
    for grp in dbl:
        for m in range(4):
            for u in range(2):
                for j in grp:
                    add(("p2", u), 1 + u, m, j, w2_pos(u, j), "H")
    for u in range(2, 9):
        for grp in std:
            for m in range(4):
                for j in grp:
                    add(("p2", u), (1 + u) % 3, m, j, w2_pos(u, j), "H")
    return out


def wload(n):
    return "global_load_dwordx4 %s, v7, s[30:31] offset:%d" % (wreg(n), (n % 8) * KB - 4096)


ADV = ["s_add_u32 s30, s30, 0x2000", "s_addc_u32 s31, s31, 0"]


def mish_groups(t, m):
    a = ACC + 16 * (t % 2) + 4 * m
    bi = BIAS + 4 * (t % 2)
    G = []
    for p in (0, 2):
        x, y = a + p, a + p + 1
        G.append(["v_fma_f32 %s, %s, %s, %s" % (vr(x), vr(x), vr(RS + m), vr(bi + p)),
                  "v_fma_f32 %s, %s, %s, %s" % (vr(y), vr(y), vr(RS + m), vr(bi + p + 1))])
        G.append(["v_exp_f32 %s, %s" % (vr(TMP), vr(x))])
        G.append(["v_exp_f32 %s, %s" % (vr(TMP + 1), vr(y))])
        G.append(["v_fma_f32 %s, %s, s56, s56" % (vr(TMP + q), vr(TMP + q)) for q in range(2)])
        G.append(["v_fma_f32 %s, %s, %s, 0.5" % (vr(TMP + q), vr(TMP + q), vr(TMP + q)) for q in range(2)])
        G.append(["v_rcp_f32 %s, %s" % (vr(TMP), vr(TMP))])
        G.append(["v_rcp_f32 %s, %s" % (vr(TMP + 1), vr(TMP + 1))])
        G.append(["v_fma_f32 %s, -%s, %s, %s" % (vr(x), vr(x), vr(TMP), vr(x)),
                  "v_fma_f32 %s, -%s, %s, %s" % (vr(y), vr(y), vr(TMP + 1), vr(y))])
    pk = PK + 2 * (m & 1)
    G.append(["v_cvt_pk_bf16_f32 %s, %s, %s" % (vr(pk), vr(a), vr(a + 1)),
              "v_cvt_pk_bf16_f32 %s, %s, %s" % (vr(pk + 1), vr(a + 2), vr(a + 3))])
    base, off = (11, 8192 * t + KB * m) if t < 4 else (12, 8192 * (t - 4) + KB * m)
    G.append(["ds_write_b64 %s, %s offset:%d" % (vr(base), vr(pk, 2), off)])
    return G


def out_groups(cfg, u, h):
    a = ACC + 16 * ((1 + u) % 3) + 8 * h
    st = ST + 4 * ((2 * u + h) % 4)
    sp = 60 + 2 * (u % 2)
    G = []
    for q in range(2):
        G.append(["v_cvt_pk_bf16_f32 %s, %s, %s" % (vr(st + 2 * q + r), vr(a + 4 * q + 2 * r), vr(a + 4 * q + 2 * r + 1))
                  for r in range(2)])
    G.append(["global_store_dwordx4 v7, %s, s[%d:%d] offset:%d%s" % (vr(st, 4), sp, sp + 1, h * KB, cfg.get("sc_part", " sc1"))])
    return G


def part_ptr(u):
    sp = 60 + 2 * (u % 2)
    if u == 0:
        return ["s_add_u32 s%d, s58, %d" % (sp, 32 * 16 * KB), "s_addc_u32 s%d, s59, 0" % (sp + 1)]
    return ["s_add_u32 s57, s26, %d" % u, "s_and_b32 s57, s57, 7", "s_lshl_b32 s57, s57, 16",
            "s_add_u32 s%d, s58, s57" % sp, "s_addc_u32 s%d, s59, 0" % (sp + 1)]


def assert_free(vq, i, reg):
    from asmlib import _regs
    r = _regs(reg)
    for e, g, tag, wt in vq:
        if e - 8 > i:
            break
        for t in g:
            p = parse(t)
            assert not (r & (p.r | p.w)), (i, reg, t)


def gen_k3(cfg):
    b = B()
    entry2(b, "k3")
    b("s_cmp_ge_u32 s2, 256")
    b("s_cbranch_scc1 L_k3_end")
    load_args(b)
    stamp(b, cfg, 0)
    b("v_and_b32 v1, 63, v0")
    b("v_lshrrev_b32 v2, 6, v0")
    b("v_lshrrev_b32 v5, 4, v1")
    b("v_readfirstlane_b32 s24, v2")
    b("v_lshlrev_b32 v7, 4, v1")
    b("v_lshlrev_b32 v6, 6, v1")
    decode_wg(b, cfg, 25, 26)
    b("s_lshl_b32 s36, s25, 12")
    b("s_add_u32 s36, s36, %d" % L_ST)
    b("s_lshl_b32 s27, s25, 2")
    b("s_add_u32 s27, s27, s24")
    b("s_mul_i32 s37, s27, %d" % XT)
    b("s_add_u32 s37, s37, %d" % L_X1)
    b("s_lshl_b32 s38, s26, 2")
    b("s_add_u32 s38, s38, s24")
    b("s_mul_i32 s38, s38, %d" % WM_STREAM)
    b("s_add_u32 s38, s38, %d" % (WM_OFF + 4096))
    b("s_mul_i32 s39, s26, 2304")
    b("s_lshl_b32 s46, s24, 10")
    b("s_add_u32 s39, s39, s46")
    b("s_add_u32 s39, s39, %d" % B1_OFF)
    b("s_add_u32 m0, s46, %d" % BB)
    b("s_mul_i32 s47, s24, %d" % XT)
    b("s_waitcnt lgkmcnt(0)")
    layer_ptrs(b, lws=48)
    add64(b, 34, 48, "s36")
    add64(b, 50, 22, "s39")
    add64(b, 32, 48, "s37")
    add64(b, 30, 22, "s38")
    SV = ACC + 16
    for q in range(4):
        b("global_load_dwordx4 %s, v6, s[34:35] offset:%d" % (vr(SV + 4 * q, 4), 16 * q), vm="st")
    b("global_load_lds_dwordx4 v7, s[50:51]", vm="xA")
    b("s_mov_b32 m0, s47")

    def xdma(js, tag):
        for j in js:
            if j % 4 == 0 and j:
                b("s_add_u32 m0, m0, 0x1000")
                b("s_add_u32 s32, s32, 0x1000")
                b("s_addc_u32 s33, s33, 0")
            elif j == 0:
                b("s_nop 0")
            b("global_load_lds_dwordx4 v7, s[32:33] offset:%d" % ((j % 4) * KB), vm=tag)

    def wnow(ns):
        for n in ns:
            b(wload(n), vm=("W", n))
            if n % 8 == 7:
                for t in ADV: b(t)

    xdma(range(0, 6), "xA")
    wnow(range(0, 6))
    xdma(range(6, 12), "xB")
    wnow(range(6, 12))
    xdma(range(12, 18), "xC")
    wnow(range(12, NB))

    b("v_add_u32 v8, %d, v7" % (2 * XT))
    b("v_add_u32 v9, %d, v7" % HB)
    b("v_add_u32 v10, %d, v7" % (HB + 32768))
    b("s_lshr_b32 s46, s24, 1")
    b("s_lshl_b32 s46, s46, 12")
    b("s_and_b32 s47, s24, 1")
    b("s_lshl_b32 s47, s47, 3")
    b("s_add_u32 s46, s46, s47")
    b("v_add_u32 v11, s46, v9")
    b("v_add_u32 v12, s46, v10")
    b("s_lshl_b32 s46, s24, 6")
    b("s_add_u32 s46, s46, %d" % BB)
    b("v_lshlrev_b32 v13, 4, v5")
    b("v_add_u32 v13, s46, v13")
    b("s_mov_b32 s56, 0x%08x" % f32(0.5 ** 0.5))
    b("s_mul_i32 s46, s25, %d" % (36 * 16 * KB))
    b("s_lshl_b32 s47, s26, 11")
    b("s_add_u32 s46, s46, s47")
    b("s_lshl_b32 s47, s24, 14")
    b("s_add_u32 s46, s46, s47")
    b("s_add_u32 s46, s46, %d" % L_PART)
    add64(b, 58, 48, "s46")
    b.wait(vm="st")
    for step in (8, 4, 2):
        for q in range(step):
            b("v_add_f32 %s, %s, %s" % (vr(SV + q), vr(SV + q), vr(SV + q + step)))
    b("v_mul_f32 %s, 0x%08x, %s" % (vr(SV), f32(1.0 / 576), vr(SV)))
    b("v_mul_f32 %s, 0x%08x, %s" % (vr(SV + 1), f32(1.0 / 576), vr(SV + 1)))
    b("v_fma_f32 %s, -%s, %s, %s" % (vr(SV), vr(SV), vr(SV), vr(SV + 1)))
    b("v_max_f32 %s, 0, %s" % (vr(SV), vr(SV)))
    b("v_add_f32 %s, 0x%08x, %s" % (vr(SV), f32(1e-5), vr(SV)))
    b("v_rsq_f32 %s, %s" % (vr(SV), vr(SV)))
    b("s_nop 0")
    b("v_mul_f32 %s, 0x%08x, %s" % (vr(RS), f32(LOG2E), vr(SV)))
    b("v_mov_b32 %s, %s" % (vr(RS + 1), vr(RS)))
    b("s_nop 1")
    b("v_permlane16_swap_b32 %s, %s" % (vr(RS), vr(RS + 1)))
    b("s_nop 0")
    b("v_mov_b32 %s, %s" % (vr(RS + 2), vr(RS)))
    b("v_mov_b32 %s, %s" % (vr(RS + 3), vr(RS + 1)))
    b("s_nop 1")
    b("v_permlane32_swap_b32 %s, %s" % (vr(RS), vr(RS + 2)))
    b("v_permlane32_swap_b32 %s, %s" % (vr(RS + 1), vr(RS + 3)))

    mf = build_mfmas(cfg)
    N = len(mf)
    first_w, last_w, first_b, last_acc, last_x = {}, {}, {}, {}, {}
    for i, x in enumerate(mf):
        first_w.setdefault(x.n, i)
        last_w[x.n] = i
        first_b.setdefault((x.src, x.j, x.m), i)
        last_acc[(x.seg, x.m)] = i
        if x.src == "X":
            last_x[(x.j, x.m)] = i
    seg_start = {}
    for i, x in enumerate(mf):
        seg_start.setdefault(x.seg, i)

    def bread(src, j, m):
        if src == "X":
            base, off = (7, m * XT + j * KB) if m < 2 else (8, (m - 2) * XT + j * KB)
        else:
            base, off = (9, 4096 * j + KB * m) if j < 8 else (10, 4096 * (j - 8) + KB * m)
        return "ds_read_b128 %s, %s offset:%d" % (xreg(j, m), vr(base), off)

    def stage(src, j):
        if src == "X":
            return "xA" if j < 6 else "xB" if j < 12 else "xC"
        return "hA" if j < 14 else "hB" if j < 16 else "hC"

    LA = cfg.get("LA", 12)
    dq = sorted(first_b, key=lambda k: first_b[k])
    vq = []
    for t in range(9):
        for m in range(4):
            gs = mish_groups(t, m)
            for n, g in enumerate(gs):
                vq.append((last_acc[(("p1", t), m)] + 4, g, ("hw", t) if n == len(gs) - 1 else None,
                           ("bias", t) if (m == 0 and n == 0) else None))
    for u in range(9):
        for h in range(2):
            for g in out_groups(cfg, u, h):
                vq.append((last_acc[(("p2", u), 2 * h + 1)] + 8, g, None, None))
    hw_left = {t: 4 for t in range(9)}
    done = set()
    sq = []
    nextw = NB
    last_load = -4
    bias_next = 0
    ptr_next = 0
    sq_age = 0

    def ensure_stage(sg):
        if sg in done:
            return True
        if sg[0] == "x":
            b.wait(vm=sg)
        else:
            t = {"hA": 6, "hB": 7, "hC": 8}[sg]
            if hw_left[t]:
                return False
            b.wait(lg=[("hw", tt) for tt in range(t + 1)])
        b("s_barrier")
        done.add(sg)
        return True

    ensure_stage("xA")
    stamp(b, cfg, 1)
    while first_b[dq[0]] < LA:
        k = dq.pop(0)
        b(bread(*k), lg=k)
    for i, x in enumerate(mf):
        if i == 0:
            b.wait(vm=[("W", x.n)], lg=[(x.src, x.j, x.m)])
        if x.seg == ("p2", 0) and i == seg_start[x.seg]:
            stamp(b, cfg, 2)
        a = vr(ACC + 16 * x.aset + 4 * x.m, 4)
        if x.j == 0:
            assert_free(vq, i, a)
        b("v_mfma_f32_16x16x32_bf16 %s, %s, %s, %s" % (a, wreg(x.n), xreg(x.j, x.m), a if x.j else "0"))
        used = False
        budget = 2
        if i + 1 < N:
            y = mf[i + 1]
            ky = (y.src, y.j, y.m)
            while ky in dq:
                while not ensure_stage(stage(dq[0][0], dq[0][1])):
                    e, g, tag, wt = vq.pop(0)
                    assert e <= i
                    if wt: b.wait(lg=[wt])
                    for t in g: b(t, lg=tag)
                    if tag: hw_left[tag[1]] -= 1
                k = dq.pop(0)
                b(bread(*k), lg=k)
                cfg.setdefault("_late", []).append((i, k))
            assert y.n < nextw
            wl = [ky]
            if vq and vq[0][0] <= i and vq[0][3]:
                wl.append(vq[0][3])
            wv = []
            if b.pending(vm=[("W", y.n)]):
                wv = [("W", z.n) for z in mf[i + 1:i + 1 + cfg.get("WGRAN", 3)]]
                assert all(t[1] < nextw for t in wv)
            used = b.wait(vm=wv, lg=wl)
        if ptr_next < 9 and not sq and i >= seg_start[("p2", ptr_next)] + (40 if ptr_next >= 2 else 0):
            assert_free(vq, i, sr(60 + 2 * (ptr_next % 2), 2))
            sq += part_ptr(ptr_next)
            ptr_next += 1
        sq_age = sq_age + 1 if sq else 0
        if sq and (not used or sq_age > 1):
            b(sq.pop(0))
            sq_age = 0
        if nextw < 324 and i >= last_w[nextw - NB] and i - last_load >= cfg.get("LDGAP", 3) and not any(t in ADV for t in sq):
            b(wload(nextw), vm=("W", nextw))
            if nextw % 8 == 7:
                sq += ADV
            nextw += 1
            last_load = i
            if x.seg[0] == "p2" or x.seg == ("p1", 0):
                budget -= 1
        if bias_next < 9 and i >= seg_start[("p1", bias_next)] + 30:
            assert_free(vq, i, vr(BIAS + 4 * (bias_next % 2), 4))
            b("ds_read_b128 %s, v13 offset:%d" % (vr(BIAS + 4 * (bias_next % 2), 4), 256 * bias_next), lg=("bias", bias_next))
            bias_next += 1
        nd = 0
        while dq and budget > 0 and first_b[dq[0]] <= i + LA + (12 if budget == 1 and x.seg[0] == "p2" else 0):
            k = dq[0]
            if k[0] == "H" and last_x[(k[1], k[2])] > i:
                break
            if not ensure_stage(stage(k[0], k[1])):
                break
            dq.pop(0)
            b(bread(*k), lg=k)
            budget -= 1
            nd += 1
        if vq and vq[0][0] <= i and (budget == 2 or (x.seg[0] == "p1" and x.seg[1] > 0)):
            e, g, tag, wt = vq.pop(0)
            if wt: b.wait(lg=[wt])
            for t in g: b(t, lg=tag)
            if tag: hw_left[tag[1]] -= 1
    stamp(b, cfg, 3)
    assert not dq and not sq and nextw == 324
    b("s_nop 7")
    for e, g, tag, wt in vq:
        for t in g: b(t)
    stamp_end(b, cfg, 3)
    b("L_k3_end:")
    b("s_endpgm")
    return b, [("k3a_kernel", 512, 256), ("k3b_kernel", 512, 256)], LDS3
```

```python
from asmlib import *
from layout import *
from common import *

XT = 18 * KB
P, RES, P9, R9, A = 16, 80, 88, 96, 100


def gen_k4(cfg):
    b = B()
    entry2(b, "k4")
    b("s_cmp_ge_u32 s2, 256")
    b("s_cbranch_scc1 L_k4_end")
    load_args(b)
    stamp(b, cfg, 0)
    b("v_and_b32 v1, 63, v0")
    b("v_lshrrev_b32 v2, 6, v0")
    b("v_lshrrev_b32 v5, 4, v1")
    b("v_readfirstlane_b32 s24, v2")
    b("v_and_b32 v6, 15, v1")
    b("v_lshlrev_b32 v7, 4, v1")
    decode_wg(b, cfg, 25, 26)
    b("s_mul_i32 s36, s25, %d" % (36 * 16 * KB))
    b("s_lshl_b32 s37, s24, 14")
    b("s_add_u32 s36, s36, s37")
    b("s_add_u32 s36, s36, %d" % (L_PART + 4096))
    b("s_lshl_b32 s37, s26, 16")
    b("s_add_u32 s37, s37, s36")
    b("s_lshr_b32 s38, s26, 2")
    b("s_lshl_b32 s38, s38, 10")
    b("s_and_b32 s39, s26, 2")
    b("s_lshl_b32 s39, s39, 2")
    b("s_add_u32 s38, s38, s39")
    b("s_add_u32 s38, s38, s36")
    b("s_add_u32 s38, s38, %d" % (32 * 16 * KB - 4096))
    b("s_and_b32 s39, s26, 1")
    b("s_lshl_b32 s39, s39, 3")
    b("v_and_b32 v3, 7, v6")
    b("v_add_u32 v3, s39, v3")
    b("v_lshl_add_u32 v8, v5, 4, v3")
    b("v_lshlrev_b32 v8, 4, v8")
    b("v_lshrrev_b32 v4, 3, v6")
    b("v_lshl_add_u32 v8, v4, 11, v8")
    b("v_add_u32 v8, s38, v8")
    b("s_mul_i32 s46, s25, %d" % (4 * XT))
    b("s_add_u32 s46, s46, %d" % L_X1)
    b("s_lshl_b32 s38, s26, 1")
    b("s_lshr_b32 s39, s24, 1")
    b("s_add_u32 s38, s38, s39")
    b("s_lshl_b32 s38, s38, 10")
    b("s_and_b32 s47, s24, 1")
    b("s_lshl_b32 s47, s47, 3")
    b("s_add_u32 s38, s38, s47")
    b("s_add_u32 s38, s38, s46")
    b("v_add_u32 v9, s38, v7")
    b("s_lshr_b32 s38, s26, 1")
    b("s_mul_i32 s38, s38, %d" % XT)
    b("s_lshl_b32 s39, s24, 9")
    b("s_add_u32 s38, s38, s39")
    b("s_add_u32 s38, s38, s46")
    b("s_add_u32 s38, s38, %d" % (16 * KB))
    b("v_lshrrev_b32 v4, 1, v5")
    b("v_lshl_add_u32 v10, v4, 4, v3")
    b("v_lshlrev_b32 v10, 4, v10")
    b("v_and_b32 v4, 1, v5")
    b("v_lshl_add_u32 v10, v4, 3, v10")
    b("v_add_u32 v10, s38, v10")
    b("s_waitcnt lgkmcnt(0)")
    stamp(b, cfg, 5)
    layer_ptrs(b, xout=28, lws=48)
    add64(b, 30, 48, "s37")
    for n in range(16):
        b("global_load_dwordx4 %s, v7, s[30:31] offset:%d" % (vr(P + 4 * n, 4), (n % 8) * KB - 4096), vm=("p", n // 2))
        if n == 7:
            b("s_add_u32 s30, s30, 0x2000")
            b("s_addc_u32 s31, s31, 0")
    for m in range(4):
        b("global_load_dwordx2 %s, v9, s[48:49]" % vr(RES + 2 * m, 2), vm="res")
        b("v_add_u32 v9, %d, v9" % XT)
    for q in range(4):
        b("global_load_dwordx2 %s, v8, s[48:49]" % vr(P9 + 2 * q, 2), vm="p9")
        b("v_add_u32 v8, 0x1000, v8")
    b("global_load_dwordx2 %s, v10, s[48:49]" % vr(R9, 2), vm="p9")
    stamp(b, cfg, 6)
    b("s_lshl_b32 s36, s25, 6")
    b("s_mul_i32 s36, s36, 1152")
    b("s_lshl_b32 s37, s26, 7")
    b("s_lshl_b32 s38, s24, 5")
    b("s_add_u32 s37, s37, s38")
    b("s_add_u32 s37, s37, s36")
    b("v_mul_u32_u24 v11, 1152, v6")
    b("v_lshl_add_u32 v11, v5, 3, v11")
    b("v_add_u32 v12, s37, v11")
    b("s_mul_i32 s37, s26, %d" % (8 * 1152))
    b("s_add_u32 s37, s37, s38")
    b("s_add_u32 s37, s37, s36")
    b("s_add_u32 s37, s37, 1024")
    b("v_add_u32 v11, s37, v11")
    b("s_mov_b32 s56, 0x%08x" % f32(LN2))

    def accum(dst, src, n, first):
        for r in range(n):
            lo, hi = dst + 2 * r, dst + 2 * r + 1
            if first:
                b("v_lshlrev_b32 %s, 16, %s" % (vr(lo), vr(src + r)))
                b("v_and_b32 %s, 0xffff0000, %s" % (vr(hi), vr(src + r)))
            else:
                b("v_lshlrev_b32 v13, 16, %s" % vr(src + r))
                b("v_and_b32 v14, 0xffff0000, %s" % vr(src + r))
                b("v_add_f32 %s, %s, v13" % (vr(lo), vr(lo)))
                b("v_add_f32 %s, %s, v14" % (vr(hi), vr(hi)))

    def finish(acc, res, n):
        for r in range(n):
            b("v_lshlrev_b32 v13, 16, %s" % vr(res + r))
            b("v_and_b32 v14, 0xffff0000, %s" % vr(res + r))
            b("v_fma_f32 v13, %s, s56, v13" % vr(acc + 2 * r))
            b("v_fma_f32 v14, %s, s56, v14" % vr(acc + 2 * r + 1))
            b("v_cvt_pk_bf16_f32 %s, v13, v14" % vr(res + r))

    for s in range(8):
        b.wait(vm=[("p", s)])
        accum(A, P + 8 * s, 8, s == 0)
    b.wait(vm="res")
    finish(A, RES, 8)
    for m in range(4):
        b("global_store_dwordx2 v12, %s, s[28:29]" % vr(RES + 2 * m, 2))
        b("v_add_u32 v12, %d, v12" % (16 * 1152))
    b.wait(vm="p9")
    for q in range(4):
        accum(A, P9 + 2 * q, 2, q == 0)
    b("s_nop 1")
    for r in range(4):
        b("v_add_f32_dpp %s, %s, %s row_ror:8 row_mask:0xf bank_mask:0xf" % (vr(A + 4 + r), vr(A + r), vr(A + r)))
    finish(A + 4, R9, 2)
    b("s_mov_b32 exec_lo, 0x00ff00ff")
    b("s_mov_b32 exec_hi, 0x00ff00ff")
    b("global_store_dwordx2 v11, %s, s[28:29]" % vr(R9, 2))
    stamp_end(b, cfg, 4)
    b("L_k4_end:")
    b("s_endpgm")
    return b, [("k4a_kernel", 120, 120), ("k4b_kernel", 120, 120)], 0
```

```python
S, D, F = 2048, 576, 4608
KB = 1024
ACT = S * D * 2

WQ_OFF = 0
WQ_SZ = 8 * 4 * 18 * 4 * KB
WO_OFF = WQ_OFF + WQ_SZ
WO_CG = 92 * KB
WO_SZ = 8 * WO_CG
WM_OFF = WO_OFF + WO_SZ
WM_STREAM = 324 * KB
WM_SZ = 32 * WM_STREAM
B1_OFF = WM_OFF + WM_SZ
B1_SZ = 20 * KB
X2_OFF = B1_OFF + B1_SZ
FLAG_OFF = X2_OFF + ACT
FLAG_SZ = 1024 * KB
LAYER_OFF = FLAG_OFF + FLAG_SZ
L_O = 0
L_X1 = L_O + ACT
L_ST = L_X1 + ACT
L_PART = L_ST + S * 64
PART_SZ = 32 * 36 * 16 * KB
LAYER_SZ = L_PART + PART_SZ
STAMP_OFF = LAYER_OFF + 2 * LAYER_SZ
STAMP_K = 64 * KB

LOG2E = 1.4426950408889634
LN2 = 0.6931471805599453
MAINSTART = [0, 20, 36, 56]
TAILCOL = [16, 17, 18, 19, 52, 53, 54, 55]


def pi_nat(j, g, e):
    return 32 * j + 8 * g + e


def pi_blk(j, g, e):
    return 32 * j + 16 * (e >> 2) + 4 * g + (e & 3)


def pi_1(j, g, e):
    return pi_blk(j, g, e) if j < 16 else pi_nat(j, g, e)


def pi_o(j, g, e):
    if j < 16:
        return 36 * j + 20 * (g >> 1) + 8 * (g & 1) + e
    return 72 * (4 * (j - 16) + g) + TAILCOL[e]


def w2_dtile(s, w, u):
    return 32 + w if u == 0 else 4 * ((s + u) % 8) + w


def w2_pos(u, j):
    return 162 + (2 * j + u if u < 2 else 18 * u + j)
```

```python
import sys
from asmlib import *
from layout import *
import k0, k1, k2, k3, k4

HEAD = open("interleave_layers__sliding_local_dilated__dense_activation_mish__prompt.s.ref").read().split("; Override launch")[0] if __import__("os").path.exists("interleave_layers__sliding_local_dilated__dense_activation_mish__prompt.s.ref") else ""


def desc(name, vgpr, acc):
    return ("""
.p2align 6
.amdhsa_kernel %s
  .amdhsa_next_free_vgpr %d
  .amdhsa_next_free_sgpr 102
  .amdhsa_accum_offset %d
  .amdhsa_group_segment_fixed_size 0
  .amdhsa_kernarg_size 80
  .amdhsa_user_sgpr_count 2
  .amdhsa_user_sgpr_kernarg_segment_ptr 1
  .amdhsa_system_sgpr_workgroup_id_x 1
.end_amdhsa_kernel""" % (name, vgpr, acc))


def generate(cfg):
    cfg.setdefault("R", 4)
    b0, d0, l0 = k0.gen_k0(cfg)
    parts = [k1.gen_k1(cfg), k2.gen_k2(cfg), k3.gen_k3(cfg), k4.gen_k4(cfg)]
    launches = list(l0)
    for lay in range(2):
        for (bb, dd, lds) in parts:
            launches.append((dd[lay][0], 256, 256, lds))
    errs = check_hazards(b0.L, "k0")
    for n, (bb, dd, lds) in enumerate(parts):
        errs += check_hazards(bb.L, "k%d" % (n + 1))
    for e in errs[:40]:
        print("HAZARD", e, file=sys.stderr)
    assert not errs
    out = HEAD
    for (k, g, blk, lds) in launches:
        out += "; @launch kernel=%s grid=(%d,1,1) block=(%d,1,1) lds=%d\n" % (k, g, blk, lds)
    out += '.amdgcn_target "amdgcn-amd-amdhsa--gfx950"\n.text\n'
    out += b0.text()
    for (bb, dd, lds) in parts:
        out += bb.text()
    out += '.section .rodata,"a"\n'
    for d in d0 + [d for (bb, dd, lds) in parts for d in dd]:
        out += desc(*d)
    return out + "\n"


if __name__ == "__main__":
    cfg = {}
    for a in sys.argv[2:]:
        k, v = a.split("=", 1)
        try: v = int(v)
        except ValueError: v = v.replace("_", " ")
        cfg[k] = v
    open(sys.argv[1], "w").write(generate(cfg))
    if cfg.get("_late"): print("late reads:", cfg["_late"])
```

```python
import sys
from asmlib import *
from layout import *
import k0, k1, k2, k3, k4

HEAD = open("interleave_layers__sliding_local_dilated__dense_activation_mish__prompt.s.ref").read().split("; Override launch")[0] if __import__("os").path.exists("interleave_layers__sliding_local_dilated__dense_activation_mish__prompt.s.ref") else ""


def desc(name, vgpr, acc):
    return ("""
.p2align 6
.amdhsa_kernel %s
  .amdhsa_next_free_vgpr %d
  .amdhsa_next_free_sgpr 102
  .amdhsa_accum_offset %d
  .amdhsa_group_segment_fixed_size 0
  .amdhsa_kernarg_size 80
  .amdhsa_user_sgpr_count 2
  .amdhsa_user_sgpr_kernarg_segment_ptr 1
  .amdhsa_system_sgpr_workgroup_id_x 1
.end_amdhsa_kernel""" % (name, vgpr, acc))


def generate(cfg):
    cfg.setdefault("R", 4)
    b0, d0, l0 = k0.gen_k0(cfg)
    parts = [k1.gen_k1(cfg), k2.gen_k2(cfg), k3.gen_k3(cfg), k4.gen_k4(cfg)]
    launches = list(l0)
    for lay in range(2):
        for (bb, dd, lds) in parts:
            launches.append((dd[lay][0], 256, 256, lds))
    if cfg.get("empty_pre") or cfg.get("empty_post"):
        b0(".p2align 8\n.globl nop_kernel\n.type nop_kernel,@function\nnop_kernel:\ns_endpgm")
        d0 = d0 + [("nop_kernel", 8, 8)]
        launches = [("nop_kernel", 256, 256, 0)] * cfg.get("empty_pre", 0) + launches + [("nop_kernel", 256, 256, 0)] * cfg.get("empty_post", 0)
    if cfg.get("twice"):
        launches = launches + launches
    if cfg.get("k0twice"):
        launches = launches[:1] + launches
    errs = check_hazards(b0.L, "k0")
    for n, (bb, dd, lds) in enumerate(parts):
        errs += check_hazards(bb.L, "k%d" % (n + 1))
    for e in errs[:40]:
        print("HAZARD", e, file=sys.stderr)
    assert not errs
    out = HEAD
    for (k, g, blk, lds) in launches:
        out += "; @launch kernel=%s grid=(%d,1,1) block=(%d,1,1) lds=%d\n" % (k, g, blk, lds)
    out += '.amdgcn_target "amdgcn-amd-amdhsa--gfx950"\n.text\n'
    out += b0.text()
    for (bb, dd, lds) in parts:
        out += bb.text()
    out += '.section .rodata,"a"\n'
    for d in d0 + [d for (bb, dd, lds) in parts for d in dd]:
        out += desc(*d)
    return out + "\n"


if __name__ == "__main__":
    cfg = {}
    for a in sys.argv[2:]:
        k, v = a.split("=", 1)
        try: v = int(v)
        except ValueError: v = v.replace("_", " ")
        cfg[k] = v
    open(sys.argv[1], "w").write(generate(cfg))
    if cfg.get("_late"): print("late reads:", cfg["_late"])
```

```python
import struct
from asmlib import *
from layout import *


def f32(x):
    return struct.unpack("<I", struct.pack("<f", x))[0]


def entry(b, name):
    b(".p2align 8")
    b(".globl %s" % name)
    b(".type %s,@function" % name)
    b("%s:" % name)


def entry2(b, stem):
    entry(b, stem + "a_kernel")
    b("s_mov_b32 s3, 0")
    b("s_branch L_%s_body" % stem)
    entry(b, stem + "b_kernel")
    b("s_mov_b32 s3, 1")
    b("L_%s_body:" % stem)


def load_args(b):
    b("s_load_dwordx16 s[4:19], s[0:1], 0")
    b("s_load_dwordx4 s[20:23], s[0:1], 64")


def decode_wg(b, cfg, rb, col):
    R = cfg["R"]
    C = 8 // R
    lc = C.bit_length() - 1
    per = 8 // C
    lp = per.bit_length() - 1
    b("s_and_b32 s40, s2, 7")
    b("s_lshr_b32 s41, s2, 3")
    b("s_lshr_b32 s%d, s40, %d" % (rb, lc))
    b("s_mul_i32 s%d, s%d, %d" % (rb, rb, 32 // R))
    b("s_lshr_b32 s42, s41, %d" % lp)
    b("s_add_u32 s%d, s%d, s42" % (rb, rb))
    b("s_and_b32 s%d, s40, %d" % (col, C - 1))
    b("s_lshl_b32 s%d, s%d, %d" % (col, col, lp))
    b("s_and_b32 s42, s41, %d" % (per - 1))
    b("s_add_u32 s%d, s%d, s42" % (col, col))


def add64(b, dst, src, off):
    b("s_add_u32 s%d, s%d, %s" % (dst, src, off))
    b("s_addc_u32 s%d, s%d, 0" % (dst + 1, src + 1))


def layer_ptrs(b, xin=None, xout=None, lws=None):
    add64(b, 44, 22, X2_OFF)
    b("s_cmp_eq_u32 s3, 0")
    if xin is not None:
        b("s_cselect_b32 s%d, s4, s44" % xin)
        b("s_cselect_b32 s%d, s5, s45" % (xin + 1))
    if xout is not None:
        b("s_cselect_b32 s%d, s44, s18" % xout)
        b("s_cselect_b32 s%d, s45, s19" % (xout + 1))
    if lws is not None:
        b("s_cselect_b32 s43, %d, %d" % (0, LAYER_SZ))
        b("s_add_u32 s43, s43, %d" % LAYER_OFF)
        add64(b, lws, 22, "s43")


def xlane_sum_g(b, v, t):
    b("v_mov_b32 %s, %s" % (vr(t), vr(v)))
    b("s_nop 1")
    b("v_permlane16_swap_b32 %s, %s" % (vr(v), vr(t)))
    b("s_nop 0")
    b("v_add_f32 %s, %s, %s" % (vr(v), vr(v), vr(t)))
    b("v_mov_b32 %s, %s" % (vr(t), vr(v)))
    b("s_nop 1")
    b("v_permlane32_swap_b32 %s, %s" % (vr(v), vr(t)))
    b("s_nop 0")
    b("v_add_f32 %s, %s, %s" % (vr(v), vr(v), vr(t)))


def stamp(b, cfg, n):
    if cfg.get("stamp"):
        b("%s s[%d:%d]" % ("s_memtime" if cfg["stamp"] == 2 and n else "s_memrealtime", 80 + 2 * n, 81 + 2 * n))
        if n == 0:
            for r in range(82, 96):
                b("s_mov_b32 s%d, 0" % r)


def stamp_end(b, cfg, kidx, layered=True, wait=True):
    if not cfg.get("stamp"):
        return
    keep = list(b.vmq)
    if wait:
        b("s_waitcnt vmcnt(0)")
    b("s_memrealtime s[94:95]")
    b("s_mov_b64 exec, -1")
    b("s_lshl_b32 s96, s2, 6")
    b("s_add_u32 s96, s96, %d" % (STAMP_OFF + kidx * STAMP_K))
    if layered:
        b("s_mul_i32 s97, s3, %d" % (4 * STAMP_K))
        b("s_add_u32 s96, s96, s97")
    b("s_waitcnt lgkmcnt(0)")
    b("v_mov_b32 v20, s96")
    b("v_cmp_eq_u32 vcc, 0, v0")
    b("s_and_saveexec_b64 s[98:99], vcc")
    lab = "L_stamp_%d_%d_%d" % (kidx, len(b.L), wait)
    b("s_cbranch_execz %s" % lab)
    for q in range(4):
        for r in range(4):
            b("v_mov_b32 v%d, s%d" % (16 + r, 80 + 4 * q + r))
        b("global_store_dwordx4 v20, v[16:19], s[22:23] offset:%d" % (16 * q))
        b("s_nop 1")
    b("%s:" % lab)
    b("s_mov_b64 exec, -1")
    b.vmq = [] if wait else keep
```

```python
from asmlib import *
from layout import *
from common import *

NWG0 = 177
LDS0 = 85 * 1008 + 16
FR = 16


def tr_reads(b, plan):
    for j in range(18):
        for h in range(2):
            base, imm = plan(j, h)
            assert 0 <= imm < 65536
            b("ds_read_b64_tr_b16 %s, %s offset:%d" % (vr(FR + 4 * j + 2 * h, 2), vr(base), imm))
        if j % 6 == 5:
            b.wait_all(vm=False)


def centre(b):
    b("v_mov_b32 v12, 0x3f803f80")
    b("v_mov_b32 v13, 0")
    b("v_mov_b32 v14, 0")
    for r in range(0, 72, 2):
        b("v_dot2c_f32_bf16 v13, %s, v12" % vr(FR + r))
        b("v_dot2c_f32_bf16 v14, %s, v12" % vr(FR + r + 1))
    b("s_nop 2")
    b("v_add_f32 v13, v13, v14")
    xlane_sum_g(b, 13, 14)
    b("v_mul_f32 v13, 0x%08x, v13" % f32(1.0 / 576))
    for r in range(72):
        x = FR + r
        t = 90 + 2 * (r & 1)
        b("v_lshlrev_b32 %s, 16, %s" % (vr(t), vr(x)))
        b("v_and_b32 %s, 0xffff0000, %s" % (vr(t + 1), vr(x)))
        b("v_sub_f32 %s, %s, v13" % (vr(t), vr(t)))
        b("v_sub_f32 %s, %s, v13" % (vr(t + 1), vr(t + 1)))
        b("v_cvt_pk_bf16_f32 %s, %s, %s" % (vr(x), vr(t), vr(t + 1)))


def stores(b, vdst, sstride, second=None):
    for j in range(18):
        b("global_store_dwordx4 %s, %s, s[22:23]" % (vr(vdst), vr(FR + 4 * j, 4)))
        if second is not None:
            b("global_store_dwordx4 %s, %s, s[22:23] offset:%d" % (vr(vdst), vr(FR + 4 * j, 4), second))
        b("v_add_u32 %s, %s, %s" % (vr(vdst), sstride, vr(vdst)))
    b.vmq = []


def load128(b, stride):
    b("v_lshrrev_b32 v8, 3, v1")
    b("v_mul_u32_u24 v8, %d, v8" % stride)
    b("v_and_b32 v9, 7, v1")
    b("v_lshl_add_u32 v8, v9, 4, v8")
    b("s_mul_i32 s34, s24, %d" % (144 * stride))
    b("s_add_u32 s32, s32, s34")
    b("s_mul_i32 s34, s24, %d" % (144 * 128))
    b("s_mov_b32 m0, s34")
    for n in range(18):
        b("s_nop 0")
        b("buffer_load_dwordx4 v8, s[28:31], s32 offen lds")
        b("s_add_u32 s32, s32, %d" % (8 * stride))
        b("s_add_u32 m0, m0, 1024")
    b.wait_all()
    b("s_barrier")


def srd(b, ptr, size):
    b("s_mov_b32 s28, s%d" % ptr)
    b("s_and_b32 s29, s%d, 0xffff" % (ptr + 1))
    b("s_mov_b32 s30, %d" % size)
    b("s_mov_b32 s31, 0x20000")


def div9(b, dst, rem, src):
    b("s_mul_i32 s%d, s%d, 57" % (dst, src))
    b("s_lshr_b32 s%d, s%d, 9" % (dst, dst))
    b("s_mul_i32 s%d, s%d, 9" % (rem, dst))
    b("s_sub_u32 s%d, s%d, s%d" % (rem, src, rem))


def col128(b, dst):
    b("v_lshl_add_u32 %s, v3, 3, %s" % (vr(dst), vr(dst)))
    b("s_lshl_b32 s35, s24, 5")
    b("v_add_u32 %s, s35, %s" % (vr(dst), vr(dst)))


def gen_k0(cfg):
    assert all((x * 57) >> 9 == x // 9 for x in range(72))
    b = B()
    entry(b, "k0_kernel")
    b("s_cmp_ge_u32 s2, %d" % NWG0)
    b("s_cbranch_scc1 L_k0_end")
    load_args(b)
    stamp(b, cfg, 0)
    b("v_and_b32 v1, 63, v0")
    b("v_lshrrev_b32 v2, 6, v0")
    b("v_and_b32 v3, 3, v1")
    b("v_readfirstlane_b32 s24, v2")
    b("v_bfe_u32 v4, v1, 2, 2")
    b("v_lshrrev_b32 v5, 4, v1")
    b("v_and_b32 v6, 15, v1")
    b("v_lshlrev_b32 v7, 4, v1")
    b("s_waitcnt lgkmcnt(0)")
    b("s_cmp_ge_u32 s2, 168")
    b("s_cbranch_scc1 L_k0_wo")
    b("s_cmp_ge_u32 s2, 144")
    b("s_cbranch_scc1 L_k0_wq")
    b("s_cmp_ge_u32 s2, 72")
    b("s_cbranch_scc1 L_k0_w2")

    b("s_cmp_eq_u32 s24, 4")
    b("s_cbranch_scc1 L_k0_bias")
    srd(b, 12, D * F * 2)
    b("s_lshl_b32 s32, s2, 7")
    load128(b, F * 2)
    b("v_lshl_add_u32 v10, v5, 2, v4")
    b("v_lshlrev_b32 v10, 7, v10")
    col128(b, 10)
    b("v_lshl_add_u32 v11, v5, 3, v4")
    b("v_lshlrev_b32 v11, 7, v11")
    b("v_add_u32 v11, 0x10000, v11")
    col128(b, 11)
    tr_reads(b, lambda j, h: (10, 4096 * j + 2048 * h) if j < 16 else (11, 4096 * (j - 16) + 512 * h))
    centre(b)
    div9(b, 36, 37, 2)
    b("s_lshl_b32 s36, s36, 2")
    b("s_add_u32 s36, s36, s24")
    b("s_mul_i32 s36, s36, %d" % WM_STREAM)
    b("s_mul_i32 s37, s37, %d" % (18 * KB))
    b("s_add_u32 s36, s36, s37")
    b("s_add_u32 s36, s36, %d" % WM_OFF)
    b("v_add_u32 v8, s36, v7")
    stores(b, 8, "0x400")
    b("s_branch L_k0_fin")

    b("L_k0_bias:")
    b("s_lshl_b32 s32, s2, 6")
    b("v_add_u32 v8, s32, v1")
    b("v_lshlrev_b32 v9, 1, v8")
    b("global_load_ushort v10, v9, s[14:15]")
    b("v_lshlrev_b32 v8, 2, v8")
    b("v_add_u32 v8, %d, v8" % B1_OFF)
    b.wait_all()
    b("v_lshlrev_b32 v10, 16, v10")
    b("v_mul_f32 v10, 0x%08x, v10" % f32(LOG2E))
    b("global_store_dword v8, v10, s[22:23]")
    b("s_endpgm")
    b.vmq = []

    b("L_k0_zero:")
    b("s_sub_u32 s38, s2, 72")
    b("s_cmp_ge_u32 s38, %d" % (FL_USED // (6 * KB)))
    b("s_cbranch_scc1 L_k0_end")
    b("s_mul_i32 s38, s38, %d" % (6 * KB))
    b("s_add_u32 s38, s38, %d" % (FLAG_OFF + 2 * KB))
    b("v_add_u32 v8, s38, v7")
    for r in range(4):
        b("v_mov_b32 v%d, 0" % (12 + r))
    for n in range(6):
        b("global_store_dwordx4 v8, v[12:15], s[22:23] offset:%d" % (n * KB - 2 * KB))
    b("s_endpgm")
    b.vmq = []

    b("L_k0_w2:")
    b("s_cmp_eq_u32 s24, 4")
    b("s_cbranch_scc1 L_k0_zero")
    srd(b, 16, D * F * 2)
    b("s_sub_u32 s38, s2, 72")
    div9(b, 36, 37, 38)
    b("s_mul_i32 s32, s36, %d" % (576 * 1152))
    b("s_lshl_b32 s33, s37, 7")
    b("s_add_u32 s32, s32, s33")
    load128(b, D * 2)
    b("v_lshl_add_u32 v10, v5, 2, v4")
    b("v_lshlrev_b32 v10, 7, v10")
    col128(b, 10)
    b("v_add_u32 v11, 0x10000, v10")
    tr_reads(b, lambda j, h: (10, 4096 * j + 2048 * h) if j < 16 else (11, 4096 * (j - 16) + 2048 * h))
    b("s_sub_u32 s38, s37, s36")
    b("s_add_u32 s38, s38, 7")
    b("s_and_b32 s38, s38, 7")
    b("s_add_u32 s38, s38, 1")
    b("s_cmp_eq_u32 s37, 8")
    b("s_cselect_b32 s38, 0, s38")
    b("s_mul_i32 s39, s38, 18")
    b("s_cmp_lt_u32 s38, 2")
    b("s_cselect_b32 s39, s38, s39")
    b("s_cselect_b32 s40, 2, 1")
    b("s_lshl_b32 s40, s40, 10")
    b("s_add_u32 s39, s39, 162")
    b("s_lshl_b32 s39, s39, 10")
    b("s_lshl_b32 s36, s36, 2")
    b("s_add_u32 s36, s36, s24")
    b("s_mul_i32 s36, s36, %d" % WM_STREAM)
    b("s_add_u32 s36, s36, s39")
    b("s_add_u32 s36, s36, %d" % WM_OFF)
    b("v_add_u32 v8, s36, v7")
    stores(b, 8, "s40")
    b("s_branch L_k0_fin")

    b("L_k0_wo:")
    b("s_cmp_eq_u32 s24, 4")
    b("s_cbranch_scc1 L_k0_end")
    srd(b, 8, D * D * 2)
    b("s_sub_u32 s37, s2, 168")
    b("s_lshl_b32 s32, s37, 7")
    load128(b, D * 2)
    b("v_lshrrev_b32 v10, 1, v5")
    b("v_mul_u32_u24 v10, 20, v10")
    b("v_and_b32 v11, 1, v5")
    b("v_lshl_add_u32 v10, v11, 3, v10")
    b("v_add_u32 v10, v10, v4")
    b("v_lshlrev_b32 v10, 7, v10")
    col128(b, 10)
    b("v_add_u32 v11, %d, v10" % (8 * 4608))
    b("v_mul_u32_u24 v12, 72, v5")
    b("v_add3_u32 v12, v12, v4, 16")
    b("v_lshlrev_b32 v12, 7, v12")
    col128(b, 12)
    tr_reads(b, lambda j, h: (10, 4608 * j + 512 * h) if j < 8 else
             (11, 4608 * (j - 8) + 512 * h) if j < 16 else (12, 36864 * (j - 16) + 4608 * h))
    b("s_cmp_eq_u32 s37, 8")
    b("s_cbranch_scc1 L_k0_wo8")
    b("s_mul_i32 s36, s37, %d" % WO_CG)
    b("s_lshl_b32 s38, s24, 10")
    b("s_add_u32 s36, s36, s38")
    b("s_add_u32 s36, s36, %d" % WO_OFF)
    b("v_add_u32 v8, s36, v7")
    stores(b, 8, "0x1400")
    b("s_branch L_k0_fin")
    b("L_k0_wo8:")
    b("s_mul_i32 s36, s24, %d" % (2 * WO_CG))
    b("s_add_u32 s36, s36, %d" % (WO_OFF + 4 * KB))
    b("v_lshrrev_b32 v8, 3, v6")
    b("v_mul_u32_u24 v8, %d, v8" % (WO_CG - 128))
    b("v_add3_u32 v8, v8, v7, s36")
    stores(b, 8, "0x1400", second=128)
    b("s_branch L_k0_fin")

    b("L_k0_wq:")
    srd(b, 6, D * 3 * D * 2)
    b("s_sub_u32 s38, s2, 144")
    b("s_mul_i32 s36, s38, 43")
    b("s_lshr_b32 s36, s36, 7")
    assert all((x * 43) >> 7 == x // 3 for x in range(24))
    b("s_mul_i32 s37, s36, 3")
    b("s_sub_u32 s37, s38, s37")
    b("s_mul_i32 s32, s37, 1152")
    b("s_mul_i32 s33, s36, 144")
    b("s_add_u32 s32, s32, s33")
    b("v_mul_u32_u24 v8, 57, v1")
    b("v_lshrrev_b32 v8, 9, v8")
    b("v_mul_u32_u24 v9, 9, v8")
    b("v_sub_u32 v9, v1, v9")
    b("v_mul_u32_u24 v8, 3456, v8")
    b("v_lshl_add_u32 v8, v9, 4, v8")
    b("s_mul_i32 s34, s24, %d" % (17 * 7 * 3456))
    b("s_add_u32 s32, s32, s34")
    b("s_mul_i32 s34, s24, %d" % (17 * 1008))
    b("s_mov_b32 m0, s34")
    for n in range(17):
        b("s_nop 0")
        b("buffer_load_dwordx4 v8, s[28:31], s32 offen lds")
        b("s_add_u32 s32, s32, %d" % (7 * 3456))
        b("s_add_u32 m0, m0, 1008")
    b.wait_all()
    b("s_barrier")
    b("v_lshl_add_u32 v10, v5, 3, v4")
    b("v_mul_u32_u24 v10, 144, v10")
    b("s_lshr_b32 s38, s24, 1")
    b("s_mul_i32 s38, s38, 72")
    b("s_and_b32 s39, s24, 1")
    b("s_mul_i32 s39, s39, 40")
    b("s_add_u32 s38, s38, s39")
    b("v_lshlrev_b32 v11, 3, v3")
    b("v_add_u32 v11, s38, v11")
    b("v_and_b32 v12, 1, v3")
    b("v_mul_u32_u24 v12, 72, v12")
    b("v_add_u32 v12, 32, v12")
    b("s_cmp_eq_u32 s24, 4")
    b("s_cselect_b64 vcc, -1, 0")
    b("v_cndmask_b32 v11, v11, v12, vcc")
    b("v_add_u32 v10, v10, v11")
    b("v_add_u32 v11, %d, v10" % (9 * 4608))
    tr_reads(b, lambda j, h: (10, 4608 * j + 576 * h) if j < 9 else (11, 4608 * (j - 9) + 576 * h))
    centre(b)
    b("s_mul_i32 s36, s36, %d" % (4 * 72 * KB))
    b("s_add_u32 s36, s36, %d" % WQ_OFF)
    b("s_cmp_eq_u32 s24, 4")
    b("s_cbranch_scc1 L_k0_wqt")
    b("s_mul_i32 s38, s24, %d" % (72 * KB))
    b("s_lshl_b32 s39, s37, 10")
    b("s_add_u32 s36, s36, s38")
    b("s_add_u32 s36, s36, s39")
    b("s_branch L_k0_wqs")
    b("L_k0_wqt:")
    b("s_add_u32 s36, s36, %d" % (3 * KB))
    b("v_cmp_gt_u32 vcc, 8, v6")
    b("s_cmp_eq_u32 s37, 0")
    b("s_cbranch_scc1 L_k0_wqq")
    b("s_cmp_eq_u32 s37, 1")
    b("s_cbranch_scc1 L_k0_wqk")
    b("s_not_b64 vcc, vcc")
    b("L_k0_wqk:")
    b("s_mov_b64 exec, vcc")
    b("s_branch L_k0_wqs")
    b("L_k0_wqq:")
    b("s_add_u32 s36, s36, %d" % (72 * KB))
    for r in range(72):
        b("v_cndmask_b32 %s, v12, %s, vcc" % (vr(FR + r), vr(FR + r)))
    b("L_k0_wqs:")
    b("v_add_u32 v8, s36, v7")
    stores(b, 8, "0x1000")

    b("L_k0_fin:")
    stamp_end(b, cfg, 0, layered=False)
    b("L_k0_end:")
    b("s_endpgm")
    return b, [("k0_kernel", 96, 96)], [("k0_kernel", NWG0, 320, LDS0)]
```

```python
from asmlib import *
from layout import *
from common import *

XT = 18 * KB
HB = 72 * KB
BB = 144 * KB
LDS3 = 148 * KB

ACC, BIAS, RS, TMP, PK, ST, WR = 16, 64, 72, 76, 78, 84, 104
NB = 30


def xreg(j, m):
    n = 4 * j + m
    return ar(4 * n, 4) if n < 64 else vr(224 + 4 * (n - 64), 4)


def wreg(n):
    return vr(WR + 4 * (n % NB), 4)


class M:
    pass


def build_mfmas(cfg):
    G = cfg.get("G", 6)
    std = [list(range(k, min(k + G, 18))) for k in range(0, 18, G)]
    GD = cfg.get("GD", 4)
    dbl = [list(range(k, min(k + GD, 16))) for k in range(0, 16, GD)] + [[16, 17]]
    out = []

    def add(seg, aset, m, j, n, src):
        x = M()
        x.seg, x.aset, x.m, x.j, x.n, x.src = seg, aset, m, j, n, src
        out.append(x)

    for t in range(9):
        for grp in std:
            for m in range(4):
                for j in grp:
                    add(("p1", t), t % 2, m, j, 18 * t + j, "X")
    for grp in dbl:
        for m in range(4):
            for u in range(2):
                for j in grp:
                    add(("p2", u), 1 + u, m, j, w2_pos(u, j), "H")
    for u in range(2, 9):
        for grp in std:
            for m in range(4):
                for j in grp:
                    add(("p2", u), (1 + u) % 3, m, j, w2_pos(u, j), "H")
    return out


def wload(n):
    return "global_load_dwordx4 %s, v7, s[30:31] offset:%d" % (wreg(n), (n % 8) * KB - 4096)


ADV = ["s_add_u32 s30, s30, 0x2000", "s_addc_u32 s31, s31, 0"]


def mish_groups(t, m):
    a = ACC + 16 * (t % 2) + 4 * m
    bi = BIAS + 4 * (t % 2)
    G = []
    for p in (0, 2):
        x, y = a + p, a + p + 1
        G.append(["v_fma_f32 %s, %s, %s, %s" % (vr(x), vr(x), vr(RS + m), vr(bi + p)),
                  "v_fma_f32 %s, %s, %s, %s" % (vr(y), vr(y), vr(RS + m), vr(bi + p + 1))])
        G.append(["v_exp_f32 %s, %s" % (vr(TMP), vr(x))])
        G.append(["v_exp_f32 %s, %s" % (vr(TMP + 1), vr(y))])
        G.append(["v_fma_f32 %s, %s, s56, s56" % (vr(TMP + q), vr(TMP + q)) for q in range(2)])
        G.append(["v_fma_f32 %s, %s, %s, 0.5" % (vr(TMP + q), vr(TMP + q), vr(TMP + q)) for q in range(2)])
        G.append(["v_rcp_f32 %s, %s" % (vr(TMP), vr(TMP))])
        G.append(["v_rcp_f32 %s, %s" % (vr(TMP + 1), vr(TMP + 1))])
        G.append(["v_fma_f32 %s, -%s, %s, %s" % (vr(x), vr(x), vr(TMP), vr(x)),
                  "v_fma_f32 %s, -%s, %s, %s" % (vr(y), vr(y), vr(TMP + 1), vr(y))])
    pk = PK + 2 * (m & 1)
    G.append(["v_cvt_pk_bf16_f32 %s, %s, %s" % (vr(pk), vr(a), vr(a + 1)),
              "v_cvt_pk_bf16_f32 %s, %s, %s" % (vr(pk + 1), vr(a + 2), vr(a + 3))])
    base, off = (11, 8192 * t + KB * m) if t < 4 else (12, 8192 * (t - 4) + KB * m)
    G.append(["ds_write_b64 %s, %s offset:%d" % (vr(base), vr(pk, 2), off)])
    return G


def out_groups(cfg, u, h):
    a = ACC + 16 * ((1 + u) % 3) + 8 * h
    st = ST + 4 * ((2 * u + h) % 4)
    sp = 60 + 2 * (u % 2)
    G = []
    for q in range(2):
        G.append(["v_cvt_pk_bf16_f32 %s, %s, %s" % (vr(st + 2 * q + r), vr(a + 4 * q + 2 * r), vr(a + 4 * q + 2 * r + 1))
                  for r in range(2)])
    if not cfg.get("NOST"):
        G.append(["global_store_dwordx4 v7, %s, s[%d:%d] offset:%d%s" % (vr(st, 4), sp, sp + 1, h * KB, cfg.get("sc_part", " sc1"))])
    return G


def part_ptr(u):
    sp = 60 + 2 * (u % 2)
    if u == 0:
        return ["s_add_u32 s%d, s58, %d" % (sp, 32 * 16 * KB), "s_addc_u32 s%d, s59, 0" % (sp + 1)]
    return ["s_add_u32 s57, s26, %d" % u, "s_and_b32 s57, s57, 7", "s_lshl_b32 s57, s57, 16",
            "s_add_u32 s%d, s58, s57" % sp, "s_addc_u32 s%d, s59, 0" % (sp + 1)]


def assert_free(vq, i, reg):
    from asmlib import _regs
    r = _regs(reg)
    for e, g, tag, wt in vq:
        if e - 8 > i:
            break
        for t in g:
            p = parse(t)
            assert not (r & (p.r | p.w)), (i, reg, t)


def gen_k3(cfg):
    b = B()
    entry2(b, "k3")
    b("s_cmp_ge_u32 s2, 256")
    b("s_cbranch_scc1 L_k3_end")
    load_args(b)
    stamp(b, cfg, 0)
    b("v_and_b32 v1, 63, v0")
    b("v_lshrrev_b32 v2, 6, v0")
    b("v_lshrrev_b32 v5, 4, v1")
    b("v_readfirstlane_b32 s24, v2")
    b("v_lshlrev_b32 v7, 4, v1")
    b("v_lshlrev_b32 v6, 6, v1")
    decode_wg(b, cfg, 25, 26)
    b("s_lshl_b32 s36, s25, 12")
    b("s_add_u32 s36, s36, %d" % L_ST)
    b("s_lshl_b32 s27, s25, 2")
    b("s_add_u32 s27, s27, s24")
    b("s_mul_i32 s37, s27, %d" % XT)
    b("s_add_u32 s37, s37, %d" % L_X1)
    b("s_lshl_b32 s38, s26, 2")
    b("s_add_u32 s38, s38, s24")
    b("s_mul_i32 s38, s38, %d" % WM_STREAM)
    b("s_add_u32 s38, s38, %d" % (WM_OFF + 4096))
    b("s_mul_i32 s39, s26, 2304")
    b("s_lshl_b32 s46, s24, 10")
    b("s_add_u32 s39, s39, s46")
    b("s_add_u32 s39, s39, %d" % B1_OFF)
    b("s_add_u32 m0, s46, %d" % BB)
    b("s_mul_i32 s47, s24, %d" % XT)
    b("s_waitcnt lgkmcnt(0)")
    stamp(b, cfg, 5)
    layer_ptrs(b, lws=48)
    add64(b, 34, 48, "s36")
    add64(b, 50, 22, "s39")
    add64(b, 32, 48, "s37")
    add64(b, 30, 22, "s38")
    SV = ACC + 16
    for q in range(4):
        b("global_load_dwordx4 %s, v6, s[34:35] offset:%d" % (vr(SV + 4 * q, 4), 16 * q), vm="st")
    b("global_load_lds_dwordx4 v7, s[50:51]", vm="xA")
    b("s_mov_b32 m0, s47")

    def xdma(js, tag):
        for j in js:
            if j % 4 == 0 and j:
                b("s_add_u32 m0, m0, 0x1000")
                b("s_add_u32 s32, s32, 0x1000")
                b("s_addc_u32 s33, s33, 0")
            elif j == 0:
                b("s_nop 0")
            b("global_load_lds_dwordx4 v7, s[32:33] offset:%d" % ((j % 4) * KB), vm=tag)

    def wnow(ns):
        for n in ns:
            b(wload(n), vm=("W", n))
            if n % 8 == 7:
                for t in ADV: b(t)

    xdma(range(0, 6), "xA")
    wnow(range(0, 6))
    xdma(range(6, 12), "xB")
    wnow(range(6, 12))
    xdma(range(12, 18), "xC")
    wnow(range(12, NB))

    stamp(b, cfg, 6)
    b("v_add_u32 v8, %d, v7" % (2 * XT))
    b("v_add_u32 v9, %d, v7" % HB)
    b("v_add_u32 v10, %d, v7" % (HB + 32768))
    b("s_lshr_b32 s46, s24, 1")
    b("s_lshl_b32 s46, s46, 12")
    b("s_and_b32 s47, s24, 1")
    b("s_lshl_b32 s47, s47, 3")
    b("s_add_u32 s46, s46, s47")
    b("v_add_u32 v11, s46, v9")
    b("v_add_u32 v12, s46, v10")
    b("s_lshl_b32 s46, s24, 6")
    b("s_add_u32 s46, s46, %d" % BB)
    b("v_lshlrev_b32 v13, 4, v5")
    b("v_add_u32 v13, s46, v13")
    b("s_mov_b32 s56, 0x%08x" % f32(0.5 ** 0.5))
    b("s_mul_i32 s46, s26, 2304")
    b("s_lshl_b32 s47, s24, 6")
    b("s_add_u32 s46, s46, s47")
    b("s_add_u32 s46, s46, %d" % B1_OFF)
    b("v_lshlrev_b32 v14, 4, v5")
    b("v_add_u32 v14, s46, v14")
    b("s_and_b32 s46, s25, 7")
    b("s_lshl_b32 s46, s46, 7")
    b("s_add_u32 s46, s46, s38")
    b("s_sub_u32 s46, s46, 4096")
    add64(b, 64, 22, "s46")
    b("v_lshlrev_b32 v4, 10, v1")
    b("v_add_u32 v4, %d, v4" % (NB * KB))
    if cfg.get("TOUCH2"):
        b("s_and_b32 s67, s25, 7")
        b("s_lshl_b32 s46, s67, 13")
        b("s_add_u32 s46, s46, s38")
        b("s_add_u32 s46, s46, %d" % (32 * KB - 4096))
        b("v_lshlrev_b32 v4, 7, v1")
        b("v_add_u32 v4, s46, v4")
    b("s_mul_i32 s46, s25, %d" % (36 * 16 * KB))
    b("s_lshl_b32 s47, s26, 11")
    b("s_add_u32 s46, s46, s47")
    b("s_lshl_b32 s47, s24, 14")
    b("s_add_u32 s46, s46, s47")
    b("s_add_u32 s46, s46, %d" % L_PART)
    add64(b, 58, 48, "s46")
    b.wait(vm="st")
    for step in (8, 4, 2):
        for q in range(step):
            b("v_add_f32 %s, %s, %s" % (vr(SV + q), vr(SV + q), vr(SV + q + step)))
    b("v_mul_f32 %s, 0x%08x, %s" % (vr(SV), f32(1.0 / 576), vr(SV)))
    b("v_mul_f32 %s, 0x%08x, %s" % (vr(SV + 1), f32(1.0 / 576), vr(SV + 1)))
    b("v_fma_f32 %s, -%s, %s, %s" % (vr(SV), vr(SV), vr(SV), vr(SV + 1)))
    b("v_max_f32 %s, 0, %s" % (vr(SV), vr(SV)))
    b("v_add_f32 %s, 0x%08x, %s" % (vr(SV), f32(1e-5), vr(SV)))
    b("v_rsq_f32 %s, %s" % (vr(SV), vr(SV)))
    b("s_nop 0")
    b("v_mul_f32 %s, 0x%08x, %s" % (vr(RS), f32(LOG2E), vr(SV)))
    b("v_mov_b32 %s, %s" % (vr(RS + 1), vr(RS)))
    b("s_nop 1")
    b("v_permlane16_swap_b32 %s, %s" % (vr(RS), vr(RS + 1)))
    b("s_nop 0")
    b("v_mov_b32 %s, %s" % (vr(RS + 2), vr(RS)))
    b("v_mov_b32 %s, %s" % (vr(RS + 3), vr(RS + 1)))
    b("s_nop 1")
    b("v_permlane32_swap_b32 %s, %s" % (vr(RS), vr(RS + 2)))
    b("v_permlane32_swap_b32 %s, %s" % (vr(RS + 1), vr(RS + 3)))

    mf = build_mfmas(cfg)
    N = len(mf)
    first_w, last_w, first_b, last_acc, last_x = {}, {}, {}, {}, {}
    for i, x in enumerate(mf):
        first_w.setdefault(x.n, i)
        last_w[x.n] = i
        first_b.setdefault((x.src, x.j, x.m), i)
        last_acc[(x.seg, x.m)] = i
        if x.src == "X":
            last_x[(x.j, x.m)] = i
    seg_start = {}
    for i, x in enumerate(mf):
        seg_start.setdefault(x.seg, i)

    def bread(src, j, m):
        if src == "X":
            base, off = (7, m * XT + j * KB) if m < 2 else (8, (m - 2) * XT + j * KB)
        else:
            base, off = (9, 4096 * j + KB * m) if j < 8 else (10, 4096 * (j - 8) + KB * m)
        return "ds_read_b128 %s, %s offset:%d" % (xreg(j, m), vr(base), off)

    def stage(src, j):
        if src == "X":
            return "xA" if j < 6 else "xB" if j < 12 else "xC"
        return "hA" if j < 14 else "hB" if j < 16 else "hC"

    LA = cfg.get("LA", 12)
    dq = sorted(first_b, key=lambda k: first_b[k])
    vq = []
    for t in range(9):
        for m in range(4):
            gs = mish_groups(t, m)
            for n, g in enumerate(gs):
                vq.append((last_acc[(("p1", t), m)] + 4, g, ("hw", t) if n == len(gs) - 1 else None,
                           ("bias", t) if (m == 0 and n == 0) else None))
    for u in range(9):
        for h in range(2):
            for g in out_groups(cfg, u, h):
                vq.append((last_acc[(("p2", u), 2 * h + 1)] + 8, g, None, None))
    hw_left = {t: 4 for t in range(9)}
    done = set()
    sq = []
    nextw = NB
    last_load = -4
    bias_next = 0
    ptr_next = 0
    sq_age = 0
    P2 = seg_start[("p2", 0)]
    drain_n0 = {}
    pfq = []
    touch_next = 0

    def ensure_stage(sg):
        if sg in done:
            return True
        if sg[0] == "x":
            b.wait(vm=sg)
        else:
            t = {"hA": 6, "hB": 7, "hC": 8}[sg]
            if hw_left[t]:
                return False
            b.wait(lg=[("hw", tt) for tt in range(t + 1)])
        b("s_barrier")
        done.add(sg)
        return True

    ensure_stage("xA")
    stamp(b, cfg, 1)
    while first_b[dq[0]] < LA:
        k = dq.pop(0)
        b(bread(*k), lg=k)
    for i, x in enumerate(mf):
        if i == 0:
            b.wait(vm=[("W", x.n)], lg=[(x.src, x.j, x.m)])
        if "TR" in cfg:
            if i % 72 == 0 and 0 <= i // 72 - cfg["TR"] < 6:
                b("s_memtime s[%d:%d]" % (82 + 2 * (i // 72 - cfg["TR"]), 83 + 2 * (i // 72 - cfg["TR"])))
        elif x.seg == ("p2", 0) and i == seg_start[x.seg]:
            stamp(b, cfg, 2)
        a = vr(ACC + 16 * x.aset + 4 * x.m, 4)
        if x.j == 0:
            assert_free(vq, i, a)
        b("v_mfma_f32_16x16x32_bf16 %s, %s, %s, %s" % (a, wreg(x.n), xreg(x.j, x.m), a if x.j else "0"))
        used = False
        budget = 2
        if i + 1 < N:
            y = mf[i + 1]
            ky = (y.src, y.j, y.m)
            while ky in dq:
                while not ensure_stage(stage(dq[0][0], dq[0][1])):
                    e, g, tag, wt = vq.pop(0)
                    assert e <= i
                    if wt: b.wait(vm=[wt], lg=[wt])
                    for t in g: b(t, lg=tag)
                    if tag: hw_left[tag[1]] -= 1
                k = dq.pop(0)
                b(bread(*k), lg=k)
                cfg.setdefault("_late", []).append((i, k))
            assert y.n < nextw
            wl = [ky]
            if vq and vq[0][0] <= i and vq[0][3]:
                wl.append(vq[0][3])
            wv = []
            if b.pending(vm=[("W", y.n)]):
                wv = [("W", z.n) for z in mf[i + 1:i + 1 + cfg.get("WGRAN", 3)]]
                assert all(t[1] < nextw for t in wv)
            used = b.wait(vm=wv + wl, lg=wl)
        if ptr_next < 9 and not sq and i >= seg_start[("p2", ptr_next)] + (40 if ptr_next >= 2 else 0):
            assert_free(vq, i, sr(60 + 2 * (ptr_next % 2), 2))
            sq += part_ptr(ptr_next)
            ptr_next += 1
        sq_age = sq_age + 1 if sq else 0
        if sq and (not used or sq_age > 1):
            b(sq.pop(0))
            sq_age = 0
        paced = True
        if cfg.get("DRAIN") and nextw < 324 and i >= P2:
            n0 = drain_n0.setdefault(0, nextw)
            paced = (i - P2) * (324 - n0) >= (nextw - n0) * (first_w[323] - cfg["DRAIN"] - P2)
        if nextw < 324 and paced and i >= last_w[nextw - NB] and i - last_load >= cfg.get("LDGAP", 3) and not any(t in ADV for t in sq):
            b(wload(nextw), vm=("W", nextw))
            if cfg.get("PF"):
                pfq.append(nextw + cfg["PF"])
            if nextw % 8 == 7:
                sq += ADV
            nextw += 1
            last_load = i
            if x.seg[0] == "p2" or x.seg == ("p1", 0):
                budget -= 1
        if cfg.get("PF") and pfq and not used and (72 <= i < P2 - 60 or i >= P2 + 144):
            for rep in range(1):
                n = pfq.pop(0)
                if n < 324: b("s_load_dword s66, s[64:65], %d" % (n * KB))
        if cfg.get("TOUCH") and touch_next * cfg["TOUCH"] + NB < 324 and nextw + cfg.get("TLEAD", 20) >= touch_next * cfg["TOUCH"] + NB + cfg["TOUCH"] * 0 and i % 4 == 1:
            n = min(cfg["TOUCH"], 324 - NB - touch_next * cfg["TOUCH"])
            b("s_mov_b64 exec, 0x%x" % ((1 << n) - 1) if n <= 31 else "s_mov_b32 exec_hi, 0x%x" % ((1 << (n - 32)) - 1))
            b("global_load_dword v15, v4, s[64:65]")
            b("s_mov_b64 exec, -1")
            b("v_add_u32 v4, %d, v4" % (cfg["TOUCH"] * KB))
            touch_next += 1
        if cfg.get("TOUCH2") and touch_next * 8 + 32 < 324 and nextw + cfg["TOUCH2"] >= touch_next * 8 + 32 and not sq and not used and i - last_load == 1:
            b("s_cmp_lg_u32 s67, %d" % (touch_next % 8))
            b("s_cbranch_scc1 L_k3_t%d" % touch_next)
            b.L.append("global_load_dword v15, v4, s[22:23]")
            b("v_add_u32 v4, 0x10000, v4")
            b("L_k3_t%d:" % touch_next)
            touch_next += 1
        if cfg.get("BIASV"):
            if bias_next < 9 and i >= seg_start[("p1", bias_next)] - 10:
                assert_free(vq, i, vr(BIAS + 4 * (bias_next % 2), 4))
                b("global_load_dwordx4 %s, v14, s[22:23] offset:%d" % (vr(BIAS + 4 * (bias_next % 2), 4), 256 * bias_next), vm=("bias", bias_next))
                bias_next += 1
        elif bias_next < 9 and i >= seg_start[("p1", bias_next)] + 30:
            assert_free(vq, i, vr(BIAS + 4 * (bias_next % 2), 4))
            b("ds_read_b128 %s, v13 offset:%d" % (vr(BIAS + 4 * (bias_next % 2), 4), 256 * bias_next), lg=("bias", bias_next))
            bias_next += 1
        nd = 0
        while dq and budget > 0 and first_b[dq[0]] <= i + LA + (12 if budget == 1 and x.seg[0] == "p2" else 0):
            k = dq[0]
            if k[0] == "H" and last_x[(k[1], k[2])] > i:
                break
            if not ensure_stage(stage(k[0], k[1])):
                break
            dq.pop(0)
            b(bread(*k), lg=k)
            budget -= 1
            nd += 1
        if vq and vq[0][0] <= i and (budget == 2 or (x.seg[0] == "p1" and x.seg[1] > 0)):
            e, g, tag, wt = vq.pop(0)
            if wt: b.wait(vm=[wt], lg=[wt])
            for t in g: b(t, lg=tag)
            if tag: hw_left[tag[1]] -= 1
    if "TR" not in cfg:
        stamp(b, cfg, 3)
    elif cfg["TR"] == 13:
        b("s_memtime s[92:93]")
    assert not dq and not sq and nextw == 324
    b("s_nop 7")
    for e, g, tag, wt in vq:
        for t in g: b(t)
    stamp_end(b, cfg, 3)
    b("L_k3_end:")
    b("s_endpgm")
    return b, [("k3a_kernel", 512, 256), ("k3b_kernel", 512, 256)], LDS3
```

```python
S, D, F = 2048, 576, 4608
KB = 1024
ACT = S * D * 2

WQ_OFF = 0
WQ_SZ = 8 * 4 * 18 * 4 * KB
WO_OFF = WQ_OFF + WQ_SZ
WO_CG = 92 * KB
WO_SZ = 8 * WO_CG
WM_OFF = WO_OFF + WO_SZ
WM_STREAM = 324 * KB
WM_SZ = 32 * WM_STREAM
B1_OFF = WM_OFF + WM_SZ
B1_SZ = 20 * KB
X2_OFF = B1_OFF + B1_SZ
FLAG_OFF = X2_OFF + ACT
FLAG_SZ = 1024 * KB
LAYER_OFF = FLAG_OFF + FLAG_SZ
L_O = 0
L_X1 = L_O + ACT
L_ST = L_X1 + ACT
L_OT = L_ST + S * 64
L_PART = L_OT + S * 128
PART_SZ = 32 * 36 * 16 * KB
LAYER_SZ = L_PART + PART_SZ
STAMP_OFF = LAYER_OFF + 2 * LAYER_SZ
STAMP_K = 64 * KB

LOG2E = 1.4426950408889634
LN2 = 0.6931471805599453
MAINSTART = [0, 20, 36, 56]
TAILCOL = [16, 17, 18, 19, 52, 53, 54, 55]


def pi_nat(j, g, e):
    return 32 * j + 8 * g + e


def pi_blk(j, g, e):
    return 32 * j + 16 * (e >> 2) + 4 * g + (e & 3)


def pi_1(j, g, e):
    return pi_blk(j, g, e) if j < 16 else pi_nat(j, g, e)


def pi_o(j, g, e):
    if j < 16:
        return 36 * j + 20 * (g >> 1) + 8 * (g & 1) + e
    return 72 * (4 * (j - 16) + g) + TAILCOL[e]


def w2_dtile(s, w, u):
    return 32 + w if u == 0 else 4 * ((s + u) % 8) + w


def w2_pos(u, j):
    return 162 + (2 * j + u if u < 2 else 18 * u + j)


FL_LAYER = 192 * KB
FL_C1, FL_C2, FL_C3, FL_P = 0, 8 * KB, 16 * KB, 32 * KB
FL_CQ, FL_CW, FL_CO = 160 * KB, 164 * KB, 168 * KB
FL_USED = 2 * FL_LAYER
```

```python
from asmlib import *
from asmlib import _regs
from layout import *
from common import *

XT = 18 * KB
LDSM = 144 * KB
SPIN = 1 << 21

SB = 5 * XT
QO, KO, VO = 0, 80 * 144, 160 * 144
SUMO = 240 * 144
SSQO = SUMO + 320
RSO = SSQO + 320
ACC_Q, ACC_K, ACC_V, ACC_E = 16, 32, 52, 72
XB, NXB = 92, 3
RES = 244
OACC, OF, OWB = 16, 48, 120
HB = 72 * KB
ACC, BIAS, RS, TMP, PK, ST = 16, 64, 72, 76, 78, 84
SEL, MRES, P9, A9 = 64, 72, 84, 92
NB = 30
MADV = ["s_add_u32 s30, s30, 0x1800", "s_addc_u32 s31, s31, 0"]
QADV = ["s_add_u32 s30, s30, 0x2000", "s_addc_u32 s31, s31, 0"]
MFMA = "v_mfma_f32_16x16x32_bf16 %s, %s, %s, %s"


def is_scalar(t):
    return t.startswith("s_")


class Lab:
    n = 0


def lab(stem):
    Lab.n += 1
    return "L_%s_%d" % (stem, Lab.n)


def sync(b, cfg, cnt, tag, shadow, idle_work, nbr=False):
    other, done, poll = lab("sy_o"), lab("sy_d"), lab("sy_p")
    b("s_lshl_b32 s40, s25, 8")
    b("s_add_u32 s40, s40, %d" % cnt)
    b("v_mov_b32 v2, s40")
    if nbr:
        b("s_cmp_eq_u32 s25, 0")
        b("s_cselect_b32 s41, 0, 256")
        b("v_mul_u32_u24 v3, s41, v1")
        b("v_sub_u32 v2, v2, v3")
    b("v_mov_b32 v3, 1")
    b.wait(vm=tag)
    b.wait_all(vm=False)
    b("s_barrier")
    b("s_cmp_lg_u32 s24, 0")
    b("s_cbranch_scc1 %s" % other)
    g = b.fork()
    g("s_mov_b64 exec, 1")
    g("global_atomic_add v4, v2, v3, s[68:69] sc0 sc1", vm="atom")
    g("s_mov_b64 exec, -1")
    g("s_mov_b32 s70, s68")
    g("s_mov_b32 s71, s69")
    idle_work(g)
    shadow(g)
    g.wait(vm="atom")
    if not nbr:
        g("v_readfirstlane_b32 s40, v4")
        g("s_cmp_eq_u32 s40, 7")
        g("s_cbranch_scc1 %s" % done)
    g("s_mov_b64 exec, %d" % (3 if nbr else 1))
    g("s_mov_b32 s41, 0")
    g("%s:" % poll)
    g.L.append("global_load_dword v4, v2, s[70:71] sc1")
    g("s_add_u32 s41, s41, 1")
    g("s_cmp_gt_u32 s41, %d" % SPIN)
    g("s_cbranch_scc1 %s" % done)
    g("s_waitcnt vmcnt(0)")
    g("v_cmp_ne_u32 vcc, 8, v4")
    g("s_cbranch_vccnz %s" % poll)
    g("s_branch %s" % done)
    b.extend(g)
    b("%s:" % other)
    idle_work(b)
    shadow(b)
    b("%s:" % done)
    b("s_mov_b64 exec, -1")
    b("s_barrier")


def qw(j, s):
    n = 4 * j + s
    return ar(4 * n, 4) if n < 64 else vr(224 + 4 * (n - 64), 4)


def qx(j, m):
    return vr(XB + 20 * (j % NXB) + 4 * m, 4)


def qw_load(j, s):
    return "global_load_dwordx4 %s, v7, s[30:31] offset:%d" % (qw(j, s), (j & 1) * 4096 - 4096 + 1024 * s)


def qw_base(b):
    b("s_lshl_b32 s46, s26, 2")
    b("s_add_u32 s46, s46, s24")
    b("s_mul_i32 s46, s46, %d" % (72 * KB))
    b("s_add_u32 s46, s46, %d" % (WQ_OFF + 4096))
    add64(b, 30, 22, "s46")


def qw_pre(b, js):
    for j in js:
        for s in range(3):
            b(qw_load(j, s), vm="pre")
        skip = lab("qp")
        b("s_cmp_ge_u32 s24, 2")
        b("s_cbranch_scc1 %s" % skip)
        b.L.append(qw_load(j, 3))
        b("%s:" % skip)
        if j & 1:
            for t in QADV: b(t)


def q_setup(b, layer):
    b("s_mov_b32 s3, %d" % layer)
    add64(b, 48, 22, LAYER_OFF + layer * LAYER_SZ)
    add64(b, 68, 22, FLAG_OFF + layer * FL_LAYER)
    ks = 64 if layer == 0 else 1024
    b("s_mov_b32 s38, %d" % ks)
    b("s_mov_b32 s39, %d" % (4 * ks))
    b("s_mul_i32 s42, s27, %d" % XT)
    b("s_lshl_b32 s43, s25, 2")
    b("s_max_u32 s43, s43, 1")
    b("s_sub_u32 s43, s43, 1")
    b("s_mul_i32 s43, s43, %d" % XT)
    b("s_mul_i32 s44, s24, %d" % ks)
    b("s_add_u32 s43, s43, s44")
    if layer == 0:
        add64(b, 32, 4, "s42")
        add64(b, 34, 4, "s43")
    else:
        b("s_add_u32 s42, s42, %d" % X2_OFF)
        b("s_add_u32 s43, s43, %d" % X2_OFF)
        add64(b, 32, 22, "s42")
        add64(b, 34, 22, "s43")
    b("s_add_u32 s36, s24, 1")
    b("s_mul_i32 s36, s36, %d" % XT)
    b("s_lshl_b32 s37, s24, 10")
    b("v_lshrrev_b32 v13, 1, v5")
    b("v_add_u32 v14, 2, v13")
    b("s_and_b32 s44, s26, 3")
    b("v_mov_b32 v15, s44")
    if layer == 0:
        b("v_lshrrev_b32 v8, 2, v1")
        b("v_mul_u32_u24 v8, 1152, v8")
        b("v_lshrrev_b32 v9, 5, v1")
        b("v_lshlrev_b32 v9, 1, v9")
        b("v_and_b32 v10, 3, v1")
        b("v_xor_b32 v9, v9, v10")
        b("v_lshl_add_u32 v8, v9, 4, v8")
        b("v_lshrrev_b32 v10, 3, v6")
        b("v_lshlrev_b32 v10, 1, v10")
        b("v_xor_b32 v9, v10, v5")
        for r in (13, 14, 15):
            b("v_xor_b32 v%d, v10, v%d" % (r, r))
        for r in (9, 13, 14, 15):
            b("v_lshl_add_u32 v%d, v6, 2, v%d" % (r, r))
    else:
        b("v_mov_b32 v8, v7")
        b("v_mov_b32 v9, v1")
        for r in (13, 14, 15):
            b("v_lshl_add_u32 v%d, v%d, 4, v6" % (r, r))
    b("v_lshlrev_b32 v9, 4, v9")
    b("v_add_u32 v10, %d, v9" % (3 * XT))
    b("v_and_b32 v11, 1, v5")
    b("v_lshlrev_b32 v11, 3, v11")
    b("s_lshl_b32 s44, s26, 11")
    b("s_add_u32 s44, s44, s36")
    b("s_lshr_b32 s45, s26, 2")
    b("s_lshl_b32 s45, s45, 10")
    b("s_add_u32 s45, s45, s36")
    b("s_add_u32 s45, s45, %d" % (16 * KB))
    for r, s in ((13, 44), (14, 44), (15, 45)):
        b("v_lshl_add_u32 v%d, v%d, 4, v11" % (r, r))
        b("v_add_u32 v%d, s%d, v%d" % (r, s, r))
    b("v_mul_u32_u24 v11, 144, v6")
    b("v_lshl_add_u32 v12, v5, 3, v11")
    b("s_lshl_b32 s47, s24, 5")
    b("s_add_u32 s47, s47, %d" % SB)
    b("v_add_u32 v11, s47, v12")


def x_items(js, qs, tag):
    out = []
    for j in js:
        out += [("s_mov_b32 m0, s36", None), ("s_add_u32 s36, s36, 0x400", None),
                ("global_load_lds_dwordx4 v8, s[32:33] sc1", tag),
                ("s_add_u32 s32, s32, s38", None), ("s_addc_u32 s33, s33, 0", None)]
    for q in qs:
        if q == 4:
            out += [("s_and_b32 s40, s24, 2", None), ("s_mul_i32 s41, s40, s38", None),
                    ("s_sub_u32 s34, s34, s41", None), ("s_subb_u32 s35, s35, 0", None),
                    ("s_lshl_b32 s41, s40, 10", None), ("s_sub_u32 s37, s37, s41", None)]
        out += [("s_mov_b32 m0, s37", None), ("s_add_u32 s37, s37, 0x1000", None),
                ("global_load_lds_dwordx4 v8, s[34:35] sc1", tag),
                ("s_add_u32 s34, s34, s39", None), ("s_addc_u32 s35, s35, 0", None)]
    return out


def qx_read(j, m):
    base, off = (9, m * XT + j * KB) if m < 3 else (10, (m - 3) * XT + j * KB)
    return "ds_read_b128 %s, %s offset:%d" % (qx(j, m), vr(base), off)


def q_gemm(b, cfg, kind):
    ns = 4 if kind == 0 else 3
    P = sum(cfg["WQP"])

    def w_items(js):
        out = []
        for j in js:
            out += [(qw_load(j, s), ("W", j)) for s in range(ns)]
            if j & 1:
                out += [(t, None) for t in QADV]
        return out

    xc_at = max(P, cfg.get("QXC", 7))
    q = w_items(range(P, xc_at)) + x_items(range(12, 18), (3, 4), "xC") + w_items(range(xc_at, 18))
    nun = {0: 19, 1: 19, 2: 14}[kind]
    nvm = sum(1 for t, tag in q if tag)
    span = (18 - cfg.get("QLEAD", 3)) * nun
    issued = 0
    gap = 0
    for j in range(2):
        for m in range(5):
            b(qx_read(j, m), lg=("X", j))
    for j in range(18):
        reads = [qx_read(j + 2, m) for m in range(5)] if j + 2 < 18 else []
        need = [("W", j)] + (["xC"] if j == 9 else [])
        while any(tag in need for t, tag in q):
            t, tag = q.pop(0)
            b(t, vm=tag)
            issued += 1 if tag else 0
            cfg.setdefault("_late", []).append(("q", kind, j))
        b.wait(vm=need + (["xB"] if j == 3 else []), lg=[("X", j)])
        if j in (3, 9):
            b("s_barrier")
        units = [(ACC_K + 4 * m, qw(j, 1), m) for m in range(5)]
        units += [(ACC_V + 4 * m, qw(j, 2), m) for m in range(5)]
        units += [(ACC_Q + 4 * (m - 1), qw(j, 0), m) for m in range(1, 5)]
        if kind == 0:
            units += [(ACC_E + 4 * m, qw(j, 3), m) for m in range(5)]
        elif kind == 1:
            units += [(ACC_E + 4 * m, qx(j, m), m) for m in range(5)]
        for acc, a, m in units:
            b(MFMA % (vr(acc, 4), a, qx(j, m), vr(acc, 4) if j else "0"))
            slots = 3
            if reads:
                if q and is_scalar(q[0][0]):
                    b(q.pop(0)[0])
                b(reads.pop(0), lg=("X", j + 2))
                slots = 1
            while q and slots:
                t, tag = q[0]
                if tag and issued * span > gap * nvm:
                    break
                q.pop(0)
                b(t, vm=tag)
                issued += 1 if tag else 0
                slots -= 1
            gap += 1
    assert not q
    stamp(b, cfg, 2)
    for t in range(4):
        b("ds_read_b64 %s, v%d offset:%d" % (vr(RES + 2 * t, 2), 13 + (t & 1), (t >> 1) * KB))
    b("ds_read_b64 %s, v15" % vr(RES + 8, 2))
    b("s_nop 2")


def pack_write(b, acc, addr, off, t):
    b("v_cvt_pk_bf16_f32 %s, %s, %s" % (vr(t), vr(acc), vr(acc + 1)))
    b("v_cvt_pk_bf16_f32 %s, %s, %s" % (vr(t + 1), vr(acc + 2), vr(acc + 3)))
    b("ds_write_b64 %s, %s offset:%d" % (vr(addr), vr(t, 2), off))


def main_writes(b):
    n = 0
    for acc, reg, ms in ((ACC_K, KO, range(5)), (ACC_V, VO, range(5)), (ACC_Q - 4, QO, range(1, 5))):
        for m in ms:
            pack_write(b, acc + 4 * m, 11, reg + 2304 * m, XB + 2 * (n % 8))
            n += 1


class Ring:
    def __init__(self):
        self.n = 0

    def load(self, b, cnt, commit=True):
        for n in range(self.n, self.n + cnt):
            b(mw_load(n), vm="pre")
            if n % 6 == 5:
                for t in MADV: b(t)
        if commit:
            self.n += cnt


def phase_q(b, cfg, ring):
    for t, tag in x_items(range(0, 6), (0, 1), "xA") + x_items(range(6, 12), (2,), "xB"):
        b(t, vm=tag)
    b.wait(vm="xA")
    b("s_barrier")
    stamp(b, cfg, 1)
    b("s_cmp_eq_u32 s24, 2")
    b("s_cbranch_scc1 L_q_w2")
    b("s_cmp_eq_u32 s24, 3")
    b("s_cbranch_scc1 L_q_w3")

    g = b.fork()
    q_gemm(g, cfg, 0)
    main_writes(g)
    g("s_cmp_eq_u32 s24, 1")
    g("s_cbranch_scc1 L_q_e1")
    g("v_lshrrev_b32 v3, 1, v5")
    g("v_mul_u32_u24 v3, %d, v3" % (VO - KO - 16))
    g("v_add_u32 v3, v3, v12")
    g("v_add_u32 v3, %d, v3" % (SB + KO + 128))
    for m in range(5):
        pack_write(g, ACC_E + 4 * m, 3, 2304 * m, XB + 16 + 2 * m)
    g("s_branch L_q_att")
    g("L_q_e1:")
    g("v_add_u32 v3, %d, v12" % (SB + QO + 128))
    g("v_lshlrev_b32 v4, 2, v6")
    g("v_add_u32 v4, %d, v4" % (SB + SUMO))
    g("s_mov_b32 exec_lo, 0")
    g("s_mov_b32 exec_hi, 0x0000ffff")
    for m in range(5):
        g("ds_write_b32 v4, %s offset:%d" % (vr(ACC_E + 4 * m), 64 * m))
    g("s_mov_b32 exec_lo, -1")
    g("s_mov_b32 exec_hi, 0")
    for m in range(1, 5):
        pack_write(g, ACC_E + 4 * m, 3, 2304 * m, XB + 16 + 2 * m)
    g("s_mov_b64 exec, -1")
    g("s_branch L_q_att")
    b.extend(g)

    b("L_q_w2:")
    g = b.fork()
    q_gemm(g, cfg, 1)
    main_writes(g)
    g("v_and_b32 v3, 3, v6")
    g("v_cmp_eq_u32 s[50:51], 1, v3")
    g("v_cmp_eq_u32 s[52:53], 2, v3")
    g("v_cmp_eq_u32 s[54:55], 3, v3")
    g("v_lshlrev_b32 v4, 2, v6")
    g("v_add_u32 v4, %d, v4" % (SB + SSQO))
    for m in range(5):
        a = ACC_E + 4 * m
        for r in range(1, 4):
            g("v_cndmask_b32 %s, %s, %s, s[%d:%d]" % (vr(a), vr(a), vr(a + r), 48 + 2 * r, 49 + 2 * r))
    g("s_mov_b32 exec_lo, 0x00f0000f")
    g("s_mov_b32 exec_hi, 0xf0000f00")
    for m in range(5):
        g("ds_write_b32 v4, %s offset:%d" % (vr(ACC_E + 4 * m), 64 * m))
    g("s_mov_b64 exec, -1")
    g("s_branch L_q_att")
    b.extend(g)

    b("L_q_w3:")
    g = b.fork()
    q_gemm(g, cfg, 2)
    main_writes(g)
    b.extend(g)

    b("L_q_att:")
    b.vmq, b.lgq = [], []
    Q, KR, VR, Z, RSV, O, SL = 16, 28, 124, 220, 228, 28, 46
    b("v_add_u32 v3, 2, v1")
    b("v_mul_u32_u24 v12, 144, v3")
    b("v_add_u32 v13, s47, v12")
    b("s_lshl_b32 s46, s24, 2")
    b("s_add_u32 s46, s46, %d" % (SB + 128))
    b("v_add_u32 v14, s46, v12")
    b("v_lshlrev_b32 v2, 2, v1")
    b("v_add_u32 v2, %d, v2" % SB)
    b("v_lshlrev_b32 v4, 2, v6")
    b("v_add_u32 v4, %d, v4" % SB)
    b("s_mul_i32 s40, s26, %d" % WO_CG)
    b("s_lshl_b32 s41, s24, 10")
    b("s_add_u32 s40, s40, s41")
    b("s_add_u32 s40, s40, %d" % WO_OFF)
    add64(b, 32, 22, "s40")
    b("s_mov_b32 m0, s41")
    b("s_lshl_b32 s40, s26, 2")
    b("s_add_u32 s40, s40, s24")
    b("s_mul_i32 s40, s40, %d" % WM_STREAM)
    b("s_add_u32 s40, s40, %d" % (WM_OFF + 3072))
    add64(b, 30, 22, "s40")
    b.wait_all(vm=False)
    b("s_barrier")
    stamp(b, cfg, 3)

    bgq = [("wo", q) for q in range(23)] + [("ring", 0)] * cfg["RING"][0]

    def bg(n=1):
        for _ in range(n):
            if not bgq:
                return
            k, q = bgq.pop(0)
            if k == "ring":
                ring.load(b, 1)
            elif q < 22:
                b("global_load_lds_dwordx4 v7, s[32:33]", vm="pre")
                b("s_add_u32 m0, m0, 0x1000")
                b("s_add_u32 s32, s32, 0x1000")
                b("s_addc_u32 s33, s33, 0")
            else:
                b("s_cmp_ge_u32 s24, 2")
                b("s_cbranch_scc1 L_q_wo_skip")
                b.L.append("global_load_lds_dwordx4 v7, s[32:33]")
                b("L_q_wo_skip:")

    b("ds_read_b32 v236, v2 offset:%d" % (SUMO + 64), lg="st")
    b("ds_read_b32 v237, v2 offset:%d" % (SSQO + 64), lg="st")
    b("ds_read_b32 v238, v4 offset:%d" % SUMO, lg="st")
    b("ds_read_b32 v239, v4 offset:%d" % SSQO, lg="st")

    def row(dst, reg, w, tag):
        off = reg + 288 * (7 - w)
        b("ds_read_b128 %s, v13 offset:%d" % (vr(dst, 4), off), lg=tag)
        b("ds_read_b128 %s, v13 offset:%d" % (vr(dst + 4, 4), off + 16), lg=tag)
        b("ds_read_b32 %s, v14 offset:%d" % (vr(dst + 8), off), lg=tag)

    row(Q, QO, 0, "q")
    row(KR, KO, 0, ("k", 0))
    row(KR + 12, KO, 1, ("k", 1))
    bg(2)
    b.wait(lg="st")
    for t in (236, 238):
        b("v_mul_f32 %s, 0x%08x, %s" % (vr(t), f32(1.0 / 576), vr(t)))
        b("v_mul_f32 %s, 0x%08x, %s" % (vr(t + 1), f32(1.0 / 576), vr(t + 1)))
        b("v_fma_f32 %s, -%s, %s, %s" % (vr(t), vr(t), vr(t), vr(t + 1)))
        b("v_max_f32 %s, 0, %s" % (vr(t), vr(t)))
        b("v_add_f32 %s, 0x%08x, %s" % (vr(t), f32(1e-5), vr(t)))
        b("v_rsq_f32 %s, %s" % (vr(t), vr(t)))
    bg()
    b("ds_write_b32 v2, v236 offset:%d" % (RSO + 64))
    b("ds_write_b32 v4, v238 offset:%d" % RSO)
    b("v_add_u32 v3, %d, v2" % (RSO + 8))
    for w in range(0, 8, 2):
        b("ds_read2_b32 %s, v3 offset0:%d offset1:%d" % (vr(RSV + w, 2), 2 * (7 - w), 2 * (6 - w)), lg="rs")
    for w in range(8):
        b("v_mov_b32 %s, 0" % vr(Z + w))
    for w in range(0, 8, 2):
        if w + 2 < 8:
            row(KR + 12 * (w + 2), KO, w + 2, ("k", w + 2))
            row(KR + 12 * (w + 3), KO, w + 3, ("k", w + 3))
        else:
            row(VR, VO, 0, ("v", 0))
            row(VR + 12, VO, 1, ("v", 1))
        bg()
        b.wait(lg=["q", ("k", w), ("k", w + 1)])
        for d in range(9):
            for ww in (w, w + 1):
                b("v_dot2c_f32_bf16 %s, %s, %s" % (vr(Z + ww), vr(Q + d), vr(KR + 12 * ww + d)))
        bg()
    for w in range(2, 5):
        row(VR + 12 * w, VO, w, ("v", w))
    b("v_mul_f32 v236, 0x%08x, v236" % f32(18 ** -0.5 * LOG2E))
    for w in range(8):
        b("v_mul_f32 %s, %s, %s" % (vr(Z + w), vr(Z + w), vr(RSV + w)))
    bg()
    for w in range(8):
        b("v_mul_f32 %s, %s, v236" % (vr(Z + w), vr(Z + w)))
    b("s_cmp_lg_u32 s25, 0")
    b("s_cbranch_scc1 L_q_nomask")
    b("v_mov_b32 v237, 0x%08x" % f32(-1e9 * LOG2E))
    for w in range(1, 8):
        b("v_cmp_le_u32 vcc, %d, v1" % (2 * w))
        b("s_nop 1")
        b("v_cndmask_b32 %s, v237, %s, vcc" % (vr(Z + w), vr(Z + w)))
    b("L_q_nomask:")
    b("v_max3_f32 v237, %s, %s, %s" % (vr(Z), vr(Z + 1), vr(Z + 2)))
    b("v_max3_f32 v238, %s, %s, %s" % (vr(Z + 3), vr(Z + 4), vr(Z + 5)))
    b("v_max3_f32 v237, v237, %s, %s" % (vr(Z + 6), vr(Z + 7)))
    b("v_max_f32 v237, v237, v238")
    for w in range(8):
        b("v_sub_f32 %s, %s, v237" % (vr(Z + w), vr(Z + w)))
    bg()
    for w in range(8):
        b("v_exp_f32 %s, %s" % (vr(Z + w), vr(Z + w)))
    bg()
    b.wait(lg=[("v", 0), ("v", 1)])
    for w in range(5, 8):
        row(VR + 12 * w, VO, w, ("v", w))
    b("v_add_f32 v237, %s, %s" % (vr(Z), vr(Z + 1)))
    b("v_add_f32 v238, %s, %s" % (vr(Z + 2), vr(Z + 3)))
    b("v_add_f32 v239, %s, %s" % (vr(Z + 4), vr(Z + 5)))
    b("v_add_f32 v240, %s, %s" % (vr(Z + 6), vr(Z + 7)))
    b("v_add_f32 v237, v237, v238")
    b("v_add_f32 v239, v239, v240")
    b("v_add_f32 v237, v237, v239")
    b("v_rcp_f32 v237, v237")
    bg()
    for w in range(8):
        b("v_mul_f32 %s, %s, %s" % (vr(Z + w), vr(Z + w), vr(RSV + w)))
    for w in range(8):
        b("v_mul_f32 %s, %s, v237" % (vr(Z + w), vr(Z + w)))
    bg()
    for w in range(8):
        b("v_cvt_pk_bf16_f32 %s, %s, 0" % (vr(SL + 2 * w), vr(Z + w)))
        b("v_lshlrev_b32 %s, 16, %s" % (vr(SL + 2 * w + 1), vr(SL + 2 * w)))
    for w in range(8):
        bg()
        b.wait(lg=[("v", w)])
        for d in range(9):
            for hh in range(2):
                o = vr(O + 2 * d + hh)
                if w == 0:
                    b("v_dot2_f32_bf16 %s, %s, %s, 0" % (o, vr(VR + d), vr(SL + hh)))
                else:
                    b("v_dot2c_f32_bf16 %s, %s, %s" % (o, vr(VR + 12 * w + d), vr(SL + 2 * w + hh)))
    bg(99)
    b("v_lshrrev_b32 v3, 4, v1")
    b("v_mul_u32_u24 v3, %d, v3" % XT)
    b("v_lshl_add_u32 v3, v6, 4, v3")
    b("s_mul_i32 s40, s25, %d" % (4 * XT))
    b("s_lshl_b32 s41, s26, 11")
    b("s_lshl_b32 s42, s24, 9")
    b("s_add_u32 s41, s41, s42")
    b("s_add_u32 s41, s41, s40")
    b("v_add_u32 v8, s41, v3")
    b("s_lshl_b32 s40, s25, 5")
    b("s_lshl_b32 s41, s26, 2")
    b("s_add_u32 s40, s40, s41")
    b("s_add_u32 s40, s40, s24")
    b("s_lshl_b32 s40, s40, 8")
    b("s_add_u32 s40, s40, %d" % L_OT)
    b("v_lshl_add_u32 v9, v1, 2, s40")
    for d in range(9):
        b("v_cvt_pk_bf16_f32 %s, %s, %s" % (vr(Q + d), vr(O + 2 * d), vr(O + 2 * d + 1)))
    assert L_O == 0
    b("global_store_dwordx4 v8, %s, s[48:49] sc1" % vr(Q, 4), vm="pub")
    b("global_store_dwordx4 v8, %s, s[48:49] offset:256 sc1" % vr(Q + 4, 4), vm="pub")
    b("global_store_dword v9, %s, s[48:49] sc1" % vr(Q + 8), vm="pub")
    stamp(b, cfg, 4)


def ow(j, t):
    return vr(OWB + 20 * (j % 3) + 4 * t, 4)


def ow_read(j, t):
    n = 5 * j + t
    base, off = (7, n * KB) if n < 60 else (9, (n - 60) * KB)
    return "ds_read_b128 %s, %s offset:%d" % (ow(j, t), vr(base), off)


def o_setup(b):
    b("v_add_u32 v9, %d, v7" % (60 * KB))
    for j in range(2):
        for t in range(5):
            b(ow_read(j, t), lg=("W", j))
    b("s_mul_i32 s36, s27, %d" % XT)
    b("s_add_u32 s37, s36, 4096")
    add64(b, 32, 48, "s37")
    b("s_lshl_b32 s37, s25, 13")
    b("s_lshl_b32 s42, s24, 6")
    b("s_add_u32 s37, s37, s42")
    b("s_add_u32 s37, s37, %d" % (L_OT + 4096))
    b("v_lshlrev_b32 v8, 10, v5")
    b("v_lshl_add_u32 v8, v6, 2, v8")
    b("v_add_u32 v8, s37, v8")
    b("s_lshl_b32 s37, s26, 11")
    b("s_add_u32 s37, s37, s36")
    b("s_add_u32 s37, s37, %d" % L_X1)
    b("v_add_u32 v12, s37, v7")
    b("s_lshl_b32 s37, s26, 8")
    b("s_add_u32 s37, s37, s36")
    b("s_add_u32 s37, s37, %d" % (L_X1 + 16 * KB))
    b("v_lshlrev_b32 v13, 4, v6")
    b("v_lshl_add_u32 v13, v5, 3, v13")
    b("v_add_u32 v13, s37, v13")
    b("s_lshl_b32 s37, s25, 3")
    b("s_add_u32 s37, s37, s26")
    b("s_lshl_b32 s37, s37, 9")
    b("s_lshl_b32 s42, s24, 7")
    b("s_add_u32 s37, s37, s42")
    b("s_add_u32 s37, s37, %d" % L_ST)
    b("v_lshl_add_u32 v14, v6, 3, s37")


def phase_o(b, cfg, ring):
    q = []
    for j in range(16):
        q.append(("global_load_dwordx4 %s, v7, s[32:33] offset:%d sc1" % (vr(OF + 4 * j, 4), (j % 8) * KB - 4096), ("o", j)))
        if j == 7:
            q += [("s_add_u32 s32, s32, 0x2000", None), ("s_addc_u32 s33, s33, 0", None)]
    for j in (16, 17):
        for h in range(4):
            q.append(("global_load_dword %s, v8, s[48:49] offset:%d sc1" % (vr(OF + 4 * j + h), (j - 17) * 4096 + 256 * h), ("o", j)))
    first = cfg.get("OFIRST", 8)
    while sum(1 for t in b.vmq if isinstance(t, tuple) and t[0] == "o") < first:
        t, tag = q.pop(0)
        b(t, vm=tag)
    nring = cfg["RING"][3]
    for j in range(18):
        assert not any(tag == ("o", j) for t, tag in q)
        b.wait(vm=[("o", j)], lg=[("W", j)])
        for t in range(5):
            a = vr(OACC + 4 * t, 4)
            b(MFMA % (a, ow(j, t), vr(OF + 4 * j, 4), a if j else "0"))
            if t in (0, 2):
                while q and not q[0][1]:
                    b(q.pop(0)[0])
                if q:
                    tt, tag = q.pop(0)
                    b(tt, vm=tag)
                elif nring and t == 0:
                    ring.load(b, 1)
                    nring -= 1
            if j + 2 < 18:
                b(ow_read(j + 2, t), lg=("W", j + 2))
    assert not q
    ring.load(b, nring)
    stamp(b, cfg, 5)
    T = OF
    for t in range(5):
        for p in range(2):
            b("v_lshlrev_b32 %s, 16, %s" % (vr(T + 8 + 4 * t + 2 * p), vr(RES + 2 * t + p)))
            b("v_and_b32 %s, 0xffff0000, %s" % (vr(T + 9 + 4 * t + 2 * p), vr(RES + 2 * t + p)))
    for t in range(5):
        for p in range(2):
            a = OACC + 4 * t + 2 * p
            b("v_pk_add_f32 %s, %s, %s" % (vr(a, 2), vr(a, 2), vr(T + 8 + 4 * t + 2 * p, 2)))
            b("v_cvt_pk_bf16_f32 %s, %s, %s" % (vr(RES + 2 * t + p), vr(a), vr(a + 1)))
        if t == 1:
            b("global_store_dwordx4 v12, %s, s[48:49] sc1" % vr(RES, 4), vm="pub")
        if t == 3:
            b("global_store_dwordx4 v12, %s, s[48:49] offset:1024 sc1" % vr(RES + 4, 4), vm="pub")
    b("v_mov_b32 v2, 0x3f803f80")
    b("v_mov_b32 %s, 0" % vr(T + 2))
    b("v_mov_b32 %s, 0" % vr(T + 3))
    b("s_mov_b32 exec_hi, 0")
    b("global_store_dwordx2 v13, %s, s[48:49] sc1" % vr(RES + 8, 2), vm="pub")
    for r in (8, 9, -1, 0, 1, 2, 3, 4, 5, 6, 7):
        if r < 0:
            b("s_mov_b32 exec_hi, -1")
            continue
        b("v_dot2c_f32_bf16 %s, %s, v2" % (vr(T + 2), vr(RES + r)))
        b("v_dot2c_f32_bf16 %s, %s, %s" % (vr(T + 3), vr(RES + r), vr(RES + r)))
    b("s_nop 2")
    for op in ("v_permlane16_swap_b32", "v_permlane32_swap_b32"):
        b("v_mov_b32 %s, %s" % (vr(T + 4), vr(T + 2)))
        b("v_mov_b32 %s, %s" % (vr(T + 5), vr(T + 3)))
        b("s_nop 0")
        b("%s %s, %s" % (op, vr(T + 2), vr(T + 4)))
        b("%s %s, %s" % (op, vr(T + 3), vr(T + 5)))
        b("v_add_f32 %s, %s, %s" % (vr(T + 2), vr(T + 2), vr(T + 4)))
        b("v_add_f32 %s, %s, %s" % (vr(T + 3), vr(T + 3), vr(T + 5)))
    b("s_mov_b64 exec, 0xffff")
    b("global_store_dwordx2 v14, %s, s[48:49] sc1" % vr(T + 2, 2), vm="pub")
    b("s_mov_b64 exec, -1")


def mx(j, m):
    n = 4 * j + m
    return ar(120 + 4 * n, 4) if n < 34 else vr(104 + 4 * (n - 34), 4)


def slot(n):
    return ar(4 * (n % NB), 4)


def mw_load(n):
    return "global_load_dwordx4 %s, v7, s[30:31] offset:%d" % (slot(n), (n % 6) * KB - 3072)


class M:
    pass


RECV_A = [24, 25, 26, 27, 28, 29, 0, 1]
RECV_B = [16, 17, 18, 19, 20, 21]
UA = 4


def build_mfmas(cfg):
    G = cfg.get("G", 6)
    GD = cfg.get("GD", 4)
    std = [list(range(k, min(k + G, 18))) for k in range(0, 18, G)]
    dbl = [list(range(k, min(k + GD, 16))) for k in range(0, 16, GD)] + [[16, 17]]
    out = []

    def add(seg, aset, m, j, n, src):
        x = M()
        x.seg, x.aset, x.m, x.j, x.n, x.src = seg, aset, m, j, n, src
        out.append(x)

    for t in range(9):
        for grp in std:
            for m in range(4):
                for j in grp:
                    add(("p1", t), t % 2, m, j, 18 * t + j, "X")
    for grp in dbl:
        for m in range(4):
            for u in range(2):
                for j in grp:
                    add(("p2", u), 1 + u, m, j, w2_pos(u, j), "H")
    for u in range(2, 9):
        for grp in std:
            for m in range(4):
                for j in grp:
                    add(("p2", u), (1 + u) % 3, m, j, w2_pos(u, j), "H")
    return out


def mish_groups(t, m):
    a = ACC + 16 * (t % 2) + 4 * m
    bi = BIAS + 4 * (t % 2)
    G = []
    for p in (0, 2):
        x, y = a + p, a + p + 1
        G.append(["v_fma_f32 %s, %s, %s, %s" % (vr(x), vr(x), vr(RS + m), vr(bi + p)),
                  "v_fma_f32 %s, %s, %s, %s" % (vr(y), vr(y), vr(RS + m), vr(bi + p + 1))])
        G.append(["v_exp_f32 %s, %s" % (vr(TMP), vr(x))])
        G.append(["v_exp_f32 %s, %s" % (vr(TMP + 1), vr(y))])
        G.append(["v_fma_f32 %s, %s, s56, s56" % (vr(TMP + q), vr(TMP + q)) for q in range(2)])
        G.append(["v_fma_f32 %s, -%s, %s, -0.5" % (vr(TMP + q), vr(TMP + q), vr(TMP + q)) for q in range(2)])
        G.append(["v_rcp_f32 %s, %s" % (vr(TMP), vr(TMP))])
        G.append(["v_rcp_f32 %s, %s" % (vr(TMP + 1), vr(TMP + 1))])
        G.append(["v_fmac_f32 %s, %s, %s" % (vr(x), vr(x), vr(TMP)),
                  "v_fmac_f32 %s, %s, %s" % (vr(y), vr(y), vr(TMP + 1))])
    pk = PK + 2 * (m & 1)
    G.append(["v_cvt_pk_bf16_f32 %s, %s, %s" % (vr(pk), vr(a), vr(a + 1)),
              "v_cvt_pk_bf16_f32 %s, %s, %s" % (vr(pk + 1), vr(a + 2), vr(a + 3))])
    base, off = (11, 8192 * t + KB * m) if t < 4 else (12, 8192 * (t - 4) + KB * m)
    G.append(["ds_write_b64 %s, %s offset:%d" % (vr(base), vr(pk, 2), off)])
    return G


def m_setup(b):
    b("v_add_u32 v8, %d, v7" % (2 * XT))
    b("v_add_u32 v9, %d, v7" % HB)
    b("v_add_u32 v10, %d, v7" % (HB + 32768))
    b("s_lshr_b32 s46, s24, 1")
    b("s_lshl_b32 s46, s46, 12")
    b("s_and_b32 s47, s24, 1")
    b("s_lshl_b32 s47, s47, 3")
    b("s_add_u32 s46, s46, s47")
    b("v_add_u32 v11, s46, v9")
    b("v_add_u32 v12, s46, v10")
    b("s_mul_i32 s46, s26, 2304")
    b("s_lshl_b32 s47, s24, 6")
    b("s_add_u32 s46, s46, s47")
    b("s_add_u32 s46, s46, %d" % B1_OFF)
    b("v_lshl_add_u32 v13, v5, 4, s46")
    b("s_lshl_b32 s46, s25, 12")
    b("s_add_u32 s46, s46, %d" % L_ST)
    b("v_lshl_add_u32 v14, v1, 3, s46")
    b("s_mov_b32 s56, 0x%08x" % f32(0.5 ** 0.5))
    b("s_mul_i32 s46, s25, %d" % (36 * 16 * KB))
    b("s_lshl_b32 s47, s24, 14")
    b("s_add_u32 s46, s46, s47")
    b("s_add_u32 s46, s46, %d" % L_PART)
    add64(b, 58, 48, "s46")
    b("s_lshl_b32 s46, s25, 12")
    b("s_lshl_b32 s47, s24, 7")
    b("s_add_u32 s46, s46, s47")
    b("s_add_u32 s46, s46, %d" % FL_P)
    add64(b, 72, 68, "s46")
    b("s_mul_i32 s46, s27, %d" % XT)
    b("s_add_u32 s46, s46, %d" % L_X1)
    add64(b, 32, 48, "s46")
    b("s_mul_i32 s46, s24, %d" % XT)
    b("s_mov_b32 m0, s46")
    b("v_mov_b32 v100, 0")
    b("v_mov_b32 v101, 1")
    for t in range(2):
        b("global_load_dwordx4 %s, v13, s[22:23] offset:%d" % (vr(BIAS + 4 * t, 4), 256 * t), vm="pre")


def send_ptr(u):
    sp, fp = 60 + 2 * (u % 2), 64 + 2 * (u % 2)
    if u == 0:
        return ["s_lshl_b32 s57, s26, 11", "s_add_u32 s57, s57, %d" % (32 * 16 * KB),
                "s_add_u32 s%d, s58, s57" % sp, "s_addc_u32 s%d, s59, 0" % (sp + 1)]
    return ["s_add_u32 s57, s26, %d" % u, "s_and_b32 s57, s57, 7", "s_lshl_b32 s55, s57, 9",
            "s_lshl_b32 s57, s57, 16", "s_add_u32 s57, s57, %d" % (u * 2048),
            "s_add_u32 s%d, s58, s57" % sp, "s_addc_u32 s%d, s59, 0" % (sp + 1),
            "s_add_u32 s%d, s72, s55" % fp, "s_addc_u32 s%d, s73, 0" % (fp + 1)]


def flag_store(u):
    fp = 64 + 2 * (u % 2)
    return ["s_mov_b64 exec, 1", "global_store_dword v100, v101, s[%d:%d] offset:%d sc1" % (fp, fp + 1, 4 * u), "s_mov_b64 exec, -1"]


def tail_setup():
    I = []
    I += ["v_lshrrev_b32 v2, 2, v6", "v_and_b32 v3, 1, v6", "v_cmp_eq_u32 vcc, v2, v5", "v_lshlrev_b32 v3, 4, v3",
          "v_mov_b32 v4, 0x3f80", "v_lshlrev_b32 v3, v3, v4", "v_cndmask_b32 v3, 0, v3, vcc", "v_and_b32 v2, 2, v6",
          "v_cmp_eq_u32 vcc, 0, v2", "v_mov_b32 %s, 0" % vr(SEL + 2), "v_mov_b32 %s, 0" % vr(SEL + 3), "v_and_b32 v4, 7, v1",
          "v_cndmask_b32 %s, 0, v3, vcc" % vr(SEL), "v_sub_u32 %s, v3, %s" % (vr(SEL + 1), vr(SEL))]
    for r in (4, 6):
        I += ["v_mov_b32 %s, %s" % (vr(SEL + r), vr(SEL)), "v_mov_b32 %s, %s" % (vr(SEL + r + 1), vr(SEL + 1))]
    I += ["v_lshlrev_b32 v15, 2, v4", "v_add_u32 v4, s74, v4"]
    I += ["v_lshl_add_u32 v8, v5, 4, v4", "v_lshrrev_b32 v2, 3, v6", "v_lshlrev_b32 v8, 4, v8", "v_lshrrev_b32 v3, 1, v5",
          "v_lshl_add_u32 v8, v2, 11, v8", "v_lshl_add_u32 v10, v3, 4, v4", "v_add_u32 v8, s75, v8", "v_and_b32 v2, 1, v5",
          "v_lshlrev_b32 v10, 4, v10", "v_add_u32 v9, s76, v7", "v_lshl_add_u32 v10, v2, 3, v10", "v_mul_u32_u24 v11, %d, v2" % XT,
          "v_add_u32 v10, s77, v10", "v_add_u32 v13, 0x2000, v8"]
    return [I[k:k + 2] for k in range(0, len(I), 2)]


def tail_scalars():
    return ["s_and_b32 s74, s26, 1", "s_lshl_b32 s74, s74, 3",
            "s_lshr_b32 s75, s26, 2", "s_lshl_b32 s75, s75, 10", "s_and_b32 s55, s26, 2", "s_lshl_b32 s55, s55, 2",
            "s_add_u32 s75, s75, s55", "s_add_u32 s75, s75, %d" % (32 * 16 * KB + 4096),
            "s_lshl_b32 s76, s26, 1", "s_lshr_b32 s55, s24, 1", "s_add_u32 s76, s76, s55", "s_lshl_b32 s76, s76, 10",
            "s_and_b32 s55, s24, 1", "s_lshl_b32 s55, s55, 3", "s_add_u32 s76, s76, s55",
            "s_lshr_b32 s77, s26, 1", "s_mul_i32 s77, s77, %d" % XT, "s_lshl_b32 s55, s24, 9", "s_add_u32 s77, s77, s55",
            "s_add_u32 s77, s77, %d" % (16 * KB),
            "s_lshl_b32 s55, s26, 16", "s_add_u32 s55, s55, %d" % (2048 + 4096), "s_add_u32 s52, s58, s55", "s_addc_u32 s53, s59, 0",
            "s_add_u32 s50, s52, 0x2000", "s_addc_u32 s51, s53, 0",
            "s_lshl_b32 s55, s26, 9", "s_add_u32 s78, s72, s55", "s_addc_u32 s79, s73, 0"]


def recv_load(u, h):
    if u <= 4:
        return "global_load_dwordx4 %s, v7, s[52:53] offset:%d sc1" % (slot(RECV_A[2 * (u - 1) + h]), (2 * (u - 1) + h) * KB - 4096)
    return "global_load_dwordx4 %s, v7, s[50:51] offset:%d sc1" % (slot(RECV_B[2 * (u - 5) + h]), (2 * (u - 5) + h) * KB - 4096)


def recv_mfma(b, u, h, p):
    sl = RECV_A[2 * (u - 1) + h] if u <= 4 else RECV_B[2 * (u - 5) + h]
    a = vr(ACC + 4 * (2 * h + p), 4)
    b(MFMA % (a, vr(SEL + 2 * p, 4), slot(sl), a))


def assert_free(vq, i, reg):
    r = _regs(reg)
    for it in vq:
        if it["e"] - 8 > i:
            break
        for t in it["g"]:
            p = parse(t)
            if p is not None:
                assert not (r & (p.r | p.w)), (i, reg, t)


def phase_m(b, cfg, ring, ool):
    def xd(js, tag):
        out = []
        for j in js:
            if j % 4 == 0 and j:
                out += [("s_add_u32 m0, m0, 0x1000", None), ("s_add_u32 s32, s32, 0x1000", None), ("s_addc_u32 s33, s33, 0", None)]
            out.append(("global_load_lds_dwordx4 v7, s[32:33] offset:%d sc1" % ((j % 4) * KB), tag))
        return out

    for t, tag in xd(range(0, 6), "xA") + xd(range(6, 12), "xB"):
        b(t, vm=tag)
    SV = ACC + 16
    gq = xd(range(12, 18), "xC")
    gq += [("global_load_dwordx2 %s, v14, s[48:49] offset:%d sc1" % (vr(SV + 2 * q, 2), 512 * q), "st") for q in range(8)]

    mf = build_mfmas(cfg)
    N = len(mf)
    first_w, last_w, first_b, last_acc, last_x, seg_start = {}, {}, {}, {}, {}, {}
    for i, x in enumerate(mf):
        first_w.setdefault(x.n, i)
        last_w[x.n] = i
        first_b.setdefault((x.src, x.j, x.m), i)
        last_acc[(x.seg, x.m)] = i
        seg_start.setdefault(x.seg, i)
        if x.src == "X":
            last_x[(x.j, x.m)] = i

    def bread(src, j, m):
        if src == "X":
            base, off = (7, m * XT + j * KB) if m < 2 else (8, (m - 2) * XT + j * KB)
        else:
            base, off = (9, 4096 * j + KB * m) if j < 8 else (10, 4096 * (j - 8) + KB * m)
        return "ds_read_b128 %s, %s offset:%d" % (mx(j, m), vr(base), off)

    def stage(src, j):
        if src == "X":
            return "xA" if j < 6 else "xB" if j < 12 else "xC"
        return "hA" if j < 14 else "hB" if j < 16 else "hC"

    LA = cfg.get("LA", 12)
    dq = sorted(first_b, key=lambda k: first_b[k])
    vq = []

    def V(e, g, tag=None, wait=None, force=False):
        vq.append(dict(e=e, g=g, tag=tag, wait=wait, force=force))

    sti = []
    for step in (8, 4, 2):
        sti += ["v_add_f32 %s, %s, %s" % (vr(SV + q), vr(SV + q), vr(SV + q + step)) for q in range(step)]
    sti += ["v_mul_f32 %s, 0x%08x, %s" % (vr(SV + q), f32(1.0 / 576), vr(SV + q)) for q in range(2)]
    sti += ["v_fma_f32 %s, -%s, %s, %s" % (vr(SV), vr(SV), vr(SV), vr(SV + 1)), "v_max_f32 %s, 0, %s" % (vr(SV), vr(SV))]
    stg = [sti[k:k + 2] for k in range(0, len(sti), 2)]
    stg += [["v_add_f32 %s, 0x%08x, %s" % (vr(SV), f32(1e-5), vr(SV)), "v_rsq_f32 %s, %s" % (vr(SV), vr(SV))],
            ["v_mul_f32 %s, 0x%08x, %s" % (vr(RS + q), f32(LOG2E), vr(SV)) for q in range(2)],
            ["s_nop 0", "v_permlane16_swap_b32 %s, %s" % (vr(RS), vr(RS + 1))],
            ["v_mov_b32 %s, %s" % (vr(RS + 2 + q), vr(RS + q)) for q in range(2)],
            ["s_nop 0", "v_permlane32_swap_b32 %s, %s" % (vr(RS), vr(RS + 2))],
            ["v_permlane32_swap_b32 %s, %s" % (vr(RS + 1), vr(RS + 3))]]
    for n, g in enumerate(stg):
        V(cfg.get("STAT_AT", 46), g, wait="st" if n == 0 else None, force=True)
    for t in range(9):
        for m in range(4):
            gs = mish_groups(t, m)
            for n, g in enumerate(gs):
                V(last_acc[(("p1", t), m)] + 4, g, tag=("hw", t) if n == len(gs) - 1 else None,
                  wait=("bias", t) if (m == 0 and n == 0) else None)

    def cvts(u):
        st = ST + 8 * (u % 2)
        a = ACC + 16 * ((1 + u) % 3)
        for m in range(4):
            V(last_acc[(("p2", u), m)] + 8, ["v_cvt_pk_bf16_f32 %s, %s, %s" % (vr(st + 2 * m + r), vr(a + 4 * m + 2 * r), vr(a + 4 * m + 2 * r + 1))
                                            for r in range(2)])

    def stores(u):
        st, sp = ST + 8 * (u % 2), 60 + 2 * (u % 2)
        return ["global_store_dwordx4 v7, %s, s[%d:%d] offset:%d sc1" % (vr(st + 4 * h, 4), sp, sp + 1, h * KB) for h in range(2)]

    slow, back = lab("rA_s"), lab("rA_b")
    for u in range(1, 8):
        if u == 1:
            cvts(0)
        cvts(u)
        e = last_acc[(("p2", u), 3)] + 8
        if u == 1:
            V(e, stores(0), tag=("st", 1))
        V(e, stores(u), tag=("st", u))
        if u >= 2:
            V(e, flag_store(u - 1), wait=("st", u - 1))
        if u == 2:
            for g in tail_setup():
                V(e + 30, g)
        if u == 3:
            V(e, ["ds_read_b64 %s, v9" % vr(MRES, 2), "ds_read_b64 %s, v9 offset:%d" % (vr(MRES + 2, 2), XT)], tag="res")
            V(e, ["ds_read_b64 %s, v9 offset:%d" % (vr(MRES + 4 + 2 * q, 2), (2 + q) * XT) for q in range(2)], tag="res")
            V(e, ["ds_read_b64 %s, v10" % vr(MRES + 8, 2)], tag="res")
        if u == 6:
            V(e, ["global_load_dword v14, v15, s[78:79] sc1"], tag="poll")
        if u == 7:
            V(e, ["v_cmp_eq_u32 vcc, 1, v14"], wait="poll")
            V(e, ["s_and_b32 s55, vcc_lo, 0x1e", "s_cmp_eq_u32 s55, 0x1e", "s_cbranch_scc0 %s" % slow, "%s:" % back])
            for uu in range(1, 5):
                V(e, [recv_load(uu, h) for h in range(2)], tag="rA")
            V(e + cfg.get("FLAG7", 44), flag_store(7), wait=("st", 7))
    ool("%s:" % slow)
    ool("s_mov_b32 s41, 0")
    ool("%s_l:" % slow)
    ool.L.append("global_load_dword v14, v15, s[78:79] sc1")
    ool("s_add_u32 s41, s41, 1")
    ool("s_cmp_gt_u32 s41, %d" % SPIN)
    ool("s_cbranch_scc1 %s" % back)
    ool("s_waitcnt vmcnt(0)")
    ool("v_cmp_eq_u32 vcc, 1, v14")
    ool("s_nop 1")
    ool("s_and_b32 s55, vcc_lo, 0x1e")
    ool("s_cmp_eq_u32 s55, 0x1e")
    ool("s_cbranch_scc0 %s_l" % slow)
    ool("s_branch %s" % back)

    hw_left = {t: 4 for t in range(9)}
    done = set()
    sq = []
    nextw = ring.n
    last_load = -4
    bias_next = 2
    ptr_next = 0
    sq_age = 0

    def ensure_stage(sg):
        if sg in done:
            return True
        if sg[0] == "x":
            while any(tag == sg for t, tag in gq):
                t, tag = gq.pop(0)
                b(t, vm=tag)
            b.wait(vm=sg)
        else:
            t = {"hA": 6, "hB": 7, "hC": 8}[sg]
            if hw_left[t]:
                return False
            b.wait(lg=[("hw", tt) for tt in range(t + 1)])
        b("s_barrier")
        done.add(sg)
        return True

    def emit_v():
        it = vq.pop(0)
        if it["wait"]:
            assert not any(tag == it["wait"] for t, tag in gq)
            b.wait(vm=[it["wait"]], lg=[it["wait"]])
        if any(t.startswith("s_") and not t.startswith(("s_nop", "s_mov")) for t in it["g"]):
            while sq:
                b(sq.pop(0))
        for t in it["g"]:
            b(t, vm=it["tag"], lg=it["tag"])
        if it["tag"] and it["tag"][0] == "hw":
            hw_left[it["tag"][1]] -= 1

    ensure_stage("xA")
    stamp(b, cfg, 6)
    while first_b[dq[0]] < LA:
        k = dq.pop(0)
        b(bread(*k), lg=k)
    for i, x in enumerate(mf):
        if i == 0:
            b.wait(lg=[(x.src, x.j, x.m)])
        a = vr(ACC + 16 * x.aset + 4 * x.m, 4)
        if x.j == 0:
            assert_free(vq, i, a)
        b(MFMA % (a, slot(x.n), mx(x.j, x.m), a if x.j else "0"))
        used = False
        budget = 2
        if i + 1 < N:
            y = mf[i + 1]
            ky = (y.src, y.j, y.m)
            while ky in dq:
                while not ensure_stage(stage(dq[0][0], dq[0][1])):
                    assert vq[0]["e"] <= i
                    emit_v()
                k = dq.pop(0)
                b(bread(*k), lg=k)
                cfg.setdefault("_late", []).append((i, k))
            assert y.n < nextw
            wl = [ky]
            if vq and vq[0]["e"] <= i and vq[0]["wait"]:
                wl.append(vq[0]["wait"])
            wv = []
            if b.pending(vm=[("W", y.n)]):
                wv = [("W", z.n) for z in mf[i + 1:i + 1 + cfg.get("WGRAN", 3)] if z.n < nextw]
            used = b.wait(vm=wv + wl, lg=wl)
        if ptr_next < 8 and not sq and i >= seg_start[("p2", ptr_next)] + (40 if ptr_next >= 2 else 0):
            assert_free(vq, i, sr(60 + 2 * (ptr_next % 2), 2))
            assert_free(vq, i, sr(64 + 2 * (ptr_next % 2), 2))
            sq += send_ptr(ptr_next)
            if ptr_next == 1:
                sq += tail_scalars()
            ptr_next += 1
        sq_age = sq_age + 1 if sq else 0
        if sq and (not used or sq_age > 1):
            b(sq.pop(0))
            sq_age = 0
        if gq:
            if i - last_load >= 2:
                while not gq[0][1]:
                    b(gq.pop(0)[0])
                t, tag = gq.pop(0)
                b(t, vm=tag)
                last_load = i
        elif nextw < 324 and (nextw < NB or i >= last_w[nextw - NB]) and i - last_load >= cfg.get("LDGAP", 3) and not any(t in MADV for t in sq):
            b(mw_load(nextw), vm=("W", nextw))
            if nextw % 6 == 5 and nextw < 323:
                pos = 0
                while pos < len(sq) and sq[pos].startswith("s_addc"):
                    pos += 1
                sq[pos:pos] = MADV
            nextw += 1
            last_load = i
            if x.seg[0] == "p2" or x.seg == ("p1", 0):
                budget -= 1
        if bias_next < 9 and i >= seg_start[("p1", bias_next)] - cfg.get("BIAS_AT", 4):
            assert_free(vq, i, vr(BIAS + 4 * (bias_next % 2), 4))
            b("global_load_dwordx4 %s, v13, s[22:23] offset:%d" % (vr(BIAS + 4 * (bias_next % 2), 4), 256 * bias_next), vm=("bias", bias_next))
            bias_next += 1
        while dq and budget > 0 and first_b[dq[0]] <= i + LA + (12 if budget == 1 and x.seg[0] == "p2" else 0):
            k = dq[0]
            if k[0] == "H" and last_x[(k[1], k[2])] > i:
                break
            if not ensure_stage(stage(k[0], k[1])):
                break
            dq.pop(0)
            b(bread(*k), lg=k)
            budget -= 1
        if vq and vq[0]["e"] <= i and (budget == 2 or vq[0]["force"] or (x.seg[0] == "p1" and x.seg[1] > 0)):
            emit_v()
    assert not dq and not sq and nextw == 324 and not gq
    while vq:
        emit_v()

    poll, got = lab("rB_p"), lab("rB_g")
    b("global_load_dword v14, v15, s[78:79] sc1", vm="poll")
    b.wait(vm="rA")
    for h in range(2):
        for p in range(2):
            for u in range(1, 5):
                recv_mfma(b, u, h, p)
    qw_base(b)
    b("s_mov_b32 s41, 0")
    b("%s:" % poll)
    b.wait_all(lg=False)
    b("v_cmp_eq_u32 vcc, 1, v14")
    b("s_add_u32 s41, s41, 1")
    b("s_cmp_gt_u32 s41, %d" % SPIN)
    b("s_cbranch_scc1 %s" % got)
    b("s_and_b32 s55, vcc_lo, 0xe0")
    b("s_cmp_eq_u32 s55, 0xe0")
    b("s_cbranch_scc1 %s" % got)
    b.L.append("global_load_dword v14, v15, s[78:79] sc1")
    b("s_branch %s" % poll)
    b("%s:" % got)
    for u in range(5, 8):
        for h in range(2):
            b(recv_load(u, h), vm=("rB", u))
    for q in range(4):
        b("global_load_dwordx2 %s, v%d, s[58:59] offset:%d sc1" % (vr(P9 + 2 * q, 2), (8, 13)[q >> 1], (q & 1) * 4096 - 4096), vm="r9")
    skip = lab("m_np")
    b("s_cmp_lg_u32 s3, 0")
    b("s_cbranch_scc1 %s" % skip)
    g = b.fork()
    qw_pre(g, range(0, cfg["WQP"][0]))
    b.extend(g)
    b("s_mul_i32 s40, s25, %d" % (4 * XT))
    b("s_add_u32 s40, s40, %d" % X2_OFF)
    b("v_add_u32 v10, s40, v10")
    b("s_lshl_b32 s41, s26, 11")
    b("s_lshl_b32 s42, s24, 9")
    b("s_add_u32 s41, s41, s42")
    b("s_add_u32 s41, s41, s40")
    b("v_lshrrev_b32 v3, 1, v5")
    b("v_lshl_add_u32 v3, v3, 4, v6")
    b("v_lshl_add_u32 v11, v3, 4, v11")
    b("v_add_u32 v11, s41, v11")
    b("s_branch %s_e" % skip)
    b("%s:" % skip)
    b("s_mul_i32 s40, s25, %d" % (4 * XT))
    b("s_lshl_b32 s42, s24, 5")
    b("s_add_u32 s40, s40, s42")
    b("s_lshl_b32 s41, s26, 7")
    b("s_add_u32 s41, s41, s40")
    b("v_mul_u32_u24 v2, 1152, v6")
    b("v_lshrrev_b32 v3, 1, v5")
    b("v_lshl_add_u32 v3, v3, 4, v2")
    b("v_add3_u32 v11, v11, v3, s41")
    b("s_mul_i32 s41, s26, %d" % (8 * 1152))
    b("s_add_u32 s41, s41, s40")
    b("s_add_u32 s41, s41, 1024")
    b("v_lshl_add_u32 v10, v5, 3, v2")
    b("v_add_u32 v10, s41, v10")
    b("%s_e:" % skip)
    b("v_add_u32 v12, %d, v11" % (2 * XT))
    b("s_mov_b32 s56, 0x%08x" % f32(LN2))
    b.wait(lg="res")
    T = ACC + 16
    for r in range(10):
        b("v_lshlrev_b32 %s, 16, %s" % (vr(T + 2 * r), vr(MRES + r)))
        b("v_and_b32 %s, 0xffff0000, %s" % (vr(T + 2 * r + 1), vr(MRES + r)))
    for u in range(5, 8):
        b.wait(vm=[("rB", u)])
        for h in range(2):
            for p in range(2):
                recv_mfma(b, u, h, p)
    b.wait(vm="r9")
    b(MFMA % (vr(A9, 4), vr(SEL + 4, 4), vr(P9, 4), "0"))
    b(MFMA % (vr(A9, 4), vr(SEL + 4, 4), vr(P9 + 4, 4), vr(A9, 4)))
    b("s_nop 2")
    for r in range(8):
        b("v_fmac_f32 %s, s56, %s" % (vr(T + 2 * r), vr(ACC + 2 * r)))
        b("v_fmac_f32 %s, s56, %s" % (vr(T + 2 * r + 1), vr(ACC + 2 * r + 1)))
        b("v_cvt_pk_bf16_f32 %s, %s, %s" % (vr(MRES + r), vr(T + 2 * r), vr(T + 2 * r + 1)))
    for r in range(4):
        b("v_add_f32_dpp %s, %s, %s row_ror:8 row_mask:0xf bank_mask:0xf" % (vr(A9 + 4 + r), vr(A9 + r), vr(A9 + r)))
    for h in range(2):
        for p in range(2):
            b("v_permlane16_swap_b32 %s, %s" % (vr(MRES + 4 * h + p), vr(MRES + 4 * h + 2 + p)))
    for r in range(4):
        b("v_fmac_f32 %s, s56, %s" % (vr(T + 16 + r), vr(A9 + 4 + r)))
    for r in range(2):
        b("v_cvt_pk_bf16_f32 %s, %s, %s" % (vr(MRES + 8 + r), vr(T + 16 + 2 * r), vr(T + 17 + 2 * r)))

    def out_stores(bb, base, fl):
        bb("global_store_dwordx4 v11, %s, %s%s" % (vr(MRES, 4), base, fl), vm="pub")
        bb("global_store_dwordx4 v12, %s, %s%s" % (vr(MRES + 4, 4), base, fl), vm="pub")
        bb("s_mov_b32 exec_lo, 0x00ff00ff")
        bb("s_mov_b32 exec_hi, 0x00ff00ff")
        bb("global_store_dwordx2 v10, %s, %s%s" % (vr(MRES + 8, 2), base, fl), vm="pub")
        bb("s_mov_b64 exec, -1")
    return out_stores


def gen_mega(cfg):
    cfg.setdefault("RING", [4, 4, 5, 8, 4, 5])
    cfg.setdefault("WQP", [1, 1, 2])
    for k in ("RING", "WQP"):
        if isinstance(cfg[k], str):
            cfg[k] = [int(c) for c in cfg[k].split(".")]
    Lab.n = 0
    b = B()
    ool = B()
    entry(b, "mega_kernel")
    b("s_cmp_ge_u32 s2, 256")
    b("s_cbranch_scc1 L_mega_end")
    probe(b, cfg, "s", layered=False)
    load_args(b)
    stamp(b, cfg, 0)
    b("v_and_b32 v1, 63, v0")
    b("v_lshrrev_b32 v2, 6, v0")
    b("v_lshrrev_b32 v5, 4, v1")
    b("v_readfirstlane_b32 s24, v2")
    b("v_and_b32 v6, 15, v1")
    b("v_lshlrev_b32 v7, 4, v1")
    decode_wg(b, cfg, 25, 26)
    b("s_lshl_b32 s27, s25, 2")
    b("s_add_u32 s27, s27, s24")
    b("s_waitcnt lgkmcnt(0)")
    qw_base(b)
    qw_pre(b, range(sum(cfg["WQP"])))
    q_setup(b, 0)
    b("L_layer:")
    b.vmq = ["pre"] * 20
    ring = Ring()
    phase_q(b, cfg, ring)
    R = cfg["RING"]
    ring.load(b, R[1])
    sync(b, cfg, FL_C1, "pub", lambda g: ring.load(g, R[2], commit=False), o_setup)
    ring.n += R[2]
    phase_o(b, cfg, ring)
    ring.load(b, R[4])
    sync(b, cfg, FL_C2, "pub", lambda g: ring.load(g, R[5], commit=False), m_setup)
    ring.n += R[5]
    assert ring.n <= NB
    out_stores = phase_m(b, cfg, ring, ool)
    probe(b, cfg, "e")
    b("s_cmp_lg_u32 s3, 0")
    b("s_cbranch_scc1 L_final")
    g = b.fork()
    out_stores(g, "s[22:23]", " sc1")
    stamp_end(g, cfg, 1, wait=False)
    W = cfg["WQP"]
    qw_pre(g, range(W[0], W[0] + W[1]))
    sync(g, cfg, FL_C3, "pub", lambda q: qw_pre(q, range(W[0] + W[1], sum(W))), lambda q: q_setup(q, 1), nbr=True)
    stamp(g, cfg, 0)
    g("s_branch L_layer")
    b.extend(g)
    b("L_final:")
    out_stores(b, "s[18:19]", cfg.get("sc_out", ""))
    stamp_end(b, cfg, 1)
    probe_end(b, cfg)
    b("L_mega_end:")
    b("s_endpgm")
    b.extend(ool)
    return b, [("mega_kernel", 512, 256)], [("mega_kernel", 256, 256, LDSM)]
```

```python
import sys
from asmlib import *
from layout import *
import k0, k1, k2, k3, k4, mega

HEAD = open("interleave_layers__sliding_local_dilated__dense_activation_mish__prompt.s.ref").read().split("; Override launch")[0] if __import__("os").path.exists("interleave_layers__sliding_local_dilated__dense_activation_mish__prompt.s.ref") else ""


def desc(name, vgpr, acc):
    return ("""
.p2align 6
.amdhsa_kernel %s
  .amdhsa_next_free_vgpr %d
  .amdhsa_next_free_sgpr 102
  .amdhsa_accum_offset %d
  .amdhsa_group_segment_fixed_size 0
  .amdhsa_kernarg_size 80
  .amdhsa_user_sgpr_count 2
  .amdhsa_user_sgpr_kernarg_segment_ptr 1
  .amdhsa_system_sgpr_workgroup_id_x 1
.end_amdhsa_kernel""" % (name, vgpr, acc))


def generate(cfg):
    cfg.setdefault("R", 4)
    b0, d0, l0 = k0.gen_k0(cfg)
    launches = list(l0)
    if cfg.get("multi"):
        parts = [k1.gen_k1(cfg), k2.gen_k2(cfg), k3.gen_k3(cfg), k4.gen_k4(cfg)]
        for lay in range(2):
            for (bb, dd, lds) in parts:
                launches.append((dd[lay][0], 256, 256, lds))
    else:
        parts = [mega.gen_mega(cfg)]
        launches += parts[0][2]
    if cfg.get("empty_pre") or cfg.get("empty_post"):
        b0(".p2align 8\n.globl nop_kernel\n.type nop_kernel,@function\nnop_kernel:\ns_endpgm")
        d0 = d0 + [("nop_kernel", 8, 8)]
        launches = [("nop_kernel", 256, 256, 0)] * cfg.get("empty_pre", 0) + launches + [("nop_kernel", 256, 256, 0)] * cfg.get("empty_post", 0)
    if cfg.get("twice"):
        launches = launches + launches
    if cfg.get("k0twice"):
        launches = launches[:1] + launches
    errs = check_hazards(b0.L, "k0")
    for n, (bb, dd, lds) in enumerate(parts):
        errs += check_hazards(bb.L, "k%d" % (n + 1))
    for e in errs[:40]:
        print("HAZARD", e, file=sys.stderr)
    assert not errs
    out = HEAD
    for (k, g, blk, lds) in launches:
        out += "; @launch kernel=%s grid=(%d,1,1) block=(%d,1,1) lds=%d\n" % (k, g, blk, lds)
    out += '.amdgcn_target "amdgcn-amd-amdhsa--gfx950"\n.text\n'
    out += b0.text()
    for (bb, dd, lds) in parts:
        out += bb.text()
    out += '.section .rodata,"a"\n'
    for d in d0 + [d for (bb, dd, lds) in parts for d in dd]:
        out += desc(*d)
    return out + "\n"


if __name__ == "__main__":
    cfg = {}
    for a in sys.argv[2:]:
        k, v = a.split("=", 1)
        try: v = int(v)
        except ValueError: v = v.replace("_", " ")
        cfg[k] = v
    open(sys.argv[1], "w").write(generate(cfg))
    if cfg.get("_late"): print("late reads:", cfg["_late"])
```

```python
import struct
from asmlib import *
from layout import *


def f32(x):
    return struct.unpack("<I", struct.pack("<f", x))[0]


def entry(b, name):
    b(".p2align 8")
    b(".globl %s" % name)
    b(".type %s,@function" % name)
    b("%s:" % name)


def entry2(b, stem):
    entry(b, stem + "a_kernel")
    b("s_mov_b32 s3, 0")
    b("s_branch L_%s_body" % stem)
    entry(b, stem + "b_kernel")
    b("s_mov_b32 s3, 1")
    b("L_%s_body:" % stem)


def load_args(b):
    b("s_load_dwordx16 s[4:19], s[0:1], 0")
    b("s_load_dwordx4 s[20:23], s[0:1], 64")


def decode_wg(b, cfg, rb, col):
    R = cfg["R"]
    C = 8 // R
    lc = C.bit_length() - 1
    per = 8 // C
    lp = per.bit_length() - 1
    b("s_and_b32 s40, s2, 7")
    b("s_lshr_b32 s41, s2, 3")
    b("s_lshr_b32 s%d, s40, %d" % (rb, lc))
    b("s_mul_i32 s%d, s%d, %d" % (rb, rb, 32 // R))
    b("s_lshr_b32 s42, s41, %d" % lp)
    b("s_add_u32 s%d, s%d, s42" % (rb, rb))
    b("s_and_b32 s%d, s40, %d" % (col, C - 1))
    b("s_lshl_b32 s%d, s%d, %d" % (col, col, lp))
    b("s_and_b32 s42, s41, %d" % (per - 1))
    b("s_add_u32 s%d, s%d, s42" % (col, col))


def add64(b, dst, src, off):
    b("s_add_u32 s%d, s%d, %s" % (dst, src, off))
    b("s_addc_u32 s%d, s%d, 0" % (dst + 1, src + 1))


def layer_ptrs(b, xin=None, xout=None, lws=None):
    add64(b, 44, 22, X2_OFF)
    b("s_cmp_eq_u32 s3, 0")
    if xin is not None:
        b("s_cselect_b32 s%d, s4, s44" % xin)
        b("s_cselect_b32 s%d, s5, s45" % (xin + 1))
    if xout is not None:
        b("s_cselect_b32 s%d, s44, s18" % xout)
        b("s_cselect_b32 s%d, s45, s19" % (xout + 1))
    if lws is not None:
        b("s_cselect_b32 s43, %d, %d" % (0, LAYER_SZ))
        b("s_add_u32 s43, s43, %d" % LAYER_OFF)
        add64(b, lws, 22, "s43")


def xlane_sum_g(b, v, t):
    b("v_mov_b32 %s, %s" % (vr(t), vr(v)))
    b("s_nop 1")
    b("v_permlane16_swap_b32 %s, %s" % (vr(v), vr(t)))
    b("s_nop 0")
    b("v_add_f32 %s, %s, %s" % (vr(v), vr(v), vr(t)))
    b("v_mov_b32 %s, %s" % (vr(t), vr(v)))
    b("s_nop 1")
    b("v_permlane32_swap_b32 %s, %s" % (vr(v), vr(t)))
    b("s_nop 0")
    b("v_add_f32 %s, %s, %s" % (vr(v), vr(v), vr(t)))


def probe(b, cfg, name, layered=True):
    if "PROBE" not in cfg:
        return
    for reg, want in zip((98, 99), cfg["PROBE"].split("-")):
        if want[1:] == name:
            b("s_memrealtime s[100:101]")
            b("s_waitcnt lgkmcnt(0)")
            if layered:
                b("s_cmp_eq_u32 s3, %s" % want[0])
                b("s_cselect_b32 s%d, s100, s%d" % (reg, reg))
            else:
                b("s_mov_b32 s%d, s100" % reg)


def probe_end(b, cfg):
    if "PROBE" not in cfg:
        return
    b("s_cmp_lg_u32 s2, 0")
    b("s_cbranch_scc1 L_probe_done")
    if cfg["PROBE"].startswith("kk"):
        b("v_mov_b32 v2, %d" % STAMP_OFF)
        b("global_load_dword v3, v2, s[22:23]")
        b("s_waitcnt vmcnt(0)")
        b("v_readfirstlane_b32 s98, v3")
        b("s_nop 3")
    b("s_sub_u32 s99, s99, s98")
    b("s_min_u32 s99, s99, 20000")
    b("s_mul_i32 s99, s99, 4")
    b("s_memrealtime s[100:101]")
    b("s_waitcnt lgkmcnt(0)")
    b("s_mov_b32 s98, s100")
    b("L_probe_spin:")
    b("s_memrealtime s[100:101]")
    b("s_waitcnt lgkmcnt(0)")
    b("s_sub_u32 s100, s100, s98")
    b("s_cmp_lt_u32 s100, s99")
    b("s_cbranch_scc1 L_probe_spin")
    b("L_probe_done:")


def stamp(b, cfg, n):
    if n:
        probe(b, cfg, str(n))
    if cfg.get("stamp"):
        b("%s s[%d:%d]" % ("s_memtime" if cfg["stamp"] == 2 and n else "s_memrealtime", 80 + 2 * n, 81 + 2 * n))
        if n == 0:
            for r in range(82, 96):
                b("s_mov_b32 s%d, 0" % r)


def stamp_end(b, cfg, kidx, layered=True, wait=True):
    if not cfg.get("stamp"):
        return
    keep = list(b.vmq)
    if wait:
        b("s_waitcnt vmcnt(0)")
    b("s_memrealtime s[94:95]")
    b("s_mov_b64 exec, -1")
    b("s_lshl_b32 s96, s2, 6")
    b("s_add_u32 s96, s96, %d" % (STAMP_OFF + kidx * STAMP_K))
    if layered:
        b("s_mul_i32 s97, s3, %d" % (4 * STAMP_K))
        b("s_add_u32 s96, s96, s97")
    b("s_waitcnt lgkmcnt(0)")
    b("v_mov_b32 v20, s96")
    b("v_cmp_eq_u32 vcc, 0, v0")
    b("s_and_saveexec_b64 s[98:99], vcc")
    lab = "L_stamp_%d_%d_%d" % (kidx, len(b.L), wait)
    b("s_cbranch_execz %s" % lab)
    for q in range(4):
        for r in range(4):
            b("v_mov_b32 v%d, s%d" % (16 + r, 80 + 4 * q + r))
        b("global_store_dwordx4 v20, v[16:19], s[22:23] offset:%d" % (16 * q))
        b("s_nop 1")
    b("%s:" % lab)
    b("s_mov_b64 exec, -1")
    b.vmq = [] if wait else keep
```

```python
from asmlib import *
from layout import *
from common import *

NWG0 = 177
LDS0 = 85 * 1008 + 16
FR = 16


def tr_reads(b, plan):
    for j in range(18):
        for h in range(2):
            base, imm = plan(j, h)
            assert 0 <= imm < 65536
            b("ds_read_b64_tr_b16 %s, %s offset:%d" % (vr(FR + 4 * j + 2 * h, 2), vr(base), imm))
        if j % 6 == 5:
            b.wait_all(vm=False)


def centre(b):
    b("v_mov_b32 v12, 0x3f803f80")
    b("v_mov_b32 v13, 0")
    b("v_mov_b32 v14, 0")
    for r in range(0, 72, 2):
        b("v_dot2c_f32_bf16 v13, %s, v12" % vr(FR + r))
        b("v_dot2c_f32_bf16 v14, %s, v12" % vr(FR + r + 1))
    b("s_nop 2")
    b("v_add_f32 v13, v13, v14")
    xlane_sum_g(b, 13, 14)
    b("v_mul_f32 v13, 0x%08x, v13" % f32(1.0 / 576))
    for r in range(72):
        x = FR + r
        t = 90 + 2 * (r & 1)
        b("v_lshlrev_b32 %s, 16, %s" % (vr(t), vr(x)))
        b("v_and_b32 %s, 0xffff0000, %s" % (vr(t + 1), vr(x)))
        b("v_sub_f32 %s, %s, v13" % (vr(t), vr(t)))
        b("v_sub_f32 %s, %s, v13" % (vr(t + 1), vr(t + 1)))
        b("v_cvt_pk_bf16_f32 %s, %s, %s" % (vr(x), vr(t), vr(t + 1)))


def stores(b, vdst, sstride, second=None):
    for j in range(18):
        b("global_store_dwordx4 %s, %s, s[22:23]" % (vr(vdst), vr(FR + 4 * j, 4)))
        if second is not None:
            b("global_store_dwordx4 %s, %s, s[22:23] offset:%d" % (vr(vdst), vr(FR + 4 * j, 4), second))
        b("v_add_u32 %s, %s, %s" % (vr(vdst), sstride, vr(vdst)))
    b.vmq = []


def load128(b, stride):
    b("v_lshrrev_b32 v8, 3, v1")
    b("v_mul_u32_u24 v8, %d, v8" % stride)
    b("v_and_b32 v9, 7, v1")
    b("v_lshl_add_u32 v8, v9, 4, v8")
    b("s_mul_i32 s34, s24, %d" % (144 * stride))
    b("s_add_u32 s32, s32, s34")
    b("s_mul_i32 s34, s24, %d" % (144 * 128))
    b("s_mov_b32 m0, s34")
    for n in range(18):
        b("s_nop 0")
        b("buffer_load_dwordx4 v8, s[28:31], s32 offen lds")
        b("s_add_u32 s32, s32, %d" % (8 * stride))
        b("s_add_u32 m0, m0, 1024")
    b.wait_all()
    b("s_barrier")


def srd(b, ptr, size):
    b("s_mov_b32 s28, s%d" % ptr)
    b("s_and_b32 s29, s%d, 0xffff" % (ptr + 1))
    b("s_mov_b32 s30, %d" % size)
    b("s_mov_b32 s31, 0x20000")


def div9(b, dst, rem, src):
    b("s_mul_i32 s%d, s%d, 57" % (dst, src))
    b("s_lshr_b32 s%d, s%d, 9" % (dst, dst))
    b("s_mul_i32 s%d, s%d, 9" % (rem, dst))
    b("s_sub_u32 s%d, s%d, s%d" % (rem, src, rem))


def col128(b, dst):
    b("v_lshl_add_u32 %s, v3, 3, %s" % (vr(dst), vr(dst)))
    b("s_lshl_b32 s35, s24, 5")
    b("v_add_u32 %s, s35, %s" % (vr(dst), vr(dst)))


def gen_k0(cfg):
    assert all((x * 57) >> 9 == x // 9 for x in range(72))
    b = B()
    entry(b, "k0_kernel")
    b("s_cmp_ge_u32 s2, %d" % NWG0)
    b("s_cbranch_scc1 L_k0_end")
    load_args(b)
    if "PROBE" in cfg:
        b("s_memrealtime s[100:101]")
    stamp(b, cfg, 0)
    b("v_and_b32 v1, 63, v0")
    b("v_lshrrev_b32 v2, 6, v0")
    b("v_and_b32 v3, 3, v1")
    b("v_readfirstlane_b32 s24, v2")
    b("v_bfe_u32 v4, v1, 2, 2")
    b("v_lshrrev_b32 v5, 4, v1")
    b("v_and_b32 v6, 15, v1")
    b("v_lshlrev_b32 v7, 4, v1")
    b("s_waitcnt lgkmcnt(0)")
    if cfg.get("PROBE", "").startswith("kk"):
        b("s_cmp_lg_u32 s2, 0")
        b("s_cbranch_scc1 L_k0_np")
        b("v_mov_b32 v10, %d" % STAMP_OFF)
        b("v_mov_b32 v11, s100")
        b.L.append("global_store_dword v10, v11, s[22:23]")
        b("L_k0_np:")
    b("s_cmp_ge_u32 s2, 168")
    b("s_cbranch_scc1 L_k0_wo")
    b("s_cmp_ge_u32 s2, 144")
    b("s_cbranch_scc1 L_k0_wq")
    b("s_cmp_ge_u32 s2, 72")
    b("s_cbranch_scc1 L_k0_w2")

    b("s_cmp_eq_u32 s24, 4")
    b("s_cbranch_scc1 L_k0_bias")
    srd(b, 12, D * F * 2)
    b("s_lshl_b32 s32, s2, 7")
    load128(b, F * 2)
    b("v_lshl_add_u32 v10, v5, 2, v4")
    b("v_lshlrev_b32 v10, 7, v10")
    col128(b, 10)
    b("v_lshl_add_u32 v11, v5, 3, v4")
    b("v_lshlrev_b32 v11, 7, v11")
    b("v_add_u32 v11, 0x10000, v11")
    col128(b, 11)
    tr_reads(b, lambda j, h: (10, 4096 * j + 2048 * h) if j < 16 else (11, 4096 * (j - 16) + 512 * h))
    centre(b)
    div9(b, 36, 37, 2)
    b("s_lshl_b32 s36, s36, 2")
    b("s_add_u32 s36, s36, s24")
    b("s_mul_i32 s36, s36, %d" % WM_STREAM)
    b("s_mul_i32 s37, s37, %d" % (18 * KB))
    b("s_add_u32 s36, s36, s37")
    b("s_add_u32 s36, s36, %d" % WM_OFF)
    b("v_add_u32 v8, s36, v7")
    stores(b, 8, "0x400")
    b("s_branch L_k0_fin")

    b("L_k0_bias:")
    b("s_lshl_b32 s32, s2, 6")
    b("v_add_u32 v8, s32, v1")
    b("v_lshlrev_b32 v9, 1, v8")
    b("global_load_ushort v10, v9, s[14:15]")
    b("v_lshlrev_b32 v8, 2, v8")
    b("v_add_u32 v8, %d, v8" % B1_OFF)
    b.wait_all()
    b("v_lshlrev_b32 v10, 16, v10")
    b("v_mul_f32 v10, 0x%08x, v10" % f32(LOG2E))
    b("global_store_dword v8, v10, s[22:23]")
    b("s_endpgm")
    b.vmq = []

    b("L_k0_zero:")
    b("s_sub_u32 s38, s2, 72")
    b("s_cmp_ge_u32 s38, %d" % (FL_USED // (6 * KB)))
    b("s_cbranch_scc1 L_k0_end")
    b("s_mul_i32 s38, s38, %d" % (6 * KB))
    b("s_add_u32 s38, s38, %d" % (FLAG_OFF + 2 * KB))
    b("v_add_u32 v8, s38, v7")
    for r in range(4):
        b("v_mov_b32 v%d, 0" % (12 + r))
    for n in range(6):
        b("global_store_dwordx4 v8, v[12:15], s[22:23] offset:%d" % (n * KB - 2 * KB))
    b("s_endpgm")
    b.vmq = []

    b("L_k0_w2:")
    b("s_cmp_eq_u32 s24, 4")
    b("s_cbranch_scc1 L_k0_zero")
    srd(b, 16, D * F * 2)
    b("s_sub_u32 s38, s2, 72")
    div9(b, 36, 37, 38)
    b("s_mul_i32 s32, s36, %d" % (576 * 1152))
    b("s_lshl_b32 s33, s37, 7")
    b("s_add_u32 s32, s32, s33")
    load128(b, D * 2)
    b("v_lshl_add_u32 v10, v5, 2, v4")
    b("v_lshlrev_b32 v10, 7, v10")
    col128(b, 10)
    b("v_add_u32 v11, 0x10000, v10")
    tr_reads(b, lambda j, h: (10, 4096 * j + 2048 * h) if j < 16 else (11, 4096 * (j - 16) + 2048 * h))
    b("s_sub_u32 s38, s37, s36")
    b("s_add_u32 s38, s38, 7")
    b("s_and_b32 s38, s38, 7")
    b("s_add_u32 s38, s38, 1")
    b("s_cmp_eq_u32 s37, 8")
    b("s_cselect_b32 s38, 0, s38")
    b("s_mul_i32 s39, s38, 18")
    b("s_cmp_lt_u32 s38, 2")
    b("s_cselect_b32 s39, s38, s39")
    b("s_cselect_b32 s40, 2, 1")
    b("s_lshl_b32 s40, s40, 10")
    b("s_add_u32 s39, s39, 162")
    b("s_lshl_b32 s39, s39, 10")
    b("s_lshl_b32 s36, s36, 2")
    b("s_add_u32 s36, s36, s24")
    b("s_mul_i32 s36, s36, %d" % WM_STREAM)
    b("s_add_u32 s36, s36, s39")
    b("s_add_u32 s36, s36, %d" % WM_OFF)
    b("v_add_u32 v8, s36, v7")
    stores(b, 8, "s40")
    b("s_branch L_k0_fin")

    b("L_k0_wo:")
    b("s_cmp_eq_u32 s24, 4")
    b("s_cbranch_scc1 L_k0_end")
    srd(b, 8, D * D * 2)
    b("s_sub_u32 s37, s2, 168")
    b("s_lshl_b32 s32, s37, 7")
    load128(b, D * 2)
    b("v_lshrrev_b32 v10, 1, v5")
    b("v_mul_u32_u24 v10, 20, v10")
    b("v_and_b32 v11, 1, v5")
    b("v_lshl_add_u32 v10, v11, 3, v10")
    b("v_add_u32 v10, v10, v4")
    b("v_lshlrev_b32 v10, 7, v10")
    col128(b, 10)
    b("v_add_u32 v11, %d, v10" % (8 * 4608))
    b("v_mul_u32_u24 v12, 72, v5")
    b("v_add3_u32 v12, v12, v4, 16")
    b("v_lshlrev_b32 v12, 7, v12")
    col128(b, 12)
    tr_reads(b, lambda j, h: (10, 4608 * j + 512 * h) if j < 8 else
             (11, 4608 * (j - 8) + 512 * h) if j < 16 else (12, 36864 * (j - 16) + 4608 * h))
    b("s_cmp_eq_u32 s37, 8")
    b("s_cbranch_scc1 L_k0_wo8")
    b("s_mul_i32 s36, s37, %d" % WO_CG)
    b("s_lshl_b32 s38, s24, 10")
    b("s_add_u32 s36, s36, s38")
    b("s_add_u32 s36, s36, %d" % WO_OFF)
    b("v_add_u32 v8, s36, v7")
    stores(b, 8, "0x1400")
    b("s_branch L_k0_fin")
    b("L_k0_wo8:")
    b("s_mul_i32 s36, s24, %d" % (2 * WO_CG))
    b("s_add_u32 s36, s36, %d" % (WO_OFF + 4 * KB))
    b("v_lshrrev_b32 v8, 3, v6")
    b("v_mul_u32_u24 v8, %d, v8" % (WO_CG - 128))
    b("v_add3_u32 v8, v8, v7, s36")
    stores(b, 8, "0x1400", second=128)
    b("s_branch L_k0_fin")

    b("L_k0_wq:")
    srd(b, 6, D * 3 * D * 2)
    b("s_sub_u32 s38, s2, 144")
    b("s_mul_i32 s36, s38, 43")
    b("s_lshr_b32 s36, s36, 7")
    assert all((x * 43) >> 7 == x // 3 for x in range(24))
    b("s_mul_i32 s37, s36, 3")
    b("s_sub_u32 s37, s38, s37")
    b("s_mul_i32 s32, s37, 1152")
    b("s_mul_i32 s33, s36, 144")
    b("s_add_u32 s32, s32, s33")
    b("v_mul_u32_u24 v8, 57, v1")
    b("v_lshrrev_b32 v8, 9, v8")
    b("v_mul_u32_u24 v9, 9, v8")
    b("v_sub_u32 v9, v1, v9")
    b("v_mul_u32_u24 v8, 3456, v8")
    b("v_lshl_add_u32 v8, v9, 4, v8")
    b("s_mul_i32 s34, s24, %d" % (17 * 7 * 3456))
    b("s_add_u32 s32, s32, s34")
    b("s_mul_i32 s34, s24, %d" % (17 * 1008))
    b("s_mov_b32 m0, s34")
    for n in range(17):
        b("s_nop 0")
        b("buffer_load_dwordx4 v8, s[28:31], s32 offen lds")
        b("s_add_u32 s32, s32, %d" % (7 * 3456))
        b("s_add_u32 m0, m0, 1008")
    b.wait_all()
    b("s_barrier")
    b("v_lshl_add_u32 v10, v5, 3, v4")
    b("v_mul_u32_u24 v10, 144, v10")
    b("s_lshr_b32 s38, s24, 1")
    b("s_mul_i32 s38, s38, 72")
    b("s_and_b32 s39, s24, 1")
    b("s_mul_i32 s39, s39, 40")
    b("s_add_u32 s38, s38, s39")
    b("v_lshlrev_b32 v11, 3, v3")
    b("v_add_u32 v11, s38, v11")
    b("v_and_b32 v12, 1, v3")
    b("v_mul_u32_u24 v12, 72, v12")
    b("v_add_u32 v12, 32, v12")
    b("s_cmp_eq_u32 s24, 4")
    b("s_cselect_b64 vcc, -1, 0")
    b("v_cndmask_b32 v11, v11, v12, vcc")
    b("v_add_u32 v10, v10, v11")
    b("v_add_u32 v11, %d, v10" % (9 * 4608))
    tr_reads(b, lambda j, h: (10, 4608 * j + 576 * h) if j < 9 else (11, 4608 * (j - 9) + 576 * h))
    centre(b)
    b("s_mul_i32 s36, s36, %d" % (4 * 72 * KB))
    b("s_add_u32 s36, s36, %d" % WQ_OFF)
    b("s_cmp_eq_u32 s24, 4")
    b("s_cbranch_scc1 L_k0_wqt")
    b("s_mul_i32 s38, s24, %d" % (72 * KB))
    b("s_lshl_b32 s39, s37, 10")
    b("s_add_u32 s36, s36, s38")
    b("s_add_u32 s36, s36, s39")
    b("s_branch L_k0_wqs")
    b("L_k0_wqt:")
    b("s_add_u32 s36, s36, %d" % (3 * KB))
    b("v_cmp_gt_u32 vcc, 8, v6")
    b("s_cmp_eq_u32 s37, 0")
    b("s_cbranch_scc1 L_k0_wqq")
    b("s_cmp_eq_u32 s37, 1")
    b("s_cbranch_scc1 L_k0_wqk")
    b("s_not_b64 vcc, vcc")
    b("L_k0_wqk:")
    b("s_mov_b64 exec, vcc")
    b("s_branch L_k0_wqs")
    b("L_k0_wqq:")
    b("s_add_u32 s36, s36, %d" % (72 * KB))
    for r in range(72):
        b("v_cndmask_b32 %s, v12, %s, vcc" % (vr(FR + r), vr(FR + r)))
    b("L_k0_wqs:")
    b("v_add_u32 v8, s36, v7")
    stores(b, 8, "0x1000")

    b("L_k0_fin:")
    stamp_end(b, cfg, 0, layered=False)
    b("L_k0_end:")
    b("s_endpgm")
    return b, [("k0_kernel", 96, 96)], [("k0_kernel", NWG0, 320, LDS0)]
```

```python
import struct
from asmlib import *
from layout import *


def f32(x):
    return struct.unpack("<I", struct.pack("<f", x))[0]


def entry(b, name):
    b(".p2align 8")
    b(".globl %s" % name)
    b(".type %s,@function" % name)
    b("%s:" % name)


def entry2(b, stem):
    entry(b, stem + "a_kernel")
    b("s_mov_b32 s3, 0")
    b("s_branch L_%s_body" % stem)
    entry(b, stem + "b_kernel")
    b("s_mov_b32 s3, 1")
    b("L_%s_body:" % stem)


def load_args(b):
    b("s_load_dwordx16 s[4:19], s[0:1], 0")
    b("s_load_dwordx4 s[20:23], s[0:1], 64")


def decode_wg(b, cfg, rb, col):
    R = cfg["R"]
    C = 8 // R
    lc = C.bit_length() - 1
    per = 8 // C
    lp = per.bit_length() - 1
    b("s_and_b32 s40, s2, 7")
    b("s_lshr_b32 s41, s2, 3")
    b("s_lshr_b32 s%d, s40, %d" % (rb, lc))
    b("s_mul_i32 s%d, s%d, %d" % (rb, rb, 32 // R))
    b("s_lshr_b32 s42, s41, %d" % lp)
    b("s_add_u32 s%d, s%d, s42" % (rb, rb))
    b("s_and_b32 s%d, s40, %d" % (col, C - 1))
    b("s_lshl_b32 s%d, s%d, %d" % (col, col, lp))
    b("s_and_b32 s42, s41, %d" % (per - 1))
    b("s_add_u32 s%d, s%d, s42" % (col, col))


def add64(b, dst, src, off):
    b("s_add_u32 s%d, s%d, %s" % (dst, src, off))
    b("s_addc_u32 s%d, s%d, 0" % (dst + 1, src + 1))


def layer_ptrs(b, xin=None, xout=None, lws=None):
    add64(b, 44, 22, X2_OFF)
    b("s_cmp_eq_u32 s3, 0")
    if xin is not None:
        b("s_cselect_b32 s%d, s4, s44" % xin)
        b("s_cselect_b32 s%d, s5, s45" % (xin + 1))
    if xout is not None:
        b("s_cselect_b32 s%d, s44, s18" % xout)
        b("s_cselect_b32 s%d, s45, s19" % (xout + 1))
    if lws is not None:
        b("s_cselect_b32 s43, %d, %d" % (0, LAYER_SZ))
        b("s_add_u32 s43, s43, %d" % LAYER_OFF)
        add64(b, lws, 22, "s43")


def xlane_sum_g(b, v, t):
    b("v_mov_b32 %s, %s" % (vr(t), vr(v)))
    b("s_nop 1")
    b("v_permlane16_swap_b32 %s, %s" % (vr(v), vr(t)))
    b("s_nop 0")
    b("v_add_f32 %s, %s, %s" % (vr(v), vr(v), vr(t)))
    b("v_mov_b32 %s, %s" % (vr(t), vr(v)))
    b("s_nop 1")
    b("v_permlane32_swap_b32 %s, %s" % (vr(v), vr(t)))
    b("s_nop 0")
    b("v_add_f32 %s, %s, %s" % (vr(v), vr(v), vr(t)))


def probe(b, cfg, name, layered=True):
    if "PROBE" not in cfg:
        return
    for reg, want in zip((98, 99), cfg["PROBE"].split("-")):
        if want[1:] == name:
            b("s_memrealtime s[100:101]")
            b("s_waitcnt lgkmcnt(0)")
            if layered:
                b("s_cmp_eq_u32 s3, %s" % want[0])
                b("s_cselect_b32 s%d, s100, s%d" % (reg, reg))
            else:
                b("s_mov_b32 s%d, s100" % reg)


def probe_end(b, cfg):
    if "PROBE" not in cfg:
        return
    b("s_cmp_lg_u32 s2, 0")
    b("s_cbranch_scc1 L_probe_done")
    if cfg["PROBE"].startswith("kk"):
        b("v_mov_b32 v2, %d" % STAMP_OFF)
        b("global_load_dword v3, v2, s[22:23]")
        b("s_waitcnt vmcnt(0)")
        b("v_readfirstlane_b32 s98, v3")
        b("s_nop 3")
    b("s_sub_u32 s99, s99, s98")
    b("s_min_u32 s99, s99, 20000")
    b("s_mul_i32 s99, s99, 4")
    b("s_memrealtime s[100:101]")
    b("s_waitcnt lgkmcnt(0)")
    b("s_mov_b32 s98, s100")
    b("L_probe_spin:")
    b("s_memrealtime s[100:101]")
    b("s_waitcnt lgkmcnt(0)")
    b("s_sub_u32 s100, s100, s98")
    b("s_cmp_lt_u32 s100, s99")
    b("s_cbranch_scc1 L_probe_spin")
    b("L_probe_done:")


def stamp(b, cfg, n):
    if n:
        probe(b, cfg, str(n))
    if ("TR" in cfg or cfg.get("stamp") == 3) and n:
        return
    if cfg.get("stamp"):
        b("%s s[%d:%d]" % ("s_memtime" if cfg["stamp"] == 2 and n else "s_memrealtime", 80 + 2 * n, 81 + 2 * n))
        if n == 0:
            for r in range(82, 96):
                b("s_mov_b32 s%d, 0" % r)


def stamp_end(b, cfg, kidx, layered=True, wait=True):
    if not cfg.get("stamp") or (cfg["stamp"] == 3 and not wait):
        return
    keep = list(b.vmq)
    if wait:
        b("s_waitcnt vmcnt(0)")
    b("s_memrealtime s[94:95]")
    b("s_mov_b64 exec, -1")
    b("s_lshl_b32 s96, s2, 6")
    b("s_add_u32 s96, s96, %d" % (STAMP_OFF + kidx * STAMP_K))
    if layered:
        b("s_mul_i32 s97, s3, %d" % (4 * STAMP_K))
        b("s_add_u32 s96, s96, s97")
    b("s_waitcnt lgkmcnt(0)")
    b("v_mov_b32 v20, s96")
    b("v_cmp_eq_u32 vcc, 0, v0")
    b("s_and_saveexec_b64 s[98:99], vcc")
    lab = "L_stamp_%d_%d_%d" % (kidx, len(b.L), wait)
    b("s_cbranch_execz %s" % lab)
    for q in range(4):
        for r in range(4):
            b("v_mov_b32 v%d, s%d" % (16 + r, 80 + 4 * q + r))
        b("global_store_dwordx4 v20, v[16:19], s[22:23] offset:%d" % (16 * q))
        b("s_nop 1")
    b("%s:" % lab)
    b("s_mov_b64 exec, -1")
    b.vmq = [] if wait else keep


def trace(b, cfg, idx):
    if "TR" in cfg and 0 <= idx - cfg["TR"] < 6:
        n = 1 + idx - cfg["TR"]
        b("%s s[%d:%d]" % ("s_memtime" if cfg["stamp"] == 2 else "s_memrealtime", 80 + 2 * n, 81 + 2 * n))
```

```python
from asmlib import *
from layout import *
from common import *

NWG0 = 177
LDS0 = 85 * 1008 + 16
FR = 16


def tr_reads(b, plan):
    for j in range(18):
        for h in range(2):
            base, imm = plan(j, h)
            assert 0 <= imm < 65536
            b("ds_read_b64_tr_b16 %s, %s offset:%d" % (vr(FR + 4 * j + 2 * h, 2), vr(base), imm))
        if j % 6 == 5:
            b.wait_all(vm=False)


def centre(b):
    b("v_mov_b32 v12, 0x3f803f80")
    b("v_mov_b32 v13, 0")
    b("v_mov_b32 v14, 0")
    for r in range(0, 72, 2):
        b("v_dot2c_f32_bf16 v13, %s, v12" % vr(FR + r))
        b("v_dot2c_f32_bf16 v14, %s, v12" % vr(FR + r + 1))
    b("s_nop 2")
    b("v_add_f32 v13, v13, v14")
    xlane_sum_g(b, 13, 14)
    b("v_mul_f32 v13, 0x%08x, v13" % f32(1.0 / 576))
    for r in range(72):
        x = FR + r
        t = 90 + 2 * (r & 1)
        b("v_lshlrev_b32 %s, 16, %s" % (vr(t), vr(x)))
        b("v_and_b32 %s, 0xffff0000, %s" % (vr(t + 1), vr(x)))
        b("v_sub_f32 %s, %s, v13" % (vr(t), vr(t)))
        b("v_sub_f32 %s, %s, v13" % (vr(t + 1), vr(t + 1)))
        b("v_cvt_pk_bf16_f32 %s, %s, %s" % (vr(x), vr(t), vr(t + 1)))


def stores(b, vdst, sstride, second=None):
    for j in range(18):
        b("global_store_dwordx4 %s, %s, s[22:23]" % (vr(vdst), vr(FR + 4 * j, 4)))
        if second is not None:
            b("global_store_dwordx4 %s, %s, s[22:23] offset:%d" % (vr(vdst), vr(FR + 4 * j, 4), second))
        b("v_add_u32 %s, %s, %s" % (vr(vdst), sstride, vr(vdst)))
    b.vmq = []


def load128(b, stride):
    b("v_lshrrev_b32 v8, 3, v1")
    b("v_mul_u32_u24 v8, %d, v8" % stride)
    b("v_and_b32 v9, 7, v1")
    b("v_lshl_add_u32 v8, v9, 4, v8")
    b("s_mul_i32 s34, s24, %d" % (144 * stride))
    b("s_add_u32 s32, s32, s34")
    b("s_mul_i32 s34, s24, %d" % (144 * 128))
    b("s_mov_b32 m0, s34")
    for n in range(18):
        b("s_nop 0")
        b("buffer_load_dwordx4 v8, s[28:31], s32 offen lds")
        b("s_add_u32 s32, s32, %d" % (8 * stride))
        b("s_add_u32 m0, m0, 1024")
    b.wait_all()
    b("s_barrier")


def srd(b, ptr, size):
    b("s_mov_b32 s28, s%d" % ptr)
    b("s_and_b32 s29, s%d, 0xffff" % (ptr + 1))
    b("s_mov_b32 s30, %d" % size)
    b("s_mov_b32 s31, 0x20000")


def div9(b, dst, rem, src):
    b("s_mul_i32 s%d, s%d, 57" % (dst, src))
    b("s_lshr_b32 s%d, s%d, 9" % (dst, dst))
    b("s_mul_i32 s%d, s%d, 9" % (rem, dst))
    b("s_sub_u32 s%d, s%d, s%d" % (rem, src, rem))


def col128(b, dst):
    b("v_lshl_add_u32 %s, v3, 3, %s" % (vr(dst), vr(dst)))
    b("s_lshl_b32 s35, s24, 5")
    b("v_add_u32 %s, s35, %s" % (vr(dst), vr(dst)))


def gen_k0(cfg):
    assert all((x * 57) >> 9 == x // 9 for x in range(72))
    b = B()
    entry(b, "k0_kernel")
    b("s_cmp_ge_u32 s2, %d" % NWG0)
    b("s_cbranch_scc1 L_k0_end")
    load_args(b)
    if "PROBE" in cfg:
        b("s_memrealtime s[100:101]")
    stamp(b, cfg, 0)
    b("v_and_b32 v1, 63, v0")
    b("v_lshrrev_b32 v2, 6, v0")
    b("v_and_b32 v3, 3, v1")
    b("v_readfirstlane_b32 s24, v2")
    b("v_bfe_u32 v4, v1, 2, 2")
    b("v_lshrrev_b32 v5, 4, v1")
    b("v_and_b32 v6, 15, v1")
    b("v_lshlrev_b32 v7, 4, v1")
    b("s_waitcnt lgkmcnt(0)")
    if cfg.get("PROBE", "").startswith("kk"):
        b("s_cmp_lg_u32 s2, 0")
        b("s_cbranch_scc1 L_k0_np")
        b("v_mov_b32 v10, %d" % STAMP_OFF)
        b("v_mov_b32 v11, s100")
        b.L.append("global_store_dword v10, v11, s[22:23]")
        b("L_k0_np:")
    b("s_cmp_ge_u32 s2, 168")
    b("s_cbranch_scc1 L_k0_wo")
    b("s_cmp_ge_u32 s2, 144")
    b("s_cbranch_scc1 L_k0_wq")
    b("s_cmp_ge_u32 s2, 72")
    b("s_cbranch_scc1 L_k0_w2")

    b("s_cmp_eq_u32 s24, 4")
    b("s_cbranch_scc1 L_k0_bias")
    srd(b, 12, D * F * 2)
    b("s_lshl_b32 s32, s2, 7")
    load128(b, F * 2)
    b("v_lshl_add_u32 v10, v5, 2, v4")
    b("v_lshlrev_b32 v10, 7, v10")
    col128(b, 10)
    b("v_lshl_add_u32 v11, v5, 3, v4")
    b("v_lshlrev_b32 v11, 7, v11")
    b("v_add_u32 v11, 0x10000, v11")
    col128(b, 11)
    tr_reads(b, lambda j, h: (10, 4096 * j + 2048 * h) if j < 16 else (11, 4096 * (j - 16) + 512 * h))
    centre(b)
    div9(b, 36, 37, 2)
    b("s_lshl_b32 s36, s36, 2")
    b("s_add_u32 s36, s36, s24")
    b("s_mul_i32 s36, s36, %d" % WM_STREAM)
    b("s_mul_i32 s37, s37, %d" % (18 * KB))
    b("s_add_u32 s36, s36, s37")
    b("s_add_u32 s36, s36, %d" % WM_OFF)
    b("v_add_u32 v8, s36, v7")
    stores(b, 8, "0x400")
    b("s_branch L_k0_fin")

    b("L_k0_bias:")
    b("s_lshl_b32 s32, s2, 6")
    b("v_add_u32 v8, s32, v1")
    b("v_lshlrev_b32 v9, 1, v8")
    b("global_load_ushort v10, v9, s[14:15]")
    b("v_lshlrev_b32 v8, 2, v8")
    b("v_add_u32 v8, %d, v8" % B1_OFF)
    b.wait_all()
    b("v_lshlrev_b32 v10, 16, v10")
    b("v_mul_f32 v10, 0x%08x, v10" % f32(LOG2E))
    b("global_store_dword v8, v10, s[22:23]")
    b("s_endpgm")
    b.vmq = []

    b("L_k0_zero:")
    b("s_sub_u32 s38, s2, 72")
    b("s_cmp_ge_u32 s38, %d" % (FL_USED // (6 * KB)))
    b("s_cbranch_scc1 L_k0_end")
    b("s_mul_i32 s38, s38, %d" % (6 * KB))
    b("s_add_u32 s38, s38, %d" % (FLAG_OFF + 2 * KB))
    b("v_add_u32 v8, s38, v7")
    for r in range(4):
        b("v_mov_b32 v%d, 0" % (12 + r))
    for n in range(6):
        b("global_store_dwordx4 v8, v[12:15], s[22:23] offset:%d" % (n * KB - 2 * KB))
    b("s_endpgm")
    b.vmq = []

    b("L_k0_w2:")
    b("s_cmp_eq_u32 s24, 4")
    b("s_cbranch_scc1 L_k0_zero")
    srd(b, 16, D * F * 2)
    b("s_sub_u32 s38, s2, 72")
    div9(b, 36, 37, 38)
    b("s_mul_i32 s32, s36, %d" % (576 * 1152))
    b("s_lshl_b32 s33, s37, 7")
    b("s_add_u32 s32, s32, s33")
    load128(b, D * 2)
    b("v_lshl_add_u32 v10, v5, 2, v4")
    b("v_lshlrev_b32 v10, 7, v10")
    col128(b, 10)
    b("v_add_u32 v11, 0x10000, v10")
    tr_reads(b, lambda j, h: (10, 4096 * j + 2048 * h) if j < 16 else (11, 4096 * (j - 16) + 2048 * h))
    b("s_sub_u32 s38, s37, s36")
    b("s_add_u32 s38, s38, 7")
    b("s_and_b32 s38, s38, 7")
    b("s_add_u32 s38, s38, 1")
    b("s_cmp_eq_u32 s37, 8")
    b("s_cselect_b32 s38, 0, s38")
    b("s_mul_i32 s39, s38, 18")
    b("s_cmp_lt_u32 s38, 2")
    b("s_cselect_b32 s39, s38, s39")
    b("s_cselect_b32 s40, 2, 1")
    b("s_lshl_b32 s40, s40, 10")
    b("s_add_u32 s39, s39, 162")
    b("s_lshl_b32 s39, s39, 10")
    b("s_lshl_b32 s36, s36, 2")
    b("s_add_u32 s36, s36, s24")
    b("s_mul_i32 s36, s36, %d" % WM_STREAM)
    b("s_add_u32 s36, s36, s39")
    b("s_add_u32 s36, s36, %d" % WM_OFF)
    b("v_add_u32 v8, s36, v7")
    stores(b, 8, "s40")
    b("s_branch L_k0_fin")

    if cfg.get("CODEPF"):
        b("L_k0_code:")
        b("s_getpc_b64 s[36:37]")
        b("L_k0_pc:")
        b("s_add_u32 s36, s36, mega_kernel-L_k0_pc")
        b("s_addc_u32 s37, s37, 0")
        b("v_lshlrev_b32 v8, 7, v1")
        b("s_mov_b32 s38, L_mega_last-mega_kernel-4")
        for n in range(7):
            b("v_min_u32 v9, s38, v8")
            b("global_load_dword v%d, v9, s[36:37]" % (10 + n))
            b("v_add_u32 v8, 0x2000, v8")
        b.wait_all()
        b("s_endpgm")
    b("L_k0_wo:")
    b("s_cmp_eq_u32 s24, 4")
    b("s_cbranch_scc1 %s" % ("L_k0_code" if cfg.get("CODEPF") else "L_k0_end"))
    srd(b, 8, D * D * 2)
    b("s_sub_u32 s37, s2, 168")
    b("s_lshl_b32 s32, s37, 7")
    load128(b, D * 2)
    b("v_lshrrev_b32 v10, 1, v5")
    b("v_mul_u32_u24 v10, 20, v10")
    b("v_and_b32 v11, 1, v5")
    b("v_lshl_add_u32 v10, v11, 3, v10")
    b("v_add_u32 v10, v10, v4")
    b("v_lshlrev_b32 v10, 7, v10")
    col128(b, 10)
    b("v_add_u32 v11, %d, v10" % (8 * 4608))
    b("v_mul_u32_u24 v12, 72, v5")
    b("v_add3_u32 v12, v12, v4, 16")
    b("v_lshlrev_b32 v12, 7, v12")
    col128(b, 12)
    tr_reads(b, lambda j, h: (10, 4608 * j + 512 * h) if j < 8 else
             (11, 4608 * (j - 8) + 512 * h) if j < 16 else (12, 36864 * (j - 16) + 4608 * h))
    b("s_cmp_eq_u32 s37, 8")
    b("s_cbranch_scc1 L_k0_wo8")
    b("s_mul_i32 s36, s37, %d" % WO_CG)
    b("s_lshl_b32 s38, s24, 10")
    b("s_add_u32 s36, s36, s38")
    b("s_add_u32 s36, s36, %d" % WO_OFF)
    b("v_add_u32 v8, s36, v7")
    stores(b, 8, "0x1400")
    b("s_branch L_k0_fin")
    b("L_k0_wo8:")
    b("s_mul_i32 s36, s24, %d" % (2 * WO_CG))
    b("s_add_u32 s36, s36, %d" % (WO_OFF + 4 * KB))
    b("v_lshrrev_b32 v8, 3, v6")
    b("v_mul_u32_u24 v8, %d, v8" % (WO_CG - 128))
    b("v_add3_u32 v8, v8, v7, s36")
    stores(b, 8, "0x1400", second=128)
    b("s_branch L_k0_fin")

    b("L_k0_wq:")
    srd(b, 6, D * 3 * D * 2)
    b("s_sub_u32 s38, s2, 144")
    b("s_mul_i32 s36, s38, 43")
    b("s_lshr_b32 s36, s36, 7")
    assert all((x * 43) >> 7 == x // 3 for x in range(24))
    b("s_mul_i32 s37, s36, 3")
    b("s_sub_u32 s37, s38, s37")
    b("s_mul_i32 s32, s37, 1152")
    b("s_mul_i32 s33, s36, 144")
    b("s_add_u32 s32, s32, s33")
    b("v_mul_u32_u24 v8, 57, v1")
    b("v_lshrrev_b32 v8, 9, v8")
    b("v_mul_u32_u24 v9, 9, v8")
    b("v_sub_u32 v9, v1, v9")
    b("v_mul_u32_u24 v8, 3456, v8")
    b("v_lshl_add_u32 v8, v9, 4, v8")
    b("s_mul_i32 s34, s24, %d" % (17 * 7 * 3456))
    b("s_add_u32 s32, s32, s34")
    b("s_mul_i32 s34, s24, %d" % (17 * 1008))
    b("s_mov_b32 m0, s34")
    for n in range(17):
        b("s_nop 0")
        b("buffer_load_dwordx4 v8, s[28:31], s32 offen lds")
        b("s_add_u32 s32, s32, %d" % (7 * 3456))
        b("s_add_u32 m0, m0, 1008")
    b.wait_all()
    b("s_barrier")
    b("v_lshl_add_u32 v10, v5, 3, v4")
    b("v_mul_u32_u24 v10, 144, v10")
    b("s_lshr_b32 s38, s24, 1")
    b("s_mul_i32 s38, s38, 72")
    b("s_and_b32 s39, s24, 1")
    b("s_mul_i32 s39, s39, 40")
    b("s_add_u32 s38, s38, s39")
    b("v_lshlrev_b32 v11, 3, v3")
    b("v_add_u32 v11, s38, v11")
    b("v_and_b32 v12, 1, v3")
    b("v_mul_u32_u24 v12, 72, v12")
    b("v_add_u32 v12, 32, v12")
    b("s_cmp_eq_u32 s24, 4")
    b("s_cselect_b64 vcc, -1, 0")
    b("v_cndmask_b32 v11, v11, v12, vcc")
    b("v_add_u32 v10, v10, v11")
    b("v_add_u32 v11, %d, v10" % (9 * 4608))
    tr_reads(b, lambda j, h: (10, 4608 * j + 576 * h) if j < 9 else (11, 4608 * (j - 9) + 576 * h))
    centre(b)
    b("s_mul_i32 s36, s36, %d" % (4 * 72 * KB))
    b("s_add_u32 s36, s36, %d" % WQ_OFF)
    b("s_cmp_eq_u32 s24, 4")
    b("s_cbranch_scc1 L_k0_wqt")
    b("s_mul_i32 s38, s24, %d" % (72 * KB))
    b("s_lshl_b32 s39, s37, 10")
    b("s_add_u32 s36, s36, s38")
    b("s_add_u32 s36, s36, s39")
    b("s_branch L_k0_wqs")
    b("L_k0_wqt:")
    b("s_add_u32 s36, s36, %d" % (3 * KB))
    b("v_cmp_gt_u32 vcc, 8, v6")
    b("s_cmp_eq_u32 s37, 0")
    b("s_cbranch_scc1 L_k0_wqq")
    b("s_cmp_eq_u32 s37, 1")
    b("s_cbranch_scc1 L_k0_wqk")
    b("s_not_b64 vcc, vcc")
    b("L_k0_wqk:")
    b("s_mov_b64 exec, vcc")
    b("s_branch L_k0_wqs")
    b("L_k0_wqq:")
    b("s_add_u32 s36, s36, %d" % (72 * KB))
    for r in range(72):
        b("v_cndmask_b32 %s, v12, %s, vcc" % (vr(FR + r), vr(FR + r)))
    b("L_k0_wqs:")
    b("v_add_u32 v8, s36, v7")
    stores(b, 8, "0x1000")

    b("L_k0_fin:")
    stamp_end(b, cfg, 0, layered=False)
    b("L_k0_end:")
    b("s_endpgm")
    return b, [("k0_kernel", 96, 96)], [("k0_kernel", NWG0, 320, LDS0)]
```

```python
from asmlib import *
from asmlib import _regs
from layout import *
from common import *

XT = 18 * KB
STL = 144 * KB
LDSM = 148 * KB
SPIN = 1 << 21

SB = 5 * XT
QO, KO, VO = 0, 80 * 144, 160 * 144
SUMO = 240 * 144
SSQO = SUMO + 320
RSO = SSQO + 320
ACC_Q, ACC_K, ACC_V, ACC_E = 16, 32, 52, 72
XB, NXB = 92, 3
RES = 244
OACC, OF, OWB = 16, 48, 120
HB = 72 * KB
ACC, BIAS, RS, TMP, PK, ST = 16, 64, 72, 76, 78, 84
SEL, RB0, RB1, A9, MRES, OWN = 64, 72, 92, 80, 36, 48
NB = 30
MADV = ["s_add_u32 s30, s30, 0x1800", "s_addc_u32 s31, s31, 0"]
MBACK = ["s_sub_u32 s30, s30, 0x3000", "s_subb_u32 s31, s31, 0"]
QADV = ["s_add_u32 s30, s30, 0x2000", "s_addc_u32 s31, s31, 0"]
MFMA = "v_mfma_f32_16x16x32_bf16 %s, %s, %s, %s"


def is_scalar(t):
    return t.startswith("s_")


class Lab:
    n = 0


def lab(stem):
    Lab.n += 1
    return "L_%s_%d" % (stem, Lab.n)


def sync(b, cfg, cnt, tag, shadow, idle_work, nbr=False, tr=99):
    other, done, poll = lab("sy_o"), lab("sy_d"), lab("sy_p")
    b("s_lshl_b32 s40, s25, 8")
    b("s_add_u32 s40, s40, %d" % cnt)
    add64(b, 70, 68, "s40")
    if nbr:
        b("s_cmp_eq_u32 s25, 0")
        b("s_cselect_b32 s41, 0, 256")
        b("s_sub_u32 s66, s70, s41")
        b("s_subb_u32 s67, s71, 0")
    b("s_mov_b32 s28, 1")
    trace(b, cfg, tr)
    b.wait(vm=tag)
    b.wait_all(vm=False)
    trace(b, cfg, tr + 1)
    b("s_barrier")
    trace(b, cfg, tr + 2)
    b("s_cmp_lg_u32 s24, 0")
    b("s_cbranch_scc1 %s" % other)
    b("s_atomic_add s28, s[70:71], 0 glc")
    if nbr:
        b("s_load_dword s29, s[66:67], 0 glc")
    b("%s:" % other)
    idle_work(b)
    shadow(b)
    trace(b, cfg, tr + 3)
    b("s_cmp_lg_u32 s24, 0")
    b("s_cbranch_scc1 %s" % done)
    b("s_mov_b32 s41, 0")
    b("s_waitcnt lgkmcnt(0)")
    b("s_add_u32 s28, s28, 1")
    b("%s:" % poll)
    if nbr:
        b("s_and_b32 s28, s28, s29")
    b("s_cmp_eq_u32 s28, 8")
    b("s_cbranch_scc1 %s" % done)
    b("s_mov_b32 s28, 0")
    b("s_atomic_add s28, s[70:71], 0 glc")
    if nbr:
        b("s_mov_b32 s29, 0")
        b("s_atomic_add s29, s[66:67], 0 glc")
    b("s_add_u32 s41, s41, 1")
    b("s_cmp_gt_u32 s41, %d" % SPIN)
    b("s_waitcnt lgkmcnt(0)")
    b("s_cbranch_scc0 %s" % poll)
    b("%s:" % done)
    trace(b, cfg, tr + 4)
    b.wait(vm="wo")
    b("s_barrier")
    trace(b, cfg, tr + 5)


def qw(j, s):
    n = 4 * j + s
    return ar(4 * n, 4) if n < 64 else vr(224 + 4 * (n - 64), 4)


def qx(j, m):
    return vr(XB + 20 * (j % NXB) + 4 * m, 4)


def qw_load(j, s):
    return "global_load_dwordx4 %s, v7, s[30:31] offset:%d" % (qw(j, s), (j & 1) * 4096 - 4096 + 1024 * s)


def qw_base(b):
    b("s_lshl_b32 s46, s26, 2")
    b("s_add_u32 s46, s46, s24")
    b("s_mul_i32 s46, s46, %d" % (72 * KB))
    b("s_add_u32 s46, s46, %d" % (WQ_OFF + 4096))
    add64(b, 30, 22, "s46")


def qw_pre(b, js):
    for j in js:
        for s in range(3):
            b(qw_load(j, s), vm="pre")
        skip = lab("qp")
        b("s_cmp_ge_u32 s24, 2")
        b("s_cbranch_scc1 %s" % skip)
        b.L.append(qw_load(j, 3))
        b("%s:" % skip)
        if j & 1:
            for t in QADV: b(t)


def q_setup(b, layer):
    b("s_mov_b32 s3, %d" % layer)
    add64(b, 48, 22, LAYER_OFF + layer * LAYER_SZ)
    add64(b, 68, 22, FLAG_OFF + layer * FL_LAYER)
    ks = 64 if layer == 0 else 1024
    b("s_mov_b32 s38, %d" % ks)
    b("s_mov_b32 s39, %d" % (4 * ks))
    b("s_mul_i32 s42, s27, %d" % XT)
    b("s_lshl_b32 s43, s25, 2")
    b("s_max_u32 s43, s43, 1")
    b("s_sub_u32 s43, s43, 1")
    b("s_mul_i32 s43, s43, %d" % XT)
    b("s_mul_i32 s44, s24, %d" % ks)
    b("s_add_u32 s43, s43, s44")
    if layer == 0:
        add64(b, 32, 4, "s42")
        add64(b, 34, 4, "s43")
    else:
        b("s_add_u32 s42, s42, %d" % X2_OFF)
        b("s_add_u32 s43, s43, %d" % X2_OFF)
        add64(b, 32, 22, "s42")
        add64(b, 34, 22, "s43")
    b("s_add_u32 s36, s24, 1")
    b("s_mul_i32 s36, s36, %d" % XT)
    b("s_lshl_b32 s37, s24, 10")
    b("v_lshrrev_b32 v13, 1, v5")
    b("v_add_u32 v14, 2, v13")
    b("s_and_b32 s44, s26, 3")
    b("v_mov_b32 v15, s44")
    if layer == 0:
        b("v_lshrrev_b32 v8, 2, v1")
        b("v_mul_u32_u24 v8, 1152, v8")
        b("v_lshrrev_b32 v9, 5, v1")
        b("v_lshlrev_b32 v9, 1, v9")
        b("v_and_b32 v10, 3, v1")
        b("v_xor_b32 v9, v9, v10")
        b("v_lshl_add_u32 v8, v9, 4, v8")
        b("v_lshrrev_b32 v10, 3, v6")
        b("v_lshlrev_b32 v10, 1, v10")
        b("v_xor_b32 v9, v10, v5")
        for r in (13, 14, 15):
            b("v_xor_b32 v%d, v10, v%d" % (r, r))
        for r in (9, 13, 14, 15):
            b("v_lshl_add_u32 v%d, v6, 2, v%d" % (r, r))
    else:
        b("v_mov_b32 v8, v7")
        b("v_mov_b32 v9, v1")
        for r in (13, 14, 15):
            b("v_lshl_add_u32 v%d, v%d, 4, v6" % (r, r))
    b("v_lshlrev_b32 v9, 4, v9")
    b("v_add_u32 v10, %d, v9" % (3 * XT))
    b("v_and_b32 v11, 1, v5")
    b("v_lshlrev_b32 v11, 3, v11")
    b("s_lshl_b32 s44, s26, 11")
    b("s_add_u32 s44, s44, s36")
    b("s_lshr_b32 s45, s26, 2")
    b("s_lshl_b32 s45, s45, 10")
    b("s_add_u32 s45, s45, s36")
    b("s_add_u32 s45, s45, %d" % (16 * KB))
    for r, s in ((13, 44), (14, 44), (15, 45)):
        b("v_lshl_add_u32 v%d, v%d, 4, v11" % (r, r))
        b("v_add_u32 v%d, s%d, v%d" % (r, s, r))
    b("v_mul_u32_u24 v11, 144, v6")
    b("v_lshl_add_u32 v12, v5, 3, v11")
    b("s_lshl_b32 s47, s24, 5")
    b("s_add_u32 s47, s47, %d" % SB)
    b("v_add_u32 v11, s47, v12")


def x_items(js, qs, tag):
    out = []
    for j in js:
        out += [("s_mov_b32 m0, s36", None), ("s_add_u32 s36, s36, 0x400", None),
                ("global_load_lds_dwordx4 v8, s[32:33] sc1", tag),
                ("s_add_u32 s32, s32, s38", None), ("s_addc_u32 s33, s33, 0", None)]
    for q in qs:
        if q == 4:
            out += [("s_and_b32 s40, s24, 2", None), ("s_mul_i32 s41, s40, s38", None),
                    ("s_sub_u32 s34, s34, s41", None), ("s_subb_u32 s35, s35, 0", None),
                    ("s_lshl_b32 s41, s40, 10", None), ("s_sub_u32 s37, s37, s41", None)]
        out += [("s_mov_b32 m0, s37", None), ("s_add_u32 s37, s37, 0x1000", None),
                ("global_load_lds_dwordx4 v8, s[34:35] sc1", tag),
                ("s_add_u32 s34, s34, s39", None), ("s_addc_u32 s35, s35, 0", None)]
    return out


def qx_read(j, m):
    base, off = (9, m * XT + j * KB) if m < 3 else (10, (m - 3) * XT + j * KB)
    return "ds_read_b128 %s, %s offset:%d" % (qx(j, m), vr(base), off)


def q_gemm(b, cfg, kind):
    ns = 4 if kind == 0 else 3
    P = sum(cfg["WQP"])

    def w_items(js):
        out = []
        for j in js:
            out += [(qw_load(j, s), ("W", j)) for s in range(ns)]
            if j & 1:
                out += [(t, None) for t in QADV]
        return out

    xc_at = max(P, cfg.get("QXC", 7))
    q = w_items(range(P, xc_at)) + x_items(range(12, 18), (3, 4), "xC") + w_items(range(xc_at, 18))
    nun = {0: 19, 1: 19, 2: 14}[kind]
    nvm = sum(1 for t, tag in q if tag)
    span = (18 - cfg.get("QLEAD", 3)) * nun
    issued = 0
    gap = 0
    for j in range(2):
        for m in range(5):
            b(qx_read(j, m), lg=("X", j))
    for j in range(18):
        reads = [qx_read(j + 2, m) for m in range(5)] if j + 2 < 18 else []
        need = [("W", j)] + (["xC"] if j == 9 else [])
        while any(tag in need for t, tag in q):
            t, tag = q.pop(0)
            b(t, vm=tag)
            issued += 1 if tag else 0
            cfg.setdefault("_late", []).append(("q", kind, j))
        b.wait(vm=need + (["xB"] if j == 3 else []), lg=[("X", j)])
        if j in (3, 9):
            b("s_barrier")
        units = [(ACC_K + 4 * m, qw(j, 1), m) for m in range(5)]
        units += [(ACC_V + 4 * m, qw(j, 2), m) for m in range(5)]
        units += [(ACC_Q + 4 * (m - 1), qw(j, 0), m) for m in range(1, 5)]
        if kind == 0:
            units += [(ACC_E + 4 * m, qw(j, 3), m) for m in range(5)]
        elif kind == 1:
            units += [(ACC_E + 4 * m, qx(j, m), m) for m in range(5)]
        for acc, a, m in units:
            b(MFMA % (vr(acc, 4), a, qx(j, m), vr(acc, 4) if j else "0"))
            slots = 3
            if reads:
                if q and is_scalar(q[0][0]):
                    b(q.pop(0)[0])
                b(reads.pop(0), lg=("X", j + 2))
                slots = 1
            while q and slots:
                t, tag = q[0]
                if tag and issued * span > gap * nvm:
                    break
                q.pop(0)
                b(t, vm=tag)
                issued += 1 if tag else 0
                slots -= 1
            gap += 1
    assert not q
    stamp(b, cfg, 2)
    for t in range(4):
        b("ds_read_b64 %s, v%d offset:%d" % (vr(RES + 2 * t, 2), 13 + (t & 1), (t >> 1) * KB))
    b("ds_read_b64 %s, v15" % vr(RES + 8, 2))
    b("s_nop 2")


def pack_write(b, acc, addr, off, t):
    b("v_cvt_pk_bf16_f32 %s, %s, %s" % (vr(t), vr(acc), vr(acc + 1)))
    b("v_cvt_pk_bf16_f32 %s, %s, %s" % (vr(t + 1), vr(acc + 2), vr(acc + 3)))
    b("ds_write_b64 %s, %s offset:%d" % (vr(addr), vr(t, 2), off))


def main_writes(b):
    n = 0
    for acc, reg, ms in ((ACC_K, KO, range(5)), (ACC_V, VO, range(5)), (ACC_Q - 4, QO, range(1, 5))):
        for m in ms:
            pack_write(b, acc + 4 * m, 11, reg + 2304 * m, XB + 2 * (n % 8))
            n += 1


class Ring:
    def __init__(self):
        self.n = 0
        self.wo = 0

    def load(self, b, cnt):
        for _ in range(cnt):
            if self.wo < 22:
                b("global_load_lds_dwordx4 v7, s[34:35]", vm="wo")
                b("s_add_u32 m0, m0, 0x1000")
                b("s_add_u32 s34, s34, 0x1000")
                b("s_addc_u32 s35, s35, 0")
                if self.wo == 0:
                    b("s_cmp_ge_u32 s24, 2")
                    b("s_cbranch_scc1 L_q_wo_skip")
                    b.L.append("global_load_lds_dwordx4 v15, s[34:35]")
                    b("L_q_wo_skip:")
                    b("s_sub_u32 m0, m0, %d" % (21 * 4096))
                    b.L[-8] = "s_add_u32 m0, m0, %d" % (22 * 4096)
                    b("s_nop 0")
                self.wo += 1
            elif self.n < NB:
                b(mw_load(self.n), vm="pre")
                if self.n % 6 == 5:
                    for t in MADV: b(t)
                self.n += 1


def phase_q(b, cfg, ring):
    for t, tag in x_items(range(0, 6), (0, 1), "xA") + x_items(range(6, 12), (2,), "xB"):
        b(t, vm=tag)
    b.wait(vm="xA")
    b("s_barrier")
    stamp(b, cfg, 1)
    b("s_cmp_eq_u32 s24, 2")
    b("s_cbranch_scc1 L_q_w2")
    b("s_cmp_eq_u32 s24, 3")
    b("s_cbranch_scc1 L_q_w3")

    g = b.fork()
    q_gemm(g, cfg, 0)
    main_writes(g)
    g("s_cmp_eq_u32 s24, 1")
    g("s_cbranch_scc1 L_q_e1")
    g("v_lshrrev_b32 v3, 1, v5")
    g("v_mul_u32_u24 v3, %d, v3" % (VO - KO - 16))
    g("v_add_u32 v3, v3, v12")
    g("v_add_u32 v3, %d, v3" % (SB + KO + 128))
    for m in range(5):
        pack_write(g, ACC_E + 4 * m, 3, 2304 * m, XB + 16 + 2 * m)
    g("s_branch L_q_att")
    g("L_q_e1:")
    g("v_add_u32 v3, %d, v12" % (SB + QO + 128))
    g("v_lshlrev_b32 v4, 2, v6")
    g("v_add_u32 v4, %d, v4" % (SB + SUMO))
    g("s_mov_b32 exec_lo, 0")
    g("s_mov_b32 exec_hi, 0x0000ffff")
    for m in range(5):
        g("ds_write_b32 v4, %s offset:%d" % (vr(ACC_E + 4 * m), 64 * m))
    g("s_mov_b32 exec_lo, -1")
    g("s_mov_b32 exec_hi, 0")
    for m in range(1, 5):
        pack_write(g, ACC_E + 4 * m, 3, 2304 * m, XB + 16 + 2 * m)
    g("s_mov_b64 exec, -1")
    g("s_branch L_q_att")
    b.extend(g)

    b("L_q_w2:")
    g = b.fork()
    q_gemm(g, cfg, 1)
    main_writes(g)
    g("v_and_b32 v3, 3, v6")
    g("v_cmp_eq_u32 s[50:51], 1, v3")
    g("v_cmp_eq_u32 s[52:53], 2, v3")
    g("v_cmp_eq_u32 s[54:55], 3, v3")
    g("v_lshlrev_b32 v4, 2, v6")
    g("v_add_u32 v4, %d, v4" % (SB + SSQO))
    for m in range(5):
        a = ACC_E + 4 * m
        for r in range(1, 4):
            g("v_cndmask_b32 %s, %s, %s, s[%d:%d]" % (vr(a), vr(a), vr(a + r), 48 + 2 * r, 49 + 2 * r))
    g("s_mov_b32 exec_lo, 0x00f0000f")
    g("s_mov_b32 exec_hi, 0xf0000f00")
    for m in range(5):
        g("ds_write_b32 v4, %s offset:%d" % (vr(ACC_E + 4 * m), 64 * m))
    g("s_mov_b64 exec, -1")
    g("s_branch L_q_att")
    b.extend(g)

    b("L_q_w3:")
    g = b.fork()
    q_gemm(g, cfg, 2)
    main_writes(g)
    b.extend(g)

    b("L_q_att:")
    b.vmq, b.lgq = [], []
    Q, KR, VR, Z, RSV, O, SL = 16, 28, 124, 220, 228, 28, 46
    b("v_add_u32 v3, 2, v1")
    b("v_mul_u32_u24 v12, 144, v3")
    b("v_add_u32 v13, s47, v12")
    b("s_lshl_b32 s46, s24, 2")
    b("s_add_u32 s46, s46, %d" % (SB + 128))
    b("v_add_u32 v14, s46, v12")
    b("v_lshlrev_b32 v2, 2, v1")
    b("v_add_u32 v2, %d, v2" % SB)
    b("v_lshlrev_b32 v4, 2, v6")
    b("v_add_u32 v4, %d, v4" % SB)
    b("s_mul_i32 s40, s26, %d" % WO_CG)
    b("s_lshl_b32 s41, s24, 10")
    b("s_add_u32 s40, s40, s41")
    b("s_add_u32 s40, s40, %d" % WO_OFF)
    add64(b, 34, 22, "s40")
    b("s_mov_b32 m0, s41")
    b("v_add_u32 v15, %d, v7" % (21 * 4096))
    b("s_lshl_b32 s40, s26, 2")
    b("s_add_u32 s40, s40, s24")
    b("s_mul_i32 s40, s40, %d" % WM_STREAM)
    b("s_add_u32 s40, s40, %d" % (WM_OFF + 3072))
    add64(b, 30, 22, "s40")
    b.wait_all(vm=False)
    b("s_barrier")
    stamp(b, cfg, 3)

    st = dict(calls=0, done=0)

    def bg(n=1):
        st["calls"] += n
        want = min(cfg["RING"][0], -(-st["calls"] * cfg["RING"][0] // cfg.get("BGSPAN", 20)))
        ring.load(b, want - st["done"])
        st["done"] = want

    b("ds_read_b32 v236, v2 offset:%d" % (SUMO + 64), lg="st")
    b("ds_read_b32 v237, v2 offset:%d" % (SSQO + 64), lg="st")
    b("ds_read_b32 v238, v4 offset:%d" % SUMO, lg="st")
    b("ds_read_b32 v239, v4 offset:%d" % SSQO, lg="st")

    def row(dst, reg, w, tag):
        off = reg + 288 * (7 - w)
        b("ds_read_b128 %s, v13 offset:%d" % (vr(dst, 4), off), lg=tag)
        b("ds_read_b128 %s, v13 offset:%d" % (vr(dst + 4, 4), off + 16), lg=tag)
        b("ds_read_b32 %s, v14 offset:%d" % (vr(dst + 8), off), lg=tag)

    row(Q, QO, 0, "q")
    row(KR, KO, 0, ("k", 0))
    row(KR + 12, KO, 1, ("k", 1))
    bg(2)
    b.wait(lg="st")
    for t in (236, 238):
        b("v_mul_f32 %s, 0x%08x, %s" % (vr(t), f32(1.0 / 576), vr(t)))
        b("v_mul_f32 %s, 0x%08x, %s" % (vr(t + 1), f32(1.0 / 576), vr(t + 1)))
        b("v_fma_f32 %s, -%s, %s, %s" % (vr(t), vr(t), vr(t), vr(t + 1)))
        b("v_max_f32 %s, 0, %s" % (vr(t), vr(t)))
        b("v_add_f32 %s, 0x%08x, %s" % (vr(t), f32(1e-5), vr(t)))
        b("v_rsq_f32 %s, %s" % (vr(t), vr(t)))
    bg()
    b("s_nop 0")
    b("ds_write_b32 v2, v236 offset:%d" % (RSO + 64))
    b("ds_write_b32 v4, v238 offset:%d" % RSO)
    b("v_add_u32 v3, %d, v2" % (RSO + 8))
    for w in range(0, 8, 2):
        b("ds_read2_b32 %s, v3 offset0:%d offset1:%d" % (vr(RSV + w, 2), 2 * (7 - w), 2 * (6 - w)), lg="rs")
    for w in range(8):
        b("v_mov_b32 %s, 0" % vr(Z + w))
    for w in range(0, 8, 2):
        if w + 2 < 8:
            row(KR + 12 * (w + 2), KO, w + 2, ("k", w + 2))
            row(KR + 12 * (w + 3), KO, w + 3, ("k", w + 3))
        else:
            row(VR, VO, 0, ("v", 0))
            row(VR + 12, VO, 1, ("v", 1))
        bg()
        b.wait(lg=["q", ("k", w), ("k", w + 1)])
        for d in range(9):
            for ww in (w, w + 1):
                b("v_dot2c_f32_bf16 %s, %s, %s" % (vr(Z + ww), vr(Q + d), vr(KR + 12 * ww + d)))
        bg()
    for w in range(2, 5):
        row(VR + 12 * w, VO, w, ("v", w))
    b("v_mul_f32 v236, 0x%08x, v236" % f32(18 ** -0.5 * LOG2E))
    for w in range(8):
        b("v_mul_f32 %s, %s, %s" % (vr(Z + w), vr(Z + w), vr(RSV + w)))
    bg()
    for w in range(8):
        b("v_mul_f32 %s, %s, v236" % (vr(Z + w), vr(Z + w)))
    b("s_cmp_lg_u32 s25, 0")
    b("s_cbranch_scc1 L_q_nomask")
    b("v_mov_b32 v237, 0x%08x" % f32(-1e9 * LOG2E))
    for w in range(1, 8):
        b("v_cmp_le_u32 vcc, %d, v1" % (2 * w))
        b("s_nop 1")
        b("v_cndmask_b32 %s, v237, %s, vcc" % (vr(Z + w), vr(Z + w)))
    b("L_q_nomask:")
    b("v_max3_f32 v237, %s, %s, %s" % (vr(Z), vr(Z + 1), vr(Z + 2)))
    b("v_max3_f32 v238, %s, %s, %s" % (vr(Z + 3), vr(Z + 4), vr(Z + 5)))
    b("v_max3_f32 v237, v237, %s, %s" % (vr(Z + 6), vr(Z + 7)))
    b("v_max_f32 v237, v237, v238")
    for w in range(8):
        b("v_sub_f32 %s, %s, v237" % (vr(Z + w), vr(Z + w)))
    bg()
    for w in range(8):
        b("v_exp_f32 %s, %s" % (vr(Z + w), vr(Z + w)))
    bg()
    b.wait(lg=[("v", 0), ("v", 1)])
    for w in range(5, 8):
        row(VR + 12 * w, VO, w, ("v", w))
    b("v_add_f32 v237, %s, %s" % (vr(Z), vr(Z + 1)))
    b("v_add_f32 v238, %s, %s" % (vr(Z + 2), vr(Z + 3)))
    b("v_add_f32 v239, %s, %s" % (vr(Z + 4), vr(Z + 5)))
    b("v_add_f32 v240, %s, %s" % (vr(Z + 6), vr(Z + 7)))
    b("v_add_f32 v237, v237, v238")
    b("v_add_f32 v239, v239, v240")
    b("v_add_f32 v237, v237, v239")
    b("v_rcp_f32 v237, v237")
    bg()
    for w in range(8):
        b("v_mul_f32 %s, %s, %s" % (vr(Z + w), vr(Z + w), vr(RSV + w)))
    for w in range(8):
        b("v_mul_f32 %s, %s, v237" % (vr(Z + w), vr(Z + w)))
    bg()
    for w in range(8):
        b("v_cvt_pk_bf16_f32 %s, %s, 0" % (vr(SL + 2 * w), vr(Z + w)))
        b("v_lshlrev_b32 %s, 16, %s" % (vr(SL + 2 * w + 1), vr(SL + 2 * w)))
    for w in range(8):
        bg()
        b.wait(lg=[("v", w)])
        for d in range(9):
            for hh in range(2):
                o = vr(O + 2 * d + hh)
                if w == 0:
                    b("v_dot2_f32_bf16 %s, %s, %s, 0" % (o, vr(VR + d), vr(SL + hh)))
                else:
                    b("v_dot2c_f32_bf16 %s, %s, %s" % (o, vr(VR + 12 * w + d), vr(SL + 2 * w + hh)))
    bg(99)
    b("v_lshrrev_b32 v3, 4, v1")
    b("v_mul_u32_u24 v3, %d, v3" % XT)
    b("v_lshl_add_u32 v3, v6, 4, v3")
    b("s_mul_i32 s40, s25, %d" % (4 * XT))
    b("s_lshl_b32 s41, s26, 11")
    b("s_lshl_b32 s42, s24, 9")
    b("s_add_u32 s41, s41, s42")
    b("s_add_u32 s41, s41, s40")
    b("v_add_u32 v8, s41, v3")
    b("s_lshl_b32 s40, s25, 5")
    b("s_lshl_b32 s41, s26, 2")
    b("s_add_u32 s40, s40, s41")
    b("s_add_u32 s40, s40, s24")
    b("s_lshl_b32 s40, s40, 8")
    b("s_add_u32 s40, s40, %d" % L_OT)
    b("v_lshl_add_u32 v9, v1, 2, s40")
    for d in range(9):
        b("v_cvt_pk_bf16_f32 %s, %s, %s" % (vr(Q + d), vr(O + 2 * d), vr(O + 2 * d + 1)))
    assert L_O == 0
    b("global_store_dwordx4 v8, %s, s[48:49] sc1" % vr(Q, 4), vm="pub")
    b("global_store_dwordx4 v8, %s, s[48:49] offset:256 sc1" % vr(Q + 4, 4), vm="pub")
    b("global_store_dword v9, %s, s[48:49] sc1" % vr(Q + 8), vm="pub")
    stamp(b, cfg, 4)
    trace(b, cfg, 29)


def ow(j, t):
    return vr(OWB + 20 * (j % 3) + 4 * t, 4)


def ow_read(j, t):
    n = 5 * j + t
    base, off = (7, n * KB) if n < 60 else (9, (n - 60) * KB)
    return "ds_read_b128 %s, %s offset:%d" % (ow(j, t), vr(base), off)


def o_setup(b):
    b("v_add_u32 v9, %d, v7" % (60 * KB))
    for j in range(2):
        for t in range(5):
            b(ow_read(j, t), lg=("W", j))
    b("s_mul_i32 s36, s27, %d" % XT)
    b("s_add_u32 s37, s36, 4096")
    add64(b, 32, 48, "s37")
    b("s_lshl_b32 s37, s25, 13")
    b("s_lshl_b32 s42, s24, 6")
    b("s_add_u32 s37, s37, s42")
    b("s_add_u32 s37, s37, %d" % (L_OT + 4096))
    b("v_lshlrev_b32 v8, 10, v5")
    b("v_lshl_add_u32 v8, v6, 2, v8")
    b("v_add_u32 v8, s37, v8")
    b("s_lshl_b32 s37, s26, 11")
    b("s_add_u32 s37, s37, s36")
    b("s_add_u32 s37, s37, %d" % L_X1)
    b("v_add_u32 v12, s37, v7")
    b("s_lshl_b32 s37, s26, 8")
    b("s_add_u32 s37, s37, s36")
    b("s_add_u32 s37, s37, %d" % (L_X1 + 16 * KB))
    b("v_lshlrev_b32 v13, 4, v6")
    b("v_lshl_add_u32 v13, v5, 3, v13")
    b("v_add_u32 v13, s37, v13")
    b("s_lshl_b32 s37, s27, 10")
    b("s_lshl_b32 s42, s26, 7")
    b("s_add_u32 s37, s37, s42")
    b("s_add_u32 s37, s37, %d" % L_ST)
    b("v_lshl_add_u32 v14, v6, 3, s37")


def phase_o(b, cfg, ring):
    q = []
    for j in range(16):
        q.append(("global_load_dwordx4 %s, v7, s[32:33] offset:%d sc1" % (vr(OF + 4 * j, 4), (j % 8) * KB - 4096), ("o", j)))
        if j == 7:
            q += [("s_add_u32 s32, s32, 0x2000", None), ("s_addc_u32 s33, s33, 0", None)]
    for j in (16, 17):
        for h in range(4):
            q.append(("global_load_dword %s, v8, s[48:49] offset:%d sc1" % (vr(OF + 4 * j + h), (j - 17) * 4096 + 256 * h), ("o", j)))
    first = cfg.get("OFIRST", 8)
    while sum(1 for t in b.vmq if isinstance(t, tuple) and t[0] == "o") < first:
        t, tag = q.pop(0)
        b(t, vm=tag)
    nring = cfg["RING"][3]
    for j in range(18):
        assert not any(tag == ("o", j) for t, tag in q)
        b.wait(vm=[("o", j)], lg=[("W", j)])
        if j in (0, 8, 16):
            trace(b, cfg, 36 + j // 8)
        for t in range(5):
            a = vr(OACC + 4 * t, 4)
            b(MFMA % (a, ow(j, t), vr(OF + 4 * j, 4), a if j else "0"))
            if t in (0, 2):
                while q and not q[0][1]:
                    b(q.pop(0)[0])
                if q:
                    tt, tag = q.pop(0)
                    b(tt, vm=tag)
                elif nring and t == 0:
                    ring.load(b, 1)
                    nring -= 1
            if j + 2 < 18:
                b(ow_read(j + 2, t), lg=("W", j + 2))
    assert not q
    ring.load(b, nring)
    stamp(b, cfg, 5)
    trace(b, cfg, 39)
    T = OF
    for t in range(5):
        for p in range(2):
            b("v_lshlrev_b32 %s, 16, %s" % (vr(T + 8 + 4 * t + 2 * p), vr(RES + 2 * t + p)))
            b("v_and_b32 %s, 0xffff0000, %s" % (vr(T + 9 + 4 * t + 2 * p), vr(RES + 2 * t + p)))
    for t in range(5):
        for p in range(2):
            a = OACC + 4 * t + 2 * p
            b("v_pk_add_f32 %s, %s, %s" % (vr(a, 2), vr(a, 2), vr(T + 8 + 4 * t + 2 * p, 2)))
            b("v_cvt_pk_bf16_f32 %s, %s, %s" % (vr(RES + 2 * t + p), vr(a), vr(a + 1)))
        if t == 1:
            b("global_store_dwordx4 v12, %s, s[48:49] sc1" % vr(RES, 4), vm="pub")
        if t == 3:
            b("global_store_dwordx4 v12, %s, s[48:49] offset:1024 sc1" % vr(RES + 4, 4), vm="pub")
    b("v_mov_b32 v2, 0x3f803f80")
    b("v_mov_b32 %s, 0" % vr(T + 2))
    b("v_mov_b32 %s, 0" % vr(T + 3))
    b("s_mov_b32 exec_hi, 0")
    b("global_store_dwordx2 v13, %s, s[48:49] sc1" % vr(RES + 8, 2), vm="pub")
    for r in (8, 9, -1, 0, 1, 2, 3, 4, 5, 6, 7):
        if r < 0:
            b("s_mov_b32 exec_hi, -1")
            continue
        b("v_dot2c_f32_bf16 %s, %s, v2" % (vr(T + 2), vr(RES + r)))
        b("v_dot2c_f32_bf16 %s, %s, %s" % (vr(T + 3), vr(RES + r), vr(RES + r)))
    b("s_nop 2")
    for op in ("v_permlane16_swap_b32", "v_permlane32_swap_b32"):
        b("v_mov_b32 %s, %s" % (vr(T + 4), vr(T + 2)))
        b("v_mov_b32 %s, %s" % (vr(T + 5), vr(T + 3)))
        b("s_nop 0")
        b("%s %s, %s" % (op, vr(T + 2), vr(T + 4)))
        b("%s %s, %s" % (op, vr(T + 3), vr(T + 5)))
        b("v_add_f32 %s, %s, %s" % (vr(T + 2), vr(T + 2), vr(T + 4)))
        b("v_add_f32 %s, %s, %s" % (vr(T + 3), vr(T + 3), vr(T + 5)))
    b("s_mov_b64 exec, 0xffff")
    b("global_store_dwordx2 v14, %s, s[48:49] sc1" % vr(T + 2, 2), vm="pub")
    b("s_mov_b64 exec, -1")


def mx(j, m):
    n = 4 * j + m
    return ar(120 + 4 * n, 4) if n < 34 else vr(104 + 4 * (n - 34), 4)


def slot(n):
    return ar(4 * (n % NB), 4)


def mw_load(n):
    return "global_load_dwordx4 %s, v7, s[30:31] offset:%d" % (slot(n), (n % 6) * KB - 3072)


class M:
    pass


def aset2(u):
    return (1, 2, 0, 1, 0, 1, 0, 1, 2)[u]


def build_mfmas(cfg):
    G = cfg.get("G", 6)
    GD = cfg.get("GD", 4)
    std = [list(range(k, min(k + G, 18))) for k in range(0, 18, G)]
    dbl = [list(range(k, min(k + GD, 16))) for k in range(0, 16, GD)] + [[16, 17]]
    out = []

    def add(seg, aset, m, j, n, src):
        x = M()
        x.seg, x.aset, x.m, x.j, x.n, x.src = seg, aset, m, j, n, src
        out.append(x)

    for t in range(9):
        for grp in std:
            for m in range(4):
                for j in grp:
                    add(("p1", t), t % 2, m, j, 18 * t + j, "X")
    for grp in dbl:
        for m in range(4):
            for u in range(2):
                for j in grp:
                    add(("p2", u), aset2(u), m, j, w2_pos(u, j), "H")
    for u in range(2, 9):
        for grp in std:
            for m in range(4):
                for j in grp:
                    add(("p2", u), aset2(u), m, j, w2_pos(u, j), "H")
    return out


def mish_groups(t, m):
    a = ACC + 16 * (t % 2) + 4 * m
    bi = BIAS + 4 * (t % 2)
    G = []
    for p in (0, 2):
        x, y = a + p, a + p + 1
        G.append(["v_fma_f32 %s, %s, %s, %s" % (vr(x), vr(x), vr(RS + m), vr(bi + p)),
                  "v_fma_f32 %s, %s, %s, %s" % (vr(y), vr(y), vr(RS + m), vr(bi + p + 1))])
        G.append(["v_exp_f32 %s, %s" % (vr(TMP), vr(x))])
        G.append(["v_exp_f32 %s, %s" % (vr(TMP + 1), vr(y))])
        G.append(["v_fma_f32 %s, %s, s56, s56" % (vr(TMP + q), vr(TMP + q)) for q in range(2)])
        G.append(["v_fma_f32 %s, -%s, %s, -0.5" % (vr(TMP + q), vr(TMP + q), vr(TMP + q)) for q in range(2)])
        G.append(["v_rcp_f32 %s, %s" % (vr(TMP), vr(TMP))])
        G.append(["v_rcp_f32 %s, %s" % (vr(TMP + 1), vr(TMP + 1))])
        G.append(["v_fmac_f32 %s, %s, %s" % (vr(x), vr(x), vr(TMP)),
                  "v_fmac_f32 %s, %s, %s" % (vr(y), vr(y), vr(TMP + 1))])
    pk = PK + 2 * (m & 1)
    G.append(["v_cvt_pk_bf16_f32 %s, %s, %s" % (vr(pk), vr(a), vr(a + 1)),
              "v_cvt_pk_bf16_f32 %s, %s, %s" % (vr(pk + 1), vr(a + 2), vr(a + 3))])
    base, off = (11, 8192 * t + KB * m) if t < 4 else (12, 8192 * (t - 4) + KB * m)
    G.append(["ds_write_b64 %s, %s offset:%d" % (vr(base), vr(pk, 2), off)])
    return G


def m_setup(b):
    b("v_add_u32 v8, %d, v7" % (2 * XT))
    b("v_add_u32 v9, %d, v7" % HB)
    b("v_add_u32 v10, %d, v7" % (HB + 32768))
    b("s_lshr_b32 s46, s24, 1")
    b("s_lshl_b32 s46, s46, 12")
    b("s_and_b32 s47, s24, 1")
    b("s_lshl_b32 s47, s47, 3")
    b("s_add_u32 s46, s46, s47")
    b("v_add_u32 v11, s46, v9")
    b("v_add_u32 v12, s46, v10")
    b("s_mul_i32 s46, s26, 2304")
    b("s_lshl_b32 s47, s24, 6")
    b("s_add_u32 s46, s46, s47")
    b("s_add_u32 s46, s46, %d" % B1_OFF)
    b("v_lshl_add_u32 v13, v5, 4, s46")
    b("s_lshl_b32 s46, s27, 10")
    b("s_add_u32 s46, s46, %d" % L_ST)
    add64(b, 34, 48, "s46")
    b("s_lshl_b32 s37, s24, 10")
    b("s_add_u32 s37, s37, %d" % STL)
    b("v_lshlrev_b32 v14, 10, v5")
    b("v_lshl_add_u32 v14, v6, 3, v14")
    b("v_add_u32 v14, %d, v14" % STL)
    b("s_mov_b32 s56, 0x%08x" % f32(0.5 ** 0.5))
    b("s_mul_i32 s46, s25, %d" % (36 * 16 * KB))
    b("s_lshl_b32 s47, s24, 14")
    b("s_add_u32 s46, s46, s47")
    b("s_add_u32 s46, s46, %d" % L_PART)
    add64(b, 58, 48, "s46")
    b("s_lshl_b32 s46, s25, 12")
    b("s_lshl_b32 s47, s24, 7")
    b("s_add_u32 s46, s46, s47")
    b("s_add_u32 s46, s46, %d" % FL_P)
    add64(b, 72, 68, "s46")
    b("s_mul_i32 s46, s27, %d" % XT)
    b("s_add_u32 s46, s46, %d" % L_X1)
    add64(b, 32, 48, "s46")
    b("s_mul_i32 s36, s24, %d" % XT)
    b("s_mov_b32 m0, s37")
    b("s_mov_b32 s54, 1")
    for t in range(2):
        b("global_load_dwordx4 %s, v13, s[22:23] offset:%d" % (vr(BIAS + 4 * t, 4), 256 * t), vm="pre")


def send_ptr(u):
    sp, fp = 60 + 2 * (u % 2), 64 + 2 * (u % 2)
    if u == 0:
        return ["s_lshl_b32 s57, s26, 11", "s_add_u32 s57, s57, %d" % (32 * 16 * KB),
                "s_add_u32 s%d, s58, s57" % sp, "s_addc_u32 s%d, s59, 0" % (sp + 1)]
    return ["s_add_u32 s57, s26, %d" % u, "s_and_b32 s57, s57, 7", "s_lshl_b32 s55, s57, 9",
            "s_lshl_b32 s57, s57, 16", "s_add_u32 s57, s57, %d" % (u * 2048),
            "s_add_u32 s%d, s58, s57" % sp, "s_addc_u32 s%d, s59, 0" % (sp + 1),
            "s_add_u32 s%d, s72, s55" % fp, "s_addc_u32 s%d, s73, 0" % (fp + 1)]


def flag_store(u):
    fp = 64 + 2 * (u % 2)
    return ["s_atomic_add s54, s[%d:%d], %d" % (fp, fp + 1, 4 * u)]


def tail_setup():
    I = []
    I += ["v_lshrrev_b32 v2, 2, v6", "v_and_b32 v3, 1, v6", "v_cmp_eq_u32 vcc, v2, v5", "v_lshlrev_b32 v3, 4, v3",
          "v_mov_b32 v4, 0x3f80", "v_lshlrev_b32 v3, v3, v4", "v_cndmask_b32 v3, 0, v3, vcc", "v_and_b32 v2, 2, v6",
          "v_cmp_eq_u32 vcc, 0, v2", "v_mov_b32 %s, 0" % vr(SEL + 2), "v_mov_b32 %s, 0" % vr(SEL + 3), "v_and_b32 v4, 7, v1",
          "v_cndmask_b32 %s, 0, v3, vcc" % vr(SEL), "v_sub_u32 %s, v3, %s" % (vr(SEL + 1), vr(SEL))]
    for r in (4, 6):
        I += ["v_mov_b32 %s, %s" % (vr(SEL + r), vr(SEL)), "v_mov_b32 %s, %s" % (vr(SEL + r + 1), vr(SEL + 1))]
    I += ["v_add_u32 v4, s74, v4"]
    I += ["v_lshl_add_u32 v8, v5, 4, v4", "v_lshrrev_b32 v2, 3, v6", "v_lshlrev_b32 v8, 4, v8", "v_lshrrev_b32 v3, 1, v5",
          "v_lshl_add_u32 v8, v2, 11, v8", "v_lshl_add_u32 v10, v3, 4, v4", "v_add_u32 v8, s75, v8", "v_and_b32 v2, 1, v5",
          "v_lshlrev_b32 v10, 4, v10", "v_add_u32 v9, s76, v7", "v_lshl_add_u32 v10, v2, 3, v10", "v_mul_u32_u24 v11, %d, v2" % XT,
          "v_add_u32 v10, s77, v10", "v_add_u32 v13, 0x2000, v8"]
    return [I[k:k + 2] for k in range(0, len(I), 2)]


def tail_scalars():
    return ["s_and_b32 s74, s26, 1", "s_lshl_b32 s74, s74, 3",
            "s_lshr_b32 s75, s26, 2", "s_lshl_b32 s75, s75, 10", "s_and_b32 s55, s26, 2", "s_lshl_b32 s55, s55, 2",
            "s_add_u32 s75, s75, s55", "s_add_u32 s75, s75, %d" % (32 * 16 * KB + 4096),
            "s_lshl_b32 s76, s26, 1", "s_lshr_b32 s55, s24, 1", "s_add_u32 s76, s76, s55", "s_lshl_b32 s76, s76, 10",
            "s_and_b32 s55, s24, 1", "s_lshl_b32 s55, s55, 3", "s_add_u32 s76, s76, s55",
            "s_lshr_b32 s77, s26, 1", "s_mul_i32 s77, s77, %d" % XT, "s_lshl_b32 s55, s24, 9", "s_add_u32 s77, s77, s55",
            "s_add_u32 s77, s77, %d" % (16 * KB),
            "s_lshl_b32 s55, s26, 16", "s_add_u32 s55, s55, %d" % (2048 + 4096), "s_add_u32 s52, s58, s55", "s_addc_u32 s53, s59, 0",
            "s_add_u32 s50, s52, 0x2000", "s_addc_u32 s51, s53, 0",
            "s_lshl_b32 s55, s26, 9", "s_add_u32 s78, s72, s55", "s_addc_u32 s79, s73, 0"]


def rbuf(u):
    return (RB0, RB1)[u % 2]


def recv_loads(u):
    base, k = ("s[52:53]", u - 1) if u <= 4 else ("s[50:51]", u - 5)
    return ["global_load_dwordx4 %s, v7, %s offset:%d sc1" % (vr(rbuf(u) + 4 * h, 4), base, (2 * k + h) * KB - 4096) for h in range(2)]


def recv_mfmas(u):
    out = []
    for h in range(2):
        for p in range(2):
            a = vr(OWN + 4 * (2 * h + p), 4)
            out.append(MFMA % (a, vr(SEL + 2 * p, 4), vr(rbuf(u) + 4 * h, 4), a if u > 1 else "0"))
    return out


def assert_free(vq, i, reg):
    r = _regs(reg)
    for it in vq:
        if it["e"] - 8 > i:
            break
        for t in it["g"]:
            p = parse(t)
            if p is not None:
                assert not (r & (p.r | p.w)), (i, reg, t)


def phase_m(b, cfg, ring, ool):
    def xd(js, tag):
        out = []
        for j in js:
            if j % 4 == 0 and j:
                out += [("s_add_u32 m0, m0, 0x1000", None), ("s_add_u32 s32, s32, 0x1000", None), ("s_addc_u32 s33, s33, 0", None)]
            out.append(("global_load_lds_dwordx4 v7, s[32:33] offset:%d sc1" % ((j % 4) * KB), tag))
        return out

    b("global_load_lds_dwordx4 v7, s[34:35] sc1", vm="xA")
    b("s_mov_b32 m0, s36")
    b("s_nop 0")
    xall = xd(range(0, 6), "xA") + xd(range(6, 12), "xB") + xd(range(12, 18), "xC")
    while sum(1 for t in b.vmq if t in ("xA", "xB", "xC")) < 1 + cfg.get("MFIRST", 12):
        t, tag = xall.pop(0)
        b(t, vm=tag)
    SV = ACC + 16
    gq = xall

    mf = build_mfmas(cfg)
    N = len(mf)
    first_w, last_w, first_b, last_acc, last_x, seg_start = {}, {}, {}, {}, {}, {}
    for i, x in enumerate(mf):
        first_w.setdefault(x.n, i)
        last_w[x.n] = i
        first_b.setdefault((x.src, x.j, x.m), i)
        last_acc[(x.seg, x.m)] = i
        seg_start.setdefault(x.seg, i)
        if x.src == "X":
            last_x[(x.j, x.m)] = i

    def bread(src, j, m):
        if src == "X":
            base, off = (7, m * XT + j * KB) if m < 2 else (8, (m - 2) * XT + j * KB)
        else:
            base, off = (9, 4096 * j + KB * m) if j < 8 else (10, 4096 * (j - 8) + KB * m)
        return "ds_read_b128 %s, %s offset:%d" % (mx(j, m), vr(base), off)

    def stage(src, j):
        if src == "X":
            return "xA" if j < 6 else "xB" if j < 12 else "xC"
        return "hA" if j < 14 else "hB" if j < 16 else "hC"

    LA = cfg.get("LA", 12)
    dq = sorted(first_b, key=lambda k: first_b[k])
    vq = []

    def V(e, g, tag=None, wait=None, force=False):
        vq.append(dict(e=e, g=g, tag=tag, wait=wait, force=force))

    sti = []
    for step in (8, 4, 2):
        sti += ["v_add_f32 %s, %s, %s" % (vr(SV + q), vr(SV + q), vr(SV + q + step)) for q in range(step)]
    sti += ["v_mul_f32 %s, 0x%08x, %s" % (vr(SV + q), f32(1.0 / 576), vr(SV + q)) for q in range(2)]
    sti += ["v_fma_f32 %s, -%s, %s, %s" % (vr(SV), vr(SV), vr(SV), vr(SV + 1)), "v_max_f32 %s, 0, %s" % (vr(SV), vr(SV))]
    stg = [sti[k:k + 2] for k in range(0, len(sti), 2)]
    stg += [["v_add_f32 %s, 0x%08x, %s" % (vr(SV), f32(1e-5), vr(SV)), "v_rsq_f32 %s, %s" % (vr(SV), vr(SV))],
            ["v_mul_f32 %s, 0x%08x, %s" % (vr(RS + q), f32(LOG2E), vr(SV)) for q in range(2)],
            ["s_nop 0", "v_permlane16_swap_b32 %s, %s" % (vr(RS), vr(RS + 1))],
            ["v_mov_b32 %s, %s" % (vr(RS + 2 + q), vr(RS + q)) for q in range(2)],
            ["s_nop 0", "v_permlane32_swap_b32 %s, %s" % (vr(RS), vr(RS + 2))],
            ["v_permlane32_swap_b32 %s, %s" % (vr(RS + 1), vr(RS + 3))]]
    for q in range(4):
        V(cfg.get("STAT_AT", 42) - 12, ["ds_read2_b64 %s, v14 offset0:%d offset1:%d" % (vr(SV + 4 * q, 4), 32 * q, 32 * q + 16)], tag="st", force=True)
    for n, g in enumerate(stg):
        V(cfg.get("STAT_AT", 42), g, wait="st" if n == 0 else None, force=True)
    for t in range(9):
        for m in range(4):
            gs = mish_groups(t, m)
            for n, g in enumerate(gs):
                V(last_acc[(("p1", t), m)] + 4, g, tag=("hw", t) if n == len(gs) - 1 else None,
                  wait=("bias", t) if (m == 0 and n == 0) else None)

    def stbuf(u):
        return ST + (8 if u == 1 else 0)

    def cvts(u):
        st = stbuf(u)
        a = ACC + 16 * aset2(u)
        for m in range(4):
            V(last_acc[(("p2", u), m)] + 8, ["v_cvt_pk_bf16_f32 %s, %s, %s" % (vr(st + 2 * m + r), vr(a + 4 * m + 2 * r), vr(a + 4 * m + 2 * r + 1))
                                            for r in range(2)])

    def stores(u):
        st, sp = stbuf(u), 60 + 2 * (u % 2)
        if cfg.get("NOST"):
            return ["s_nop 0"]
        return ["global_store_dwordx4 v7, %s, s[%d:%d] offset:%d%s" % (vr(st + 4 * h, 4), sp, sp + 1, h * KB, cfg.get("sc_part", " sc1")) for h in range(2)]

    UP = cfg.get("UP", 5)
    PB = rbuf(UP - 1)

    def poll(u):
        g = ["s_load_dword s28, s[78:79], %d glc" % (4 * u)]
        if u == UP - 2:
            g.append("s_load_dword s29, s[72:73], 64 glc")
        return g

    def test(u):
        return (["s_lshr_b32 s29, s29, 3", "s_and_b32 s28, s28, s29"] if u == UP - 2 else []) + ["s_cmp_eq_u32 s28, 1"]

    def check(e, u):
        slow, back = lab("rc_s"), lab("rc_b")
        V(e, ["s_waitcnt lgkmcnt(0)"] + test(u) + ["s_cbranch_scc0 %s" % slow, "%s:" % back])
        ool("%s:" % slow)
        ool("s_mov_b32 s41, 0")
        ool("%s_l:" % slow)
        for t in poll(u): ool(t)
        ool("s_add_u32 s41, s41, 1")
        ool("s_cmp_gt_u32 s41, %d" % SPIN)
        ool("s_waitcnt lgkmcnt(0)")
        ool("s_cbranch_scc1 %s" % back)
        for t in test(u): ool(t)
        ool("s_cbranch_scc0 %s_l" % slow)
        ool("s_branch %s" % back)

    E = {u: last_acc[(("p2", u), 3)] + 8 for u in range(9)}
    PAT, SAT, FAT = cfg.get("POLL_AT", 40), cfg.get("SUM_AT", 48), cfg.get("FLAG_AT", 40)
    piece = ["global_load_dwordx2 %s, v%d, s[58:59] offset:%d sc1" % (vr(PB + 2 * q, 2), (8, 13)[q >> 1], (q & 1) * 4096 - 4096) for q in range(4)]
    for u in range(1, 8):
        if u == 1:
            cvts(0)
        cvts(u)
        e = E[u]
        if u >= 3:
            check(e, u - 2)
        if u == 1:
            V(e, stores(0), tag=("st", 1))
        V(e, stores(u), tag=("st", u))
        if u == 1:
            for g in tail_setup():
                V(e, g)
        if u >= 3 and not cfg.get("NORECV"):
            V(e, recv_loads(u - 2), tag=("r", u - 2))
        if u == UP:
            V(e, piece[:2], tag="r9")
            V(e, piece[2:], tag="r9")
        if u == 7:
            V(e, ["ds_read_b64 %s, v9" % vr(MRES, 2), "ds_read_b64 %s, v9 offset:%d" % (vr(MRES + 2, 2), XT)], tag="res")
            V(e, ["ds_read_b64 %s, v9 offset:%d" % (vr(MRES + 4 + 2 * q, 2), (2 + q) * XT) for q in range(2)], tag="res")
            V(e, ["ds_read_b64 %s, v10" % vr(MRES + 8, 2)], tag="res")
            V(e, poll(6))
            check(e + cfg.get("FLAG7", 32), 6)
            V(e, flag_store(7), wait=("st", 7))
            V(e, recv_loads(6), tag=("r", 6))
        ev = []
        if 2 <= u <= 6:
            ev.append((PAT, poll(u - 1), None))
        if u <= 6:
            ev.append((FAT, flag_store(u) + (["s_atomic_add s54, s[72:73], 64"] if u == 1 else []), ("st", u)))
        if 3 <= u <= 6:
            ev.append((SAT, recv_mfmas(u - 2), ("r", u - 2)))
        if u == UP:
            ev.append((SAT, [MFMA % (vr(A9, 4), vr(SEL + 4, 4), vr(PB, 4), "0"), MFMA % (vr(A9, 4), vr(SEL + 4, 4), vr(PB + 4, 4), vr(A9, 4))], "r9"))
        for at, g, wt in sorted(ev, key=lambda z: z[0]):
            V(e + at, g, wait=wt)

    hw_left = {t: 4 for t in range(9)}
    done = set()
    sq = []
    nextw = ring.n
    last_load = -4
    bias_next = 2
    ptr_next = 0
    sq_age = 0
    D0 = seg_start[("p2", 2)] if cfg.get("D0", 1) else seg_start[("p2", 0)]
    drain_n0 = {}

    def ensure_stage(sg):
        if sg in done:
            return True
        if sg[0] == "x":
            while any(tag == sg for t, tag in gq):
                t, tag = gq.pop(0)
                b(t, vm=tag)
            b.wait(vm=sg)
        else:
            t = {"hA": 6, "hB": 7, "hC": 8}[sg]
            if hw_left[t]:
                return False
            b.wait(lg=[("hw", tt) for tt in range(t + 1)])
        b("s_barrier")
        done.add(sg)
        return True

    def emit_v():
        it = vq.pop(0)
        if it["wait"]:
            assert not any(tag == it["wait"] for t, tag in gq)
            b.wait(vm=[it["wait"]], lg=[it["wait"]])
        if any(t.startswith("s_") and not t.startswith(("s_nop", "s_mov", "s_atomic", "s_load")) for t in it["g"]):
            while sq:
                b(sq.pop(0))
        for t in it["g"]:
            b(t, vm=it["tag"], lg=it["tag"])
        if it["tag"] and it["tag"][0] == "hw":
            hw_left[it["tag"][1]] -= 1

    ensure_stage("xA")
    stamp(b, cfg, 6)
    trace(b, cfg, 47)
    while first_b[dq[0]] < LA:
        k = dq.pop(0)
        b(bread(*k), lg=k)
    for i, x in enumerate(mf):
        if i == 0:
            b.wait(lg=[(x.src, x.j, x.m)])
        if i % 72 == 0:
            trace(b, cfg, i // 72)
        a = vr(ACC + 16 * x.aset + 4 * x.m, 4)
        if x.j == 0 and x.seg != ("p2", 8):
            assert_free(vq, i, a)
        b(MFMA % (a, slot(x.n), mx(x.j, x.m), a if (x.j or x.seg == ("p2", 8)) else "0"))
        used = False
        budget = 2
        if i + 1 < N:
            y = mf[i + 1]
            ky = (y.src, y.j, y.m)
            while ky in dq:
                while not ensure_stage(stage(dq[0][0], dq[0][1])):
                    assert vq[0]["e"] <= i
                    emit_v()
                k = dq.pop(0)
                b(bread(*k), lg=k)
                cfg.setdefault("_late", []).append((i, k))
            assert y.n < nextw
            wl = [ky]
            if vq and vq[0]["e"] <= i and vq[0]["wait"]:
                wl.append(vq[0]["wait"])
            wv = []
            if b.pending(vm=[("W", y.n)]):
                wv = [("W", z.n) for z in mf[i + 1:i + 1 + cfg.get("WGRAN", 3)] if z.n < nextw]
            used = b.wait(vm=wv + wl, lg=wl)
        if ptr_next < 8 and not sq and i >= seg_start[("p2", ptr_next)] + (40 if ptr_next >= 2 else 0):
            assert_free(vq, i, sr(60 + 2 * (ptr_next % 2), 2))
            assert_free(vq, i, sr(64 + 2 * (ptr_next % 2), 2))
            sq += send_ptr(ptr_next)
            if ptr_next == 1:
                sq += tail_scalars()
            ptr_next += 1
        sq_age = sq_age + 1 if sq else 0
        if sq and (not used or sq_age > 1):
            b(sq.pop(0))
            sq_age = 0
        paced = True
        if cfg.get("DRAIN") and nextw < 324 and i >= D0:
            n0 = drain_n0.setdefault(0, nextw)
            paced = (i - D0) * (324 - n0) >= (nextw - n0) * (first_w[323] - cfg["DRAIN"] - D0)
        if gq:
            if i - last_load >= 2:
                while not gq[0][1]:
                    b(gq.pop(0)[0])
                t, tag = gq.pop(0)
                b(t, vm=tag)
                last_load = i
        elif nextw < 324 and (nextw < NB or i >= last_w[nextw - NB]) and i - last_load >= cfg.get("LDGAP", 3) and not any(t in MADV + MBACK for t in sq) and paced:
            b(mw_load(nextw), vm=("W", nextw))
            if nextw % 6 == 5 and nextw < 323:
                pos = 0
                while pos < len(sq) and sq[pos].startswith(("s_addc", "s_subb")):
                    pos += 1
                sq[pos:pos] = MBACK if (cfg.get("FAKEW") and nextw % 18 == 17) else MADV
            nextw += 1
            last_load = i
            if x.seg[0] == "p2" or x.seg == ("p1", 0):
                budget -= 1
        if bias_next < 9 and i >= seg_start[("p1", bias_next)] - cfg.get("BIAS_AT", 4):
            assert_free(vq, i, vr(BIAS + 4 * (bias_next % 2), 4))
            b("global_load_dwordx4 %s, v13, s[22:23] offset:%d" % (vr(BIAS + 4 * (bias_next % 2), 4), 256 * bias_next), vm=("bias", bias_next))
            bias_next += 1
        while dq and budget > 0 and first_b[dq[0]] <= i + LA + (12 if budget == 1 and x.seg[0] == "p2" else 0):
            k = dq[0]
            if k[0] == "H" and last_x[(k[1], k[2])] > i:
                break
            if not ensure_stage(stage(k[0], k[1])):
                break
            dq.pop(0)
            b(bread(*k), lg=k)
            budget -= 1
        if vq and vq[0]["e"] <= i and (budget == 2 or vq[0]["force"] or (x.seg[0] == "p1" and x.seg[1] > 0)):
            emit_v()
    assert not dq and not sq and nextw == 324 and not gq
    while vq:
        emit_v()

    trace(b, cfg, 18)
    pl, got = lab("rB_p"), lab("rB_g")
    b(poll(7)[0])
    for u in (5, 6):
        b.wait(vm=[("r", u)])
        for t in recv_mfmas(u): b(t)
    trace(b, cfg, 19)
    qw_base(b)
    b("s_mov_b32 s41, 0")
    b("%s:" % pl)
    b.wait_all(vm=False)
    b("s_cmp_eq_u32 s28, 1")
    b("s_cbranch_scc1 %s" % got)
    b(poll(7)[0])
    b("s_add_u32 s41, s41, 1")
    b("s_cmp_gt_u32 s41, %d" % SPIN)
    b("s_cbranch_scc0 %s" % pl)
    b("s_waitcnt lgkmcnt(0)")
    b("%s:" % got)
    trace(b, cfg, 20)
    for t in recv_loads(7): b(t, vm=("r", 7))
    skip = lab("m_np")
    b("s_cmp_lg_u32 s3, 0")
    b("s_cbranch_scc1 %s" % skip)
    g = b.fork()
    qw_pre(g, range(0, cfg["WQP"][0]))
    b.extend(g)
    b("s_mul_i32 s40, s25, %d" % (4 * XT))
    b("s_add_u32 s40, s40, %d" % X2_OFF)
    b("v_add_u32 v10, s40, v10")
    b("s_lshl_b32 s41, s26, 11")
    b("s_lshl_b32 s42, s24, 9")
    b("s_add_u32 s41, s41, s42")
    b("s_add_u32 s41, s41, s40")
    b("v_lshrrev_b32 v3, 1, v5")
    b("v_lshl_add_u32 v3, v3, 4, v6")
    b("v_lshl_add_u32 v11, v3, 4, v11")
    b("v_add_u32 v11, s41, v11")
    b("s_branch %s_e" % skip)
    b("%s:" % skip)
    b("s_mul_i32 s40, s25, %d" % (4 * XT))
    b("s_lshl_b32 s42, s24, 5")
    b("s_add_u32 s40, s40, s42")
    b("s_lshl_b32 s41, s26, 7")
    b("s_add_u32 s41, s41, s40")
    b("v_mul_u32_u24 v2, 1152, v6")
    b("v_lshrrev_b32 v3, 1, v5")
    b("v_lshl_add_u32 v3, v3, 4, v2")
    b("v_add3_u32 v11, v11, v3, s41")
    b("s_mul_i32 s41, s26, %d" % (8 * 1152))
    b("s_add_u32 s41, s41, s40")
    b("s_add_u32 s41, s41, 1024")
    b("v_lshl_add_u32 v10, v5, 3, v2")
    b("v_add_u32 v10, s41, v10")
    b("%s_e:" % skip)
    b("v_add_u32 v12, %d, v11" % (2 * XT))
    b("s_mov_b32 s56, 0x%08x" % f32(LN2))
    b.wait(lg="res")
    T = ACC
    for r in range(10):
        b("v_lshlrev_b32 %s, 16, %s" % (vr(T + 2 * r), vr(MRES + r)))
        b("v_and_b32 %s, 0xffff0000, %s" % (vr(T + 2 * r + 1), vr(MRES + r)))
    for r in range(4):
        b("v_add_f32_dpp %s, %s, %s row_ror:8 row_mask:0xf bank_mask:0xf" % (vr(ST + r), vr(A9 + r), vr(A9 + r)))
    for r in range(4):
        b("v_fmac_f32 %s, s56, %s" % (vr(T + 16 + r), vr(ST + r)))
    for r in range(2):
        b("v_cvt_pk_bf16_f32 %s, %s, %s" % (vr(MRES + 8 + r), vr(T + 16 + 2 * r), vr(T + 17 + 2 * r)))
    b.wait(vm=[("r", 7)])
    trace(b, cfg, 21)
    for t in recv_mfmas(7): b(t)
    b("s_nop 4")
    for r in range(8):
        b("v_fmac_f32 %s, s56, %s" % (vr(T + 2 * r), vr(OWN + 2 * r)))
        b("v_fmac_f32 %s, s56, %s" % (vr(T + 2 * r + 1), vr(OWN + 2 * r + 1)))
        b("v_cvt_pk_bf16_f32 %s, %s, %s" % (vr(MRES + r), vr(T + 2 * r), vr(T + 2 * r + 1)))
    for h in range(2):
        for p in range(2):
            b("v_permlane16_swap_b32 %s, %s" % (vr(MRES + 4 * h + p), vr(MRES + 4 * h + 2 + p)))

    trace(b, cfg, 22)

    def out_stores(bb, base, fl):
        bb("global_store_dwordx4 v11, %s, %s%s" % (vr(MRES, 4), base, fl), vm="pub")
        bb("global_store_dwordx4 v12, %s, %s%s" % (vr(MRES + 4, 4), base, fl), vm="pub")
        bb("s_mov_b32 exec_lo, 0x00ff00ff")
        bb("s_mov_b32 exec_hi, 0x00ff00ff")
        bb("global_store_dwordx2 v10, %s, %s%s" % (vr(MRES + 8, 2), base, fl), vm="pub")
        bb("s_mov_b64 exec, -1")
    return out_stores


def gen_mega(cfg):
    cfg.setdefault("RING", [14, 5, 10, 8, 5, 10])
    cfg.setdefault("WQP", [1, 1, 2])
    for k in ("RING", "WQP"):
        if isinstance(cfg[k], str):
            cfg[k] = [int(c) for c in cfg[k].split(".")]
    Lab.n = 0
    b = B()
    ool = B()
    entry(b, "mega_kernel")
    b("s_cmp_ge_u32 s2, 256")
    b("s_cbranch_scc1 L_mega_end")
    probe(b, cfg, "s", layered=False)
    load_args(b)
    stamp(b, cfg, 0)
    b("v_and_b32 v1, 63, v0")
    b("v_lshrrev_b32 v2, 6, v0")
    b("v_lshrrev_b32 v5, 4, v1")
    b("v_readfirstlane_b32 s24, v2")
    b("v_and_b32 v6, 15, v1")
    b("v_lshlrev_b32 v7, 4, v1")
    decode_wg(b, cfg, 25, 26)
    b("s_lshl_b32 s27, s25, 2")
    b("s_add_u32 s27, s27, s24")
    b("s_waitcnt lgkmcnt(0)")
    qw_base(b)
    qw_pre(b, range(sum(cfg["WQP"])))
    q_setup(b, 0)
    b("L_layer:")
    b.vmq = ["pre"] * 20
    ring = Ring()
    phase_q(b, cfg, ring)
    R = cfg["RING"]
    ring.load(b, R[1])
    sync(b, cfg, FL_C1, "pub", lambda g: ring.load(g, R[2]), o_setup, tr=30)
    assert ring.wo == 22
    phase_o(b, cfg, ring)
    trace(b, cfg, 40)
    ring.load(b, R[4])
    sync(b, cfg, FL_C2, "pub", lambda g: ring.load(g, R[5]), m_setup, tr=41)
    assert ring.n <= NB
    out_stores = phase_m(b, cfg, ring, ool)
    probe(b, cfg, "e")
    b("s_cmp_lg_u32 s3, 0")
    b("s_cbranch_scc1 L_final")
    g = b.fork()
    out_stores(g, "s[22:23]", " sc1")
    stamp_end(g, cfg, 1, wait=False)
    W = cfg["WQP"]
    qw_pre(g, range(W[0], W[0] + W[1]))
    sync(g, cfg, FL_C3, "pub", lambda q: qw_pre(q, range(W[0] + W[1], sum(W))), lambda q: q_setup(q, 1), nbr=True)
    stamp(g, cfg, 0)
    g("s_branch L_layer")
    b.extend(g)
    b("L_final:")
    out_stores(b, "s[18:19]", cfg.get("sc_out", ""))
    stamp_end(b, cfg, 1)
    probe_end(b, cfg)
    b("L_mega_end:")
    b("s_endpgm")
    b.extend(ool)
    b("L_mega_last:")
    return b, [("mega_kernel", 512, 256)], [("mega_kernel", 256, 256, LDSM)]
```

```python
from asmlib import *
from asmlib import _regs
from layout import *
from common import *
import prep

XT = 18 * KB
STL = 144 * KB
LDSM = 158 * KB
SPIN = 1 << 21

SB = 5 * XT
QO, KO, VO = 0, 80 * 144, 160 * 144
SUMO = 240 * 144
SSQO = SUMO + 320
RSO = SSQO + 320
ACC_Q, ACC_K, ACC_V, ACC_E = 16, 32, 52, 72
XB, NXB = 92, 3
RES = 244
OACC, OF, OWB = 16, 48, 120
HB = 72 * KB
ACC, BIAS, RS, TMP, PK, ST = 16, 64, 72, 76, 78, 84
SEL, RB0, RB1, A9, MRES, OWN = 64, 72, 92, 80, 36, 48
NB = 30
MADV = ["s_add_u32 s30, s30, 0x1800", "s_addc_u32 s31, s31, 0"]
MBACK = ["s_sub_u32 s30, s30, 0x3000", "s_subb_u32 s31, s31, 0"]
QADV = ["s_add_u32 s30, s30, 0x2000", "s_addc_u32 s31, s31, 0"]
RDY = "global_load_dword v152, v153, s[22:23] sc1"
MFMA = "v_mfma_f32_16x16x32_bf16 %s, %s, %s, %s"


def is_scalar(t):
    return t.startswith("s_")


class Lab:
    n = 0
    wf = ""


def lab(stem):
    Lab.n += 1
    return "L_%s_%d" % (stem, Lab.n)


def sync(b, cfg, cnt, tag, shadow, idle_work, nbr=False, tr=99):
    other, done, poll = lab("sy_o"), lab("sy_d"), lab("sy_p")
    b("s_lshl_b32 s40, s25, 8")
    b("s_add_u32 s40, s40, %d" % cnt)
    add64(b, 70, 68, "s40")
    if nbr:
        b("s_cmp_eq_u32 s25, 0")
        b("s_cselect_b32 s41, 0, 256")
        b("s_sub_u32 s66, s70, s41")
        b("s_subb_u32 s67, s71, 0")
    b("s_mov_b32 s28, 1")
    trace(b, cfg, tr)
    b.wait(vm=tag)
    b.wait_all(vm=False)
    trace(b, cfg, tr + 1)
    b("s_barrier")
    trace(b, cfg, tr + 2)
    b("s_cmp_lg_u32 s24, 0")
    b("s_cbranch_scc1 %s" % other)
    b("s_atomic_add s28, s[70:71], 0 glc")
    if nbr:
        b("s_load_dword s29, s[66:67], 0 glc")
    b("%s:" % other)
    idle_work(b)
    shadow(b)
    trace(b, cfg, tr + 3)
    b("s_cmp_lg_u32 s24, 0")
    b("s_cbranch_scc1 %s" % done)
    b("s_mov_b32 s41, 0")
    b("s_waitcnt lgkmcnt(0)")
    b("s_add_u32 s28, s28, 1")
    b("%s:" % poll)
    if nbr:
        b("s_and_b32 s28, s28, s29")
    b("s_cmp_eq_u32 s28, 8")
    b("s_cbranch_scc1 %s" % done)
    b("s_mov_b32 s28, 0")
    b("s_atomic_add s28, s[70:71], 0 glc")
    if nbr:
        b("s_mov_b32 s29, 0")
        b("s_atomic_add s29, s[66:67], 0 glc")
    b("s_add_u32 s41, s41, 1")
    b("s_cmp_gt_u32 s41, %d" % SPIN)
    b("s_waitcnt lgkmcnt(0)")
    b("s_cbranch_scc0 %s" % poll)
    b("%s:" % done)
    trace(b, cfg, tr + 4)
    b.wait(vm="wo")
    b("s_barrier")
    trace(b, cfg, tr + 5)


def qw(j, s):
    n = 4 * j + s
    return ar(4 * n, 4) if n < 64 else vr(224 + 4 * (n - 64), 4)


def qx(j, m):
    return vr(XB + 20 * (j % NXB) + 4 * m, 4)


def qw_load(j, s):
    return "global_load_dwordx4 %s, v7, s[30:31] offset:%d%s" % (qw(j, s), (j & 1) * 4096 - 4096 + 1024 * s, Lab.wf)


def qw_base(b):
    b("s_lshl_b32 s46, s26, 2")
    b("s_add_u32 s46, s46, s24")
    b("s_mul_i32 s46, s46, %d" % (72 * KB))
    b("s_add_u32 s46, s46, %d" % (WQ_OFF + 4096))
    add64(b, 30, 22, "s46")


def qw_pre(b, js):
    for j in js:
        for s in range(3):
            b(qw_load(j, s), vm="pre")
        skip = lab("qp")
        b("s_cmp_ge_u32 s24, 2")
        b("s_cbranch_scc1 %s" % skip)
        b.L.append(qw_load(j, 3))
        b("%s:" % skip)
        if j & 1:
            for t in QADV: b(t)


def q_setup(b, layer):
    b("s_mov_b32 s3, %d" % layer)
    add64(b, 48, 22, LAYER_OFF + layer * LAYER_SZ)
    add64(b, 68, 22, FLAG_OFF + layer * FL_LAYER)
    ks = 64 if layer == 0 else 1024
    b("s_mov_b32 s38, %d" % ks)
    b("s_mov_b32 s39, %d" % (4 * ks))
    b("s_mul_i32 s42, s27, %d" % XT)
    b("s_lshl_b32 s43, s25, 2")
    b("s_max_u32 s43, s43, 1")
    b("s_sub_u32 s43, s43, 1")
    b("s_mul_i32 s43, s43, %d" % XT)
    b("s_mul_i32 s44, s24, %d" % ks)
    b("s_add_u32 s43, s43, s44")
    if layer == 0:
        add64(b, 32, 4, "s42")
        add64(b, 34, 4, "s43")
    else:
        b("s_add_u32 s42, s42, %d" % X2_OFF)
        b("s_add_u32 s43, s43, %d" % X2_OFF)
        add64(b, 32, 22, "s42")
        add64(b, 34, 22, "s43")
    b("s_add_u32 s36, s24, 1")
    b("s_mul_i32 s36, s36, %d" % XT)
    b("s_lshl_b32 s37, s24, 10")
    b("v_lshrrev_b32 v13, 1, v5")
    b("v_add_u32 v14, 2, v13")
    b("s_and_b32 s44, s26, 3")
    b("v_mov_b32 v15, s44")
    if layer == 0:
        b("v_lshrrev_b32 v8, 2, v1")
        b("v_mul_u32_u24 v8, 1152, v8")
        b("v_lshrrev_b32 v9, 5, v1")
        b("v_lshlrev_b32 v9, 1, v9")
        b("v_and_b32 v10, 3, v1")
        b("v_xor_b32 v9, v9, v10")
        b("v_lshl_add_u32 v8, v9, 4, v8")
        b("v_lshrrev_b32 v10, 3, v6")
        b("v_lshlrev_b32 v10, 1, v10")
        b("v_xor_b32 v9, v10, v5")
        for r in (13, 14, 15):
            b("v_xor_b32 v%d, v10, v%d" % (r, r))
        for r in (9, 13, 14, 15):
            b("v_lshl_add_u32 v%d, v6, 2, v%d" % (r, r))
    else:
        b("v_mov_b32 v8, v7")
        b("v_mov_b32 v9, v1")
        for r in (13, 14, 15):
            b("v_lshl_add_u32 v%d, v%d, 4, v6" % (r, r))
    b("v_lshlrev_b32 v9, 4, v9")
    b("v_add_u32 v10, %d, v9" % (3 * XT))
    b("v_and_b32 v11, 1, v5")
    b("v_lshlrev_b32 v11, 3, v11")
    b("s_lshl_b32 s44, s26, 11")
    b("s_add_u32 s44, s44, s36")
    b("s_lshr_b32 s45, s26, 2")
    b("s_lshl_b32 s45, s45, 10")
    b("s_add_u32 s45, s45, s36")
    b("s_add_u32 s45, s45, %d" % (16 * KB))
    for r, s in ((13, 44), (14, 44), (15, 45)):
        b("v_lshl_add_u32 v%d, v%d, 4, v11" % (r, r))
        b("v_add_u32 v%d, s%d, v%d" % (r, s, r))
    b("v_mul_u32_u24 v11, 144, v6")
    b("v_lshl_add_u32 v12, v5, 3, v11")
    b("s_lshl_b32 s47, s24, 5")
    b("s_add_u32 s47, s47, %d" % SB)
    b("v_add_u32 v11, s47, v12")
    b("s_lshl_b32 s44, s26, 8")
    b("s_sub_u32 s44, %d, s44" % (FL_CO - FL_CW))
    b("v_and_b32 v154, 1, v1")
    b("v_mul_u32_u24 v153, s44, v154")
    b("v_sub_u32 v153, %d, v153" % (FLAG_OFF + FL_CO))
    b("v_mad_u32_u24 v154, v154, 9, 9")


def x_items(js, qs, tag):
    out = []
    for j in js:
        out += [("s_mov_b32 m0, s36", None), ("s_add_u32 s36, s36, 0x400", None),
                ("global_load_lds_dwordx4 v8, s[32:33] sc1", tag),
                ("s_add_u32 s32, s32, s38", None), ("s_addc_u32 s33, s33, 0", None)]
    for q in qs:
        if q == 4:
            out += [("s_and_b32 s40, s24, 2", None), ("s_mul_i32 s41, s40, s38", None),
                    ("s_sub_u32 s34, s34, s41", None), ("s_subb_u32 s35, s35, 0", None),
                    ("s_lshl_b32 s41, s40, 10", None), ("s_sub_u32 s37, s37, s41", None)]
        out += [("s_mov_b32 m0, s37", None), ("s_add_u32 s37, s37, 0x1000", None),
                ("global_load_lds_dwordx4 v8, s[34:35] sc1", tag),
                ("s_add_u32 s34, s34, s39", None), ("s_addc_u32 s35, s35, 0", None)]
    return out


def qx_read(j, m):
    base, off = (9, m * XT + j * KB) if m < 3 else (10, (m - 3) * XT + j * KB)
    return "ds_read_b128 %s, %s offset:%d" % (qx(j, m), vr(base), off)


def q_gemm(b, cfg, kind):
    ns = 4 if kind == 0 else 3
    P = sum(cfg["WQP"])

    def w_items(js):
        out = []
        for j in js:
            out += [(qw_load(j, s), ("W", j)) for s in range(ns)]
            if j & 1:
                out += [(t, None) for t in QADV]
        return out

    xc_at = max(P, cfg.get("QXC", 7))
    q = w_items(range(P, xc_at)) + x_items(range(12, 18), (3, 4), "xC") + w_items(range(xc_at, 18))
    if cfg["ONE"]:
        q.append((RDY, "rdy"))
    b.vmq = ["xB"] * 7 + [("W", j) for j in range(P) for s in range(ns)]
    b.vmq[-1] = "J"
    nun = {0: 19, 1: 19, 2: 14}[kind]
    nvm = sum(1 for t, tag in q if tag)
    span = (18 - cfg.get("QLEAD", 3)) * nun
    issued = 0
    gap = 0
    for j in range(2):
        for m in range(5):
            b(qx_read(j, m), lg=("X", j))
    for j in range(18):
        reads = [qx_read(j + 2, m) for m in range(5)] if j + 2 < 18 else []
        need = [("W", j)] + (["xC"] if j == 9 else [])
        while any(tag in need for t, tag in q):
            t, tag = q.pop(0)
            b(t, vm=tag)
            issued += 1 if tag else 0
            cfg.setdefault("_late", []).append(("q", kind, j))
        b.wait(vm=need + (["J"] if j == min(3, P - 1) else []), lg=[("X", j)])
        if j in (3, 9):
            b("s_barrier")
        units = [(ACC_K + 4 * m, qw(j, 1), m) for m in range(5)]
        units += [(ACC_V + 4 * m, qw(j, 2), m) for m in range(5)]
        units += [(ACC_Q + 4 * (m - 1), qw(j, 0), m) for m in range(1, 5)]
        if kind == 0:
            units += [(ACC_E + 4 * m, qw(j, 3), m) for m in range(5)]
        elif kind == 1:
            units += [(ACC_E + 4 * m, qx(j, m), m) for m in range(5)]
        for acc, a, m in units:
            b(MFMA % (vr(acc, 4), a, qx(j, m), vr(acc, 4) if j else "0"))
            slots = 3
            if reads:
                if q and is_scalar(q[0][0]):
                    b(q.pop(0)[0])
                b(reads.pop(0), lg=("X", j + 2))
                slots = 1
            while q and slots:
                t, tag = q[0]
                if tag and issued * span > gap * nvm:
                    break
                q.pop(0)
                b(t, vm=tag)
                issued += 1 if tag else 0
                slots -= 1
            gap += 1
    assert not q
    stamp(b, cfg, 2)
    for t in range(4):
        b("ds_read_b64 %s, v%d offset:%d" % (vr(RES + 2 * t, 2), 13 + (t & 1), (t >> 1) * KB))
    b("ds_read_b64 %s, v15" % vr(RES + 8, 2))
    b("s_nop 2")


def pack_write(b, acc, addr, off, t):
    b("v_cvt_pk_bf16_f32 %s, %s, %s" % (vr(t), vr(acc), vr(acc + 1)))
    b("v_cvt_pk_bf16_f32 %s, %s, %s" % (vr(t + 1), vr(acc + 2), vr(acc + 3)))
    b("ds_write_b64 %s, %s offset:%d" % (vr(addr), vr(t, 2), off))


def main_writes(b):
    n = 0
    for acc, reg, ms in ((ACC_K, KO, range(5)), (ACC_V, VO, range(5)), (ACC_Q - 4, QO, range(1, 5))):
        for m in ms:
            pack_write(b, acc + 4 * m, 11, reg + 2304 * m, XB + 2 * (n % 8))
            n += 1


class Ring:
    def __init__(self):
        self.n = 0
        self.wo = 0

    def load(self, b, cnt):
        for _ in range(cnt):
            if self.wo < 22:
                b("global_load_lds_dwordx4 v7, s[34:35]" + Lab.wf, vm="wo")
                b("s_add_u32 m0, m0, 0x1000")
                b("s_add_u32 s34, s34, 0x1000")
                b("s_addc_u32 s35, s35, 0")
                if self.wo == 0:
                    b("s_cmp_ge_u32 s24, 2")
                    b("s_cbranch_scc1 L_q_wo_skip")
                    b.L.append("global_load_lds_dwordx4 v15, s[34:35]" + Lab.wf)
                    b("L_q_wo_skip:")
                    b("s_sub_u32 m0, m0, %d" % (21 * 4096))
                    b.L[-8] = "s_add_u32 m0, m0, %d" % (22 * 4096)
                    b("s_nop 0")
                self.wo += 1
            elif self.n < NB:
                b(mw_load(self.n), vm="pre")
                if self.n % 6 == 5:
                    for t in MADV: b(t)
                self.n += 1


def phase_q(b, cfg, ring, ool):
    for t, tag in x_items(range(0, 6), (0, 1), "xA") + x_items(range(6, 12), (2,), "xB"):
        b(t, vm=tag)
    b.wait(vm="xA")
    b("s_barrier")
    b("L_q_join:")
    stamp(b, cfg, 1)
    b("s_cmp_eq_u32 s24, 2")
    b("s_cbranch_scc1 L_q_w2")
    b("s_cmp_eq_u32 s24, 3")
    b("s_cbranch_scc1 L_q_w3")

    g = b.fork()
    q_gemm(g, cfg, 0)
    main_writes(g)
    g("s_cmp_eq_u32 s24, 1")
    g("s_cbranch_scc1 L_q_e1")
    g("v_lshrrev_b32 v3, 1, v5")
    g("v_mul_u32_u24 v3, %d, v3" % (VO - KO - 16))
    g("v_add_u32 v3, v3, v12")
    g("v_add_u32 v3, %d, v3" % (SB + KO + 128))
    for m in range(5):
        pack_write(g, ACC_E + 4 * m, 3, 2304 * m, XB + 16 + 2 * m)
    g("s_branch L_q_att")
    g("L_q_e1:")
    g("v_add_u32 v3, %d, v12" % (SB + QO + 128))
    g("v_lshlrev_b32 v4, 2, v6")
    g("v_add_u32 v4, %d, v4" % (SB + SUMO))
    g("s_mov_b32 exec_lo, 0")
    g("s_mov_b32 exec_hi, 0x0000ffff")
    for m in range(5):
        g("ds_write_b32 v4, %s offset:%d" % (vr(ACC_E + 4 * m), 64 * m))
    g("s_mov_b32 exec_lo, -1")
    g("s_mov_b32 exec_hi, 0")
    for m in range(1, 5):
        pack_write(g, ACC_E + 4 * m, 3, 2304 * m, XB + 16 + 2 * m)
    g("s_mov_b64 exec, -1")
    g("s_branch L_q_att")
    b.extend(g)

    b("L_q_w2:")
    g = b.fork()
    q_gemm(g, cfg, 1)
    main_writes(g)
    g("v_and_b32 v3, 3, v6")
    g("v_cmp_eq_u32 s[50:51], 1, v3")
    g("v_cmp_eq_u32 s[52:53], 2, v3")
    g("v_cmp_eq_u32 s[54:55], 3, v3")
    g("v_lshlrev_b32 v4, 2, v6")
    g("v_add_u32 v4, %d, v4" % (SB + SSQO))
    for m in range(5):
        a = ACC_E + 4 * m
        for r in range(1, 4):
            g("v_cndmask_b32 %s, %s, %s, s[%d:%d]" % (vr(a), vr(a), vr(a + r), 48 + 2 * r, 49 + 2 * r))
    g("s_mov_b32 exec_lo, 0x00f0000f")
    g("s_mov_b32 exec_hi, 0xf0000f00")
    for m in range(5):
        g("ds_write_b32 v4, %s offset:%d" % (vr(ACC_E + 4 * m), 64 * m))
    g("s_mov_b64 exec, -1")
    g("s_branch L_q_att")
    b.extend(g)

    b("L_q_w3:")
    g = b.fork()
    q_gemm(g, cfg, 2)
    main_writes(g)
    b.extend(g)

    b("L_q_att:")
    b.vmq, b.lgq = [], []
    Q, KR, VR, Z, RSV, O, SL = 16, 28, 124, 220, 228, 28, 46
    b("v_add_u32 v3, 2, v1")
    b("v_mul_u32_u24 v12, 144, v3")
    b("v_add_u32 v13, s47, v12")
    b("s_lshl_b32 s46, s24, 2")
    b("s_add_u32 s46, s46, %d" % (SB + 128))
    b("v_add_u32 v14, s46, v12")
    b("v_lshlrev_b32 v2, 2, v1")
    b("v_add_u32 v2, %d, v2" % SB)
    b("v_lshlrev_b32 v4, 2, v6")
    b("v_add_u32 v4, %d, v4" % SB)
    b("s_mul_i32 s40, s26, %d" % WO_CG)
    b("s_lshl_b32 s41, s24, 10")
    b("s_add_u32 s40, s40, s41")
    b("s_add_u32 s40, s40, %d" % WO_OFF)
    add64(b, 34, 22, "s40")
    b("s_mov_b32 m0, s41")
    b("v_add_u32 v15, %d, v7" % (21 * 4096))
    b("s_lshl_b32 s40, s26, 2")
    b("s_add_u32 s40, s40, s24")
    b("s_mul_i32 s40, s40, %d" % WM_STREAM)
    b("s_add_u32 s40, s40, %d" % (WM_OFF + 3072))
    add64(b, 30, 22, "s40")
    if cfg["ONE"]:
        b("s_waitcnt vmcnt(0)")
        b("v_cmp_ne_u32 vcc, v152, v154")
        b("s_cbranch_vccnz L_q_rdy_s")
        b("L_q_rdy_b:")
        ool("L_q_rdy_s:")
        ool("s_mov_b32 s41, 0")
        ool("L_q_rdy_l:")
        ool.L.append(RDY)
        ool("s_add_u32 s41, s41, 1")
        ool("s_cmp_gt_u32 s41, %d" % SPIN)
        ool("s_waitcnt vmcnt(0)")
        ool("s_cbranch_scc1 L_q_rdy_b")
        ool("v_cmp_ne_u32 vcc, v152, v154")
        ool("s_cbranch_vccnz L_q_rdy_l")
        ool("s_branch L_q_rdy_b")
    b.wait_all(vm=False)
    b("s_barrier")
    stamp(b, cfg, 3)

    st = dict(calls=0, done=0)

    def bg(n=1):
        st["calls"] += n
        want = min(cfg["RING"][0], -(-st["calls"] * cfg["RING"][0] // cfg.get("BGSPAN", 20)))
        ring.load(b, want - st["done"])
        st["done"] = want

    b("ds_read_b32 v236, v2 offset:%d" % (SUMO + 64), lg="st")
    b("ds_read_b32 v237, v2 offset:%d" % (SSQO + 64), lg="st")
    b("ds_read_b32 v238, v4 offset:%d" % SUMO, lg="st")
    b("ds_read_b32 v239, v4 offset:%d" % SSQO, lg="st")

    def row(dst, reg, w, tag):
        off = reg + 288 * (7 - w)
        b("ds_read_b128 %s, v13 offset:%d" % (vr(dst, 4), off), lg=tag)
        b("ds_read_b128 %s, v13 offset:%d" % (vr(dst + 4, 4), off + 16), lg=tag)
        b("ds_read_b32 %s, v14 offset:%d" % (vr(dst + 8), off), lg=tag)

    row(Q, QO, 0, "q")
    row(KR, KO, 0, ("k", 0))
    row(KR + 12, KO, 1, ("k", 1))
    bg(2)
    b.wait(lg="st")
    for t in (236, 238):
        b("v_mul_f32 %s, 0x%08x, %s" % (vr(t), f32(1.0 / 576), vr(t)))
        b("v_mul_f32 %s, 0x%08x, %s" % (vr(t + 1), f32(1.0 / 576), vr(t + 1)))
        b("v_fma_f32 %s, -%s, %s, %s" % (vr(t), vr(t), vr(t), vr(t + 1)))
        b("v_max_f32 %s, 0, %s" % (vr(t), vr(t)))
        b("v_add_f32 %s, 0x%08x, %s" % (vr(t), f32(1e-5), vr(t)))
        b("v_rsq_f32 %s, %s" % (vr(t), vr(t)))
    bg()
    b("s_nop 0")
    b("ds_write_b32 v2, v236 offset:%d" % (RSO + 64))
    b("ds_write_b32 v4, v238 offset:%d" % RSO)
    b("v_add_u32 v3, %d, v2" % (RSO + 8))
    for w in range(0, 8, 2):
        b("ds_read2_b32 %s, v3 offset0:%d offset1:%d" % (vr(RSV + w, 2), 2 * (7 - w), 2 * (6 - w)), lg="rs")
    for w in range(8):
        b("v_mov_b32 %s, 0" % vr(Z + w))
    for w in range(0, 8, 2):
        if w + 2 < 8:
            row(KR + 12 * (w + 2), KO, w + 2, ("k", w + 2))
            row(KR + 12 * (w + 3), KO, w + 3, ("k", w + 3))
        else:
            row(VR, VO, 0, ("v", 0))
            row(VR + 12, VO, 1, ("v", 1))
        bg()
        b.wait(lg=["q", ("k", w), ("k", w + 1)])
        for d in range(9):
            for ww in (w, w + 1):
                b("v_dot2c_f32_bf16 %s, %s, %s" % (vr(Z + ww), vr(Q + d), vr(KR + 12 * ww + d)))
        bg()
    for w in range(2, 5):
        row(VR + 12 * w, VO, w, ("v", w))
    b("v_mul_f32 v236, 0x%08x, v236" % f32(18 ** -0.5 * LOG2E))
    for w in range(8):
        b("v_mul_f32 %s, %s, %s" % (vr(Z + w), vr(Z + w), vr(RSV + w)))
    bg()
    for w in range(8):
        b("v_mul_f32 %s, %s, v236" % (vr(Z + w), vr(Z + w)))
    b("s_cmp_lg_u32 s25, 0")
    b("s_cbranch_scc1 L_q_nomask")
    b("v_mov_b32 v237, 0x%08x" % f32(-1e9 * LOG2E))
    for w in range(1, 8):
        b("v_cmp_le_u32 vcc, %d, v1" % (2 * w))
        b("s_nop 1")
        b("v_cndmask_b32 %s, v237, %s, vcc" % (vr(Z + w), vr(Z + w)))
    b("L_q_nomask:")
    b("v_max3_f32 v237, %s, %s, %s" % (vr(Z), vr(Z + 1), vr(Z + 2)))
    b("v_max3_f32 v238, %s, %s, %s" % (vr(Z + 3), vr(Z + 4), vr(Z + 5)))
    b("v_max3_f32 v237, v237, %s, %s" % (vr(Z + 6), vr(Z + 7)))
    b("v_max_f32 v237, v237, v238")
    for w in range(8):
        b("v_sub_f32 %s, %s, v237" % (vr(Z + w), vr(Z + w)))
    bg()
    for w in range(8):
        b("v_exp_f32 %s, %s" % (vr(Z + w), vr(Z + w)))
    bg()
    b.wait(lg=[("v", 0), ("v", 1)])
    for w in range(5, 8):
        row(VR + 12 * w, VO, w, ("v", w))
    b("v_add_f32 v237, %s, %s" % (vr(Z), vr(Z + 1)))
    b("v_add_f32 v238, %s, %s" % (vr(Z + 2), vr(Z + 3)))
    b("v_add_f32 v239, %s, %s" % (vr(Z + 4), vr(Z + 5)))
    b("v_add_f32 v240, %s, %s" % (vr(Z + 6), vr(Z + 7)))
    b("v_add_f32 v237, v237, v238")
    b("v_add_f32 v239, v239, v240")
    b("v_add_f32 v237, v237, v239")
    b("v_rcp_f32 v237, v237")
    bg()
    for w in range(8):
        b("v_mul_f32 %s, %s, %s" % (vr(Z + w), vr(Z + w), vr(RSV + w)))
    for w in range(8):
        b("v_mul_f32 %s, %s, v237" % (vr(Z + w), vr(Z + w)))
    bg()
    for w in range(8):
        b("v_cvt_pk_bf16_f32 %s, %s, 0" % (vr(SL + 2 * w), vr(Z + w)))
        b("v_lshlrev_b32 %s, 16, %s" % (vr(SL + 2 * w + 1), vr(SL + 2 * w)))
    for w in range(8):
        bg()
        b.wait(lg=[("v", w)])
        for d in range(9):
            for hh in range(2):
                o = vr(O + 2 * d + hh)
                if w == 0:
                    b("v_dot2_f32_bf16 %s, %s, %s, 0" % (o, vr(VR + d), vr(SL + hh)))
                else:
                    b("v_dot2c_f32_bf16 %s, %s, %s" % (o, vr(VR + 12 * w + d), vr(SL + 2 * w + hh)))
    bg(99)
    b("v_lshrrev_b32 v3, 4, v1")
    b("v_mul_u32_u24 v3, %d, v3" % XT)
    b("v_lshl_add_u32 v3, v6, 4, v3")
    b("s_mul_i32 s40, s25, %d" % (4 * XT))
    b("s_lshl_b32 s41, s26, 11")
    b("s_lshl_b32 s42, s24, 9")
    b("s_add_u32 s41, s41, s42")
    b("s_add_u32 s41, s41, s40")
    b("v_add_u32 v8, s41, v3")
    b("s_lshl_b32 s40, s25, 5")
    b("s_lshl_b32 s41, s26, 2")
    b("s_add_u32 s40, s40, s41")
    b("s_add_u32 s40, s40, s24")
    b("s_lshl_b32 s40, s40, 8")
    b("s_add_u32 s40, s40, %d" % L_OT)
    b("v_lshl_add_u32 v9, v1, 2, s40")
    for d in range(9):
        b("v_cvt_pk_bf16_f32 %s, %s, %s" % (vr(Q + d), vr(O + 2 * d), vr(O + 2 * d + 1)))
    assert L_O == 0
    b("global_store_dwordx4 v8, %s, s[48:49] sc1" % vr(Q, 4), vm="pub")
    b("global_store_dwordx4 v8, %s, s[48:49] offset:256 sc1" % vr(Q + 4, 4), vm="pub")
    b("global_store_dword v9, %s, s[48:49] sc1" % vr(Q + 8), vm="pub")
    stamp(b, cfg, 4)
    trace(b, cfg, 29)


def ow(j, t):
    return vr(OWB + 20 * (j % 3) + 4 * t, 4)


def ow_read(j, t):
    n = 5 * j + t
    base, off = (7, n * KB) if n < 60 else (9, (n - 60) * KB)
    return "ds_read_b128 %s, %s offset:%d" % (ow(j, t), vr(base), off)


def o_setup(b):
    b("v_add_u32 v9, %d, v7" % (60 * KB))
    for j in range(2):
        for t in range(5):
            b(ow_read(j, t), lg=("W", j))
    b("s_mul_i32 s36, s27, %d" % XT)
    b("s_add_u32 s37, s36, 4096")
    add64(b, 32, 48, "s37")
    b("s_lshl_b32 s37, s25, 13")
    b("s_lshl_b32 s42, s24, 6")
    b("s_add_u32 s37, s37, s42")
    b("s_add_u32 s37, s37, %d" % (L_OT + 4096))
    b("v_lshlrev_b32 v8, 10, v5")
    b("v_lshl_add_u32 v8, v6, 2, v8")
    b("v_add_u32 v8, s37, v8")
    b("s_lshl_b32 s37, s26, 11")
    b("s_add_u32 s37, s37, s36")
    b("s_add_u32 s37, s37, %d" % L_X1)
    b("v_add_u32 v12, s37, v7")
    b("s_lshl_b32 s37, s26, 8")
    b("s_add_u32 s37, s37, s36")
    b("s_add_u32 s37, s37, %d" % (L_X1 + 16 * KB))
    b("v_lshlrev_b32 v13, 4, v6")
    b("v_lshl_add_u32 v13, v5, 3, v13")
    b("v_add_u32 v13, s37, v13")
    b("s_lshl_b32 s37, s27, 10")
    b("s_lshl_b32 s42, s26, 7")
    b("s_add_u32 s37, s37, s42")
    b("s_add_u32 s37, s37, %d" % L_ST)
    b("v_lshl_add_u32 v14, v6, 3, s37")


def phase_o(b, cfg, ring):
    q = []
    for j in range(16):
        q.append(("global_load_dwordx4 %s, v7, s[32:33] offset:%d sc1" % (vr(OF + 4 * j, 4), (j % 8) * KB - 4096), ("o", j)))
        if j == 7:
            q += [("s_add_u32 s32, s32, 0x2000", None), ("s_addc_u32 s33, s33, 0", None)]
    for j in (16, 17):
        for h in range(4):
            q.append(("global_load_dword %s, v8, s[48:49] offset:%d sc1" % (vr(OF + 4 * j + h), (j - 17) * 4096 + 256 * h), ("o", j)))
    first = cfg.get("OFIRST", 8)
    while sum(1 for t in b.vmq if isinstance(t, tuple) and t[0] == "o") < first:
        t, tag = q.pop(0)
        b(t, vm=tag)
    nring = cfg["RING"][3]
    for j in range(18):
        assert not any(tag == ("o", j) for t, tag in q)
        b.wait(vm=[("o", j)], lg=[("W", j)])
        if j in (0, 8, 16):
            trace(b, cfg, 36 + j // 8)
        for t in range(5):
            a = vr(OACC + 4 * t, 4)
            b(MFMA % (a, ow(j, t), vr(OF + 4 * j, 4), a if j else "0"))
            if t in (0, 2):
                while q and not q[0][1]:
                    b(q.pop(0)[0])
                if q:
                    tt, tag = q.pop(0)
                    b(tt, vm=tag)
                elif nring and t == 0:
                    ring.load(b, 1)
                    nring -= 1
            if j + 2 < 18:
                b(ow_read(j + 2, t), lg=("W", j + 2))
    assert not q
    ring.load(b, nring)
    stamp(b, cfg, 5)
    trace(b, cfg, 39)
    T = OF
    for t in range(5):
        for p in range(2):
            b("v_lshlrev_b32 %s, 16, %s" % (vr(T + 8 + 4 * t + 2 * p), vr(RES + 2 * t + p)))
            b("v_and_b32 %s, 0xffff0000, %s" % (vr(T + 9 + 4 * t + 2 * p), vr(RES + 2 * t + p)))
    for t in range(5):
        for p in range(2):
            a = OACC + 4 * t + 2 * p
            b("v_pk_add_f32 %s, %s, %s" % (vr(a, 2), vr(a, 2), vr(T + 8 + 4 * t + 2 * p, 2)))
            b("v_cvt_pk_bf16_f32 %s, %s, %s" % (vr(RES + 2 * t + p), vr(a), vr(a + 1)))
        if t == 1:
            b("global_store_dwordx4 v12, %s, s[48:49] sc1" % vr(RES, 4), vm="pub")
        if t == 3:
            b("global_store_dwordx4 v12, %s, s[48:49] offset:1024 sc1" % vr(RES + 4, 4), vm="pub")
    b("v_mov_b32 v2, 0x3f803f80")
    b("v_mov_b32 %s, 0" % vr(T + 2))
    b("v_mov_b32 %s, 0" % vr(T + 3))
    b("s_mov_b32 exec_hi, 0")
    b("global_store_dwordx2 v13, %s, s[48:49] sc1" % vr(RES + 8, 2), vm="pub")
    for r in (8, 9, -1, 0, 1, 2, 3, 4, 5, 6, 7):
        if r < 0:
            b("s_mov_b32 exec_hi, -1")
            continue
        b("v_dot2c_f32_bf16 %s, %s, v2" % (vr(T + 2), vr(RES + r)))
        b("v_dot2c_f32_bf16 %s, %s, %s" % (vr(T + 3), vr(RES + r), vr(RES + r)))
    b("s_nop 2")
    for op in ("v_permlane16_swap_b32", "v_permlane32_swap_b32"):
        b("v_mov_b32 %s, %s" % (vr(T + 4), vr(T + 2)))
        b("v_mov_b32 %s, %s" % (vr(T + 5), vr(T + 3)))
        b("s_nop 0")
        b("%s %s, %s" % (op, vr(T + 2), vr(T + 4)))
        b("%s %s, %s" % (op, vr(T + 3), vr(T + 5)))
        b("v_add_f32 %s, %s, %s" % (vr(T + 2), vr(T + 2), vr(T + 4)))
        b("v_add_f32 %s, %s, %s" % (vr(T + 3), vr(T + 3), vr(T + 5)))
    b("s_mov_b64 exec, 0xffff")
    b("global_store_dwordx2 v14, %s, s[48:49] sc1" % vr(T + 2, 2), vm="pub")
    b("s_mov_b64 exec, -1")


def mx(j, m):
    n = 4 * j + m
    return ar(120 + 4 * n, 4) if n < 34 else vr(104 + 4 * (n - 34), 4)


def slot(n):
    return ar(4 * (n % NB), 4)


def mw_load(n):
    return "global_load_dwordx4 %s, v7, s[30:31] offset:%d%s" % (slot(n), (n % 6) * KB - 3072, Lab.wf)


class M:
    pass


def aset2(u):
    return (1, 2, 0, 1, 0, 1, 0, 1, 2)[u]


def build_mfmas(cfg):
    G = cfg.get("G", 6)
    GD = cfg.get("GD", 4)
    std = [list(range(k, min(k + G, 18))) for k in range(0, 18, G)]
    dbl = [list(range(k, min(k + GD, 16))) for k in range(0, 16, GD)] + [[16, 17]]
    out = []

    def add(seg, aset, m, j, n, src):
        x = M()
        x.seg, x.aset, x.m, x.j, x.n, x.src = seg, aset, m, j, n, src
        out.append(x)

    for t in range(9):
        for grp in std:
            for m in range(4):
                for j in grp:
                    add(("p1", t), t % 2, m, j, 18 * t + j, "X")
    for grp in dbl:
        for m in range(4):
            for u in range(2):
                for j in grp:
                    add(("p2", u), aset2(u), m, j, w2_pos(u, j), "H")
    for u in range(2, 9):
        for grp in std:
            for m in range(4):
                for j in grp:
                    add(("p2", u), aset2(u), m, j, w2_pos(u, j), "H")
    return out


def mish_groups(t, m):
    a = ACC + 16 * (t % 2) + 4 * m
    bi = BIAS + 4 * (t % 2)
    G = []
    for p in (0, 2):
        x, y = a + p, a + p + 1
        G.append(["v_fma_f32 %s, %s, %s, %s" % (vr(x), vr(x), vr(RS + m), vr(bi + p)),
                  "v_fma_f32 %s, %s, %s, %s" % (vr(y), vr(y), vr(RS + m), vr(bi + p + 1))])
        G.append(["v_exp_f32 %s, %s" % (vr(TMP), vr(x))])
        G.append(["v_exp_f32 %s, %s" % (vr(TMP + 1), vr(y))])
        G.append(["v_fma_f32 %s, %s, s56, s56" % (vr(TMP + q), vr(TMP + q)) for q in range(2)])
        G.append(["v_fma_f32 %s, -%s, %s, -0.5" % (vr(TMP + q), vr(TMP + q), vr(TMP + q)) for q in range(2)])
        G.append(["v_rcp_f32 %s, %s" % (vr(TMP), vr(TMP))])
        G.append(["v_rcp_f32 %s, %s" % (vr(TMP + 1), vr(TMP + 1))])
        G.append(["v_fmac_f32 %s, %s, %s" % (vr(x), vr(x), vr(TMP)),
                  "v_fmac_f32 %s, %s, %s" % (vr(y), vr(y), vr(TMP + 1))])
    pk = PK + 2 * (m & 1)
    G.append(["v_cvt_pk_bf16_f32 %s, %s, %s" % (vr(pk), vr(a), vr(a + 1)),
              "v_cvt_pk_bf16_f32 %s, %s, %s" % (vr(pk + 1), vr(a + 2), vr(a + 3))])
    base, off = (11, 8192 * t + KB * m) if t < 4 else (12, 8192 * (t - 4) + KB * m)
    G.append(["ds_write_b64 %s, %s offset:%d" % (vr(base), vr(pk, 2), off)])
    return G


def m_setup(b):
    b("v_add_u32 v8, %d, v7" % (2 * XT))
    b("v_add_u32 v9, %d, v7" % HB)
    b("v_add_u32 v10, %d, v7" % (HB + 32768))
    b("s_lshr_b32 s46, s24, 1")
    b("s_lshl_b32 s46, s46, 12")
    b("s_and_b32 s47, s24, 1")
    b("s_lshl_b32 s47, s47, 3")
    b("s_add_u32 s46, s46, s47")
    b("v_add_u32 v11, s46, v9")
    b("v_add_u32 v12, s46, v10")
    b("s_mul_i32 s46, s26, 2304")
    b("s_lshl_b32 s47, s24, 6")
    b("s_add_u32 s46, s46, s47")
    b("s_add_u32 s46, s46, %d" % B1_OFF)
    b("v_lshl_add_u32 v13, v5, 4, s46")
    b("s_lshl_b32 s46, s27, 10")
    b("s_add_u32 s46, s46, %d" % L_ST)
    add64(b, 34, 48, "s46")
    b("s_lshl_b32 s37, s24, 10")
    b("s_add_u32 s37, s37, %d" % STL)
    b("v_lshlrev_b32 v14, 10, v5")
    b("v_lshl_add_u32 v14, v6, 3, v14")
    b("v_add_u32 v14, %d, v14" % STL)
    b("s_mov_b32 s56, 0x%08x" % f32(0.5 ** 0.5))
    b("s_mul_i32 s46, s25, %d" % (36 * 16 * KB))
    b("s_lshl_b32 s47, s24, 14")
    b("s_add_u32 s46, s46, s47")
    b("s_add_u32 s46, s46, %d" % L_PART)
    add64(b, 58, 48, "s46")
    b("s_lshl_b32 s46, s25, 12")
    b("s_lshl_b32 s47, s24, 7")
    b("s_add_u32 s46, s46, s47")
    b("s_add_u32 s46, s46, %d" % FL_P)
    add64(b, 72, 68, "s46")
    b("s_mul_i32 s46, s27, %d" % XT)
    b("s_add_u32 s46, s46, %d" % L_X1)
    add64(b, 32, 48, "s46")
    b("s_mul_i32 s36, s24, %d" % XT)
    b("s_mov_b32 m0, s37")
    b("s_mov_b32 s54, 1")
    for t in range(2):
        b("global_load_dwordx4 %s, v13, s[22:23] offset:%d%s" % (vr(BIAS + 4 * t, 4), 256 * t, Lab.wf), vm="pre")


def send_ptr(u):
    sp, fp = 60 + 2 * (u % 2), 64 + 2 * (u % 2)
    if u == 0:
        return ["s_lshl_b32 s57, s26, 11", "s_add_u32 s57, s57, %d" % (32 * 16 * KB),
                "s_add_u32 s%d, s58, s57" % sp, "s_addc_u32 s%d, s59, 0" % (sp + 1)]
    return ["s_add_u32 s57, s26, %d" % u, "s_and_b32 s57, s57, 7", "s_lshl_b32 s55, s57, 9",
            "s_lshl_b32 s57, s57, 16", "s_add_u32 s57, s57, %d" % (u * 2048),
            "s_add_u32 s%d, s58, s57" % sp, "s_addc_u32 s%d, s59, 0" % (sp + 1),
            "s_add_u32 s%d, s72, s55" % fp, "s_addc_u32 s%d, s73, 0" % (fp + 1)]


def flag_store(u):
    fp = 64 + 2 * (u % 2)
    return ["s_atomic_add s54, s[%d:%d], %d" % (fp, fp + 1, 4 * u)]


def tail_setup():
    I = []
    I += ["v_lshrrev_b32 v2, 2, v6", "v_and_b32 v3, 1, v6", "v_cmp_eq_u32 vcc, v2, v5", "v_lshlrev_b32 v3, 4, v3",
          "v_mov_b32 v4, 0x3f80", "v_lshlrev_b32 v3, v3, v4", "v_cndmask_b32 v3, 0, v3, vcc", "v_and_b32 v2, 2, v6",
          "v_cmp_eq_u32 vcc, 0, v2", "v_mov_b32 %s, 0" % vr(SEL + 2), "v_mov_b32 %s, 0" % vr(SEL + 3), "v_and_b32 v4, 7, v1",
          "v_cndmask_b32 %s, 0, v3, vcc" % vr(SEL), "v_sub_u32 %s, v3, %s" % (vr(SEL + 1), vr(SEL))]
    for r in (4, 6):
        I += ["v_mov_b32 %s, %s" % (vr(SEL + r), vr(SEL)), "v_mov_b32 %s, %s" % (vr(SEL + r + 1), vr(SEL + 1))]
    I += ["v_add_u32 v4, s74, v4"]
    I += ["v_lshl_add_u32 v8, v5, 4, v4", "v_lshrrev_b32 v2, 3, v6", "v_lshlrev_b32 v8, 4, v8", "v_lshrrev_b32 v3, 1, v5",
          "v_lshl_add_u32 v8, v2, 11, v8", "v_lshl_add_u32 v10, v3, 4, v4", "v_add_u32 v8, s75, v8", "v_and_b32 v2, 1, v5",
          "v_lshlrev_b32 v10, 4, v10", "v_add_u32 v9, s76, v7", "v_lshl_add_u32 v10, v2, 3, v10", "v_mul_u32_u24 v11, %d, v2" % XT,
          "v_add_u32 v10, s77, v10", "v_add_u32 v13, 0x2000, v8"]
    return [I[k:k + 2] for k in range(0, len(I), 2)]


def tail_scalars():
    return ["s_and_b32 s74, s26, 1", "s_lshl_b32 s74, s74, 3",
            "s_lshr_b32 s75, s26, 2", "s_lshl_b32 s75, s75, 10", "s_and_b32 s55, s26, 2", "s_lshl_b32 s55, s55, 2",
            "s_add_u32 s75, s75, s55", "s_add_u32 s75, s75, %d" % (32 * 16 * KB + 4096),
            "s_lshl_b32 s76, s26, 1", "s_lshr_b32 s55, s24, 1", "s_add_u32 s76, s76, s55", "s_lshl_b32 s76, s76, 10",
            "s_and_b32 s55, s24, 1", "s_lshl_b32 s55, s55, 3", "s_add_u32 s76, s76, s55",
            "s_lshr_b32 s77, s26, 1", "s_mul_i32 s77, s77, %d" % XT, "s_lshl_b32 s55, s24, 9", "s_add_u32 s77, s77, s55",
            "s_add_u32 s77, s77, %d" % (16 * KB),
            "s_lshl_b32 s55, s26, 16", "s_add_u32 s55, s55, %d" % (2048 + 4096), "s_add_u32 s52, s58, s55", "s_addc_u32 s53, s59, 0",
            "s_add_u32 s50, s52, 0x2000", "s_addc_u32 s51, s53, 0",
            "s_lshl_b32 s55, s26, 9", "s_add_u32 s78, s72, s55", "s_addc_u32 s79, s73, 0"]


def rbuf(u):
    return (RB0, RB1)[u % 2]


def recv_loads(u):
    base, k = ("s[52:53]", u - 1) if u <= 4 else ("s[50:51]", u - 5)
    return ["global_load_dwordx4 %s, v7, %s offset:%d sc1" % (vr(rbuf(u) + 4 * h, 4), base, (2 * k + h) * KB - 4096) for h in range(2)]


def recv_mfmas(u):
    out = []
    for h in range(2):
        for p in range(2):
            a = vr(OWN + 4 * (2 * h + p), 4)
            out.append(MFMA % (a, vr(SEL + 2 * p, 4), vr(rbuf(u) + 4 * h, 4), a if u > 1 else "0"))
    return out


def assert_free(vq, i, reg):
    r = _regs(reg)
    for it in vq:
        if it["e"] - 8 > i:
            break
        for t in it["g"]:
            p = parse(t)
            if p is not None:
                assert not (r & (p.r | p.w)), (i, reg, t)


def phase_m(b, cfg, ring, ool):
    def xd(js, tag):
        out = []
        for j in js:
            if j % 4 == 0 and j:
                out += [("s_add_u32 m0, m0, 0x1000", None), ("s_add_u32 s32, s32, 0x1000", None), ("s_addc_u32 s33, s33, 0", None)]
            out.append(("global_load_lds_dwordx4 v7, s[32:33] offset:%d sc1" % ((j % 4) * KB), tag))
        return out

    b("global_load_lds_dwordx4 v7, s[34:35] sc1", vm="xA")
    b("s_mov_b32 m0, s36")
    b("s_nop 0")
    xall = xd(range(0, 6), "xA") + xd(range(6, 12), "xB") + xd(range(12, 18), "xC")
    while sum(1 for t in b.vmq if t in ("xA", "xB", "xC")) < 1 + cfg.get("MFIRST", 12):
        t, tag = xall.pop(0)
        b(t, vm=tag)
    SV = ACC + 16
    gq = xall

    mf = build_mfmas(cfg)
    N = len(mf)
    first_w, last_w, first_b, last_acc, last_x, seg_start = {}, {}, {}, {}, {}, {}
    for i, x in enumerate(mf):
        first_w.setdefault(x.n, i)
        last_w[x.n] = i
        first_b.setdefault((x.src, x.j, x.m), i)
        last_acc[(x.seg, x.m)] = i
        seg_start.setdefault(x.seg, i)
        if x.src == "X":
            last_x[(x.j, x.m)] = i

    def bread(src, j, m):
        if src == "X":
            base, off = (7, m * XT + j * KB) if m < 2 else (8, (m - 2) * XT + j * KB)
        else:
            base, off = (9, 4096 * j + KB * m) if j < 8 else (10, 4096 * (j - 8) + KB * m)
        return "ds_read_b128 %s, %s offset:%d" % (mx(j, m), vr(base), off)

    def stage(src, j):
        if src == "X":
            return "xA" if j < 6 else "xB" if j < 12 else "xC"
        return "hA" if j < 14 else "hB" if j < 16 else "hC"

    LA = cfg.get("LA", 12)
    dq = sorted(first_b, key=lambda k: first_b[k])
    vq = []

    def V(e, g, tag=None, wait=None, force=False):
        vq.append(dict(e=e, g=g, tag=tag, wait=wait, force=force))

    sti = []
    for step in (8, 4, 2):
        sti += ["v_add_f32 %s, %s, %s" % (vr(SV + q), vr(SV + q), vr(SV + q + step)) for q in range(step)]
    sti += ["v_mul_f32 %s, 0x%08x, %s" % (vr(SV + q), f32(1.0 / 576), vr(SV + q)) for q in range(2)]
    sti += ["v_fma_f32 %s, -%s, %s, %s" % (vr(SV), vr(SV), vr(SV), vr(SV + 1)), "v_max_f32 %s, 0, %s" % (vr(SV), vr(SV))]
    stg = [sti[k:k + 2] for k in range(0, len(sti), 2)]
    stg += [["v_add_f32 %s, 0x%08x, %s" % (vr(SV), f32(1e-5), vr(SV)), "v_rsq_f32 %s, %s" % (vr(SV), vr(SV))],
            ["v_mul_f32 %s, 0x%08x, %s" % (vr(RS + q), f32(LOG2E), vr(SV)) for q in range(2)],
            ["s_nop 0", "v_permlane16_swap_b32 %s, %s" % (vr(RS), vr(RS + 1))],
            ["v_mov_b32 %s, %s" % (vr(RS + 2 + q), vr(RS + q)) for q in range(2)],
            ["s_nop 0", "v_permlane32_swap_b32 %s, %s" % (vr(RS), vr(RS + 2))],
            ["v_permlane32_swap_b32 %s, %s" % (vr(RS + 1), vr(RS + 3))]]
    for q in range(4):
        V(cfg.get("STAT_AT", 42) - 12, ["ds_read2_b64 %s, v14 offset0:%d offset1:%d" % (vr(SV + 4 * q, 4), 32 * q, 32 * q + 16)], tag="st", force=True)
    for n, g in enumerate(stg):
        V(cfg.get("STAT_AT", 42), g, wait="st" if n == 0 else None, force=True)
    for t in range(9):
        for m in range(4):
            gs = mish_groups(t, m)
            for n, g in enumerate(gs):
                V(last_acc[(("p1", t), m)] + 4, g, tag=("hw", t) if n == len(gs) - 1 else None,
                  wait=("bias", t) if (m == 0 and n == 0) else None)

    def stbuf(u):
        return ST + (8 if u == 1 else 0)

    def cvts(u):
        st = stbuf(u)
        a = ACC + 16 * aset2(u)
        for m in range(4):
            V(last_acc[(("p2", u), m)] + 8, ["v_cvt_pk_bf16_f32 %s, %s, %s" % (vr(st + 2 * m + r), vr(a + 4 * m + 2 * r), vr(a + 4 * m + 2 * r + 1))
                                            for r in range(2)])

    def stores(u):
        st, sp = stbuf(u), 60 + 2 * (u % 2)
        if cfg.get("NOST"):
            return ["s_nop 0"]
        return ["global_store_dwordx4 v7, %s, s[%d:%d] offset:%d%s" % (vr(st + 4 * h, 4), sp, sp + 1, h * KB, cfg.get("sc_part", " sc1")) for h in range(2)]

    UP = cfg.get("UP", 5)
    PB = rbuf(UP - 1)

    def poll(u):
        g = ["s_load_dword s28, s[78:79], %d glc" % (4 * u)]
        if u == UP - 2:
            g.append("s_load_dword s29, s[72:73], 64 glc")
        return g

    def test(u):
        return (["s_lshr_b32 s29, s29, 3", "s_and_b32 s28, s28, s29"] if u == UP - 2 else []) + ["s_cmp_eq_u32 s28, 1"]

    def check(e, u):
        slow, back = lab("rc_s"), lab("rc_b")
        V(e, ["s_waitcnt lgkmcnt(0)"] + test(u) + ["s_cbranch_scc0 %s" % slow, "%s:" % back])
        ool("%s:" % slow)
        ool("s_mov_b32 s41, 0")
        ool("%s_l:" % slow)
        for t in poll(u): ool(t)
        ool("s_add_u32 s41, s41, 1")
        ool("s_cmp_gt_u32 s41, %d" % SPIN)
        ool("s_waitcnt lgkmcnt(0)")
        ool("s_cbranch_scc1 %s" % back)
        for t in test(u): ool(t)
        ool("s_cbranch_scc0 %s_l" % slow)
        ool("s_branch %s" % back)

    E = {u: last_acc[(("p2", u), 3)] + 8 for u in range(9)}
    PAT, SAT, FAT = cfg.get("POLL_AT", 40), cfg.get("SUM_AT", 48), cfg.get("FLAG_AT", 40)
    piece = ["global_load_dwordx2 %s, v%d, s[58:59] offset:%d sc1" % (vr(PB + 2 * q, 2), (8, 13)[q >> 1], (q & 1) * 4096 - 4096) for q in range(4)]
    for u in range(1, 8):
        if u == 1:
            cvts(0)
        cvts(u)
        e = E[u]
        if u >= 3:
            check(e, u - 2)
        if u == 1:
            V(e, stores(0), tag=("st", 1))
        V(e, stores(u), tag=("st", u))
        if u == 1:
            for g in tail_setup():
                V(e, g)
        if u >= 3 and not cfg.get("NORECV"):
            V(e, recv_loads(u - 2), tag=("r", u - 2))
        if u == UP:
            V(e, piece[:2], tag="r9")
            V(e, piece[2:], tag="r9")
        if u == 7:
            V(e, ["ds_read_b64 %s, v9" % vr(MRES, 2), "ds_read_b64 %s, v9 offset:%d" % (vr(MRES + 2, 2), XT)], tag="res")
            V(e, ["ds_read_b64 %s, v9 offset:%d" % (vr(MRES + 4 + 2 * q, 2), (2 + q) * XT) for q in range(2)], tag="res")
            V(e, ["ds_read_b64 %s, v10" % vr(MRES + 8, 2)], tag="res")
            V(e, poll(6))
            check(e + cfg.get("FLAG7", 32), 6)
            V(e, flag_store(7), wait=("st", 7))
            V(e, recv_loads(6), tag=("r", 6))
        ev = []
        if 2 <= u <= 6:
            ev.append((PAT, poll(u - 1), None))
        if u <= 6:
            ev.append((FAT, flag_store(u) + (["s_atomic_add s54, s[72:73], 64"] if u == 1 else []), ("st", u)))
        if 3 <= u <= 6:
            ev.append((SAT, recv_mfmas(u - 2), ("r", u - 2)))
        if u == UP:
            ev.append((SAT, [MFMA % (vr(A9, 4), vr(SEL + 4, 4), vr(PB, 4), "0"), MFMA % (vr(A9, 4), vr(SEL + 4, 4), vr(PB + 4, 4), vr(A9, 4))], "r9"))
        for at, g, wt in sorted(ev, key=lambda z: z[0]):
            V(e + at, g, wait=wt)

    hw_left = {t: 4 for t in range(9)}
    done = set()
    sq = []
    nextw = ring.n
    last_load = -4
    bias_next = 2
    ptr_next = 0
    sq_age = 0
    D0 = seg_start[("p2", 2)] if cfg.get("D0", 1) else seg_start[("p2", 0)]
    drain_n0 = {}

    def ensure_stage(sg):
        if sg in done:
            return True
        if sg[0] == "x":
            while any(tag == sg for t, tag in gq):
                t, tag = gq.pop(0)
                b(t, vm=tag)
            b.wait(vm=sg)
        else:
            t = {"hA": 6, "hB": 7, "hC": 8}[sg]
            if hw_left[t]:
                return False
            b.wait(lg=[("hw", tt) for tt in range(t + 1)])
        b("s_barrier")
        done.add(sg)
        return True

    def emit_v():
        it = vq.pop(0)
        if it["wait"]:
            assert not any(tag == it["wait"] for t, tag in gq)
            b.wait(vm=[it["wait"]], lg=[it["wait"]])
        if any(t.startswith("s_") and not t.startswith(("s_nop", "s_mov", "s_atomic", "s_load")) for t in it["g"]):
            while sq:
                b(sq.pop(0))
        for t in it["g"]:
            b(t, vm=it["tag"], lg=it["tag"])
        if it["tag"] and it["tag"][0] == "hw":
            hw_left[it["tag"][1]] -= 1

    ensure_stage("xA")
    stamp(b, cfg, 6)
    trace(b, cfg, 47)
    while first_b[dq[0]] < LA:
        k = dq.pop(0)
        b(bread(*k), lg=k)
    for i, x in enumerate(mf):
        if i == 0:
            b.wait(lg=[(x.src, x.j, x.m)])
        if i % 72 == 0:
            trace(b, cfg, i // 72)
        a = vr(ACC + 16 * x.aset + 4 * x.m, 4)
        if x.j == 0 and x.seg != ("p2", 8):
            assert_free(vq, i, a)
        b(MFMA % (a, slot(x.n), mx(x.j, x.m), a if (x.j or x.seg == ("p2", 8)) else "0"))
        used = False
        budget = 2
        if i + 1 < N:
            y = mf[i + 1]
            ky = (y.src, y.j, y.m)
            while ky in dq:
                while not ensure_stage(stage(dq[0][0], dq[0][1])):
                    assert vq[0]["e"] <= i
                    emit_v()
                k = dq.pop(0)
                b(bread(*k), lg=k)
                cfg.setdefault("_late", []).append((i, k))
            assert y.n < nextw
            wl = [ky]
            if vq and vq[0]["e"] <= i and vq[0]["wait"]:
                wl.append(vq[0]["wait"])
            wv = []
            if b.pending(vm=[("W", y.n)]):
                wv = [("W", z.n) for z in mf[i + 1:i + 1 + cfg.get("WGRAN", 3)] if z.n < nextw]
            used = b.wait(vm=wv + wl, lg=wl)
        if ptr_next < 8 and not sq and i >= seg_start[("p2", ptr_next)] + (40 if ptr_next >= 2 else 0):
            assert_free(vq, i, sr(60 + 2 * (ptr_next % 2), 2))
            assert_free(vq, i, sr(64 + 2 * (ptr_next % 2), 2))
            sq += send_ptr(ptr_next)
            if ptr_next == 1:
                sq += tail_scalars()
            ptr_next += 1
        sq_age = sq_age + 1 if sq else 0
        if sq and (not used or sq_age > 1):
            b(sq.pop(0))
            sq_age = 0
        paced = True
        if cfg.get("DRAIN") and nextw < 324 and i >= D0:
            n0 = drain_n0.setdefault(0, nextw)
            paced = (i - D0) * (324 - n0) >= (nextw - n0) * (first_w[323] - cfg["DRAIN"] - D0)
        if gq:
            if i - last_load >= 2:
                while not gq[0][1]:
                    b(gq.pop(0)[0])
                t, tag = gq.pop(0)
                b(t, vm=tag)
                last_load = i
        elif nextw < 324 and (nextw < NB or i >= last_w[nextw - NB]) and i - last_load >= cfg.get("LDGAP", 3) and not any(t in MADV + MBACK for t in sq) and paced:
            b(mw_load(nextw), vm=("W", nextw))
            if nextw % 6 == 5 and nextw < 323:
                pos = 0
                while pos < len(sq) and sq[pos].startswith(("s_addc", "s_subb")):
                    pos += 1
                sq[pos:pos] = MBACK if (cfg.get("FAKEW") and nextw % 18 == 17) else MADV
            nextw += 1
            last_load = i
            if x.seg[0] == "p2" or x.seg == ("p1", 0):
                budget -= 1
        if bias_next < 9 and i >= seg_start[("p1", bias_next)] - cfg.get("BIAS_AT", 4):
            assert_free(vq, i, vr(BIAS + 4 * (bias_next % 2), 4))
            b("global_load_dwordx4 %s, v13, s[22:23] offset:%d%s" % (vr(BIAS + 4 * (bias_next % 2), 4), 256 * bias_next, Lab.wf), vm=("bias", bias_next))
            bias_next += 1
        while dq and budget > 0 and first_b[dq[0]] <= i + LA + (12 if budget == 1 and x.seg[0] == "p2" else 0):
            k = dq[0]
            if k[0] == "H" and last_x[(k[1], k[2])] > i:
                break
            if not ensure_stage(stage(k[0], k[1])):
                break
            dq.pop(0)
            b(bread(*k), lg=k)
            budget -= 1
        if vq and vq[0]["e"] <= i and (budget == 2 or vq[0]["force"] or (x.seg[0] == "p1" and x.seg[1] > 0)):
            emit_v()
    assert not dq and not sq and nextw == 324 and not gq
    while vq:
        emit_v()

    trace(b, cfg, 18)
    pl, got = lab("rB_p"), lab("rB_g")
    b(poll(7)[0])
    for u in (5, 6):
        b.wait(vm=[("r", u)])
        for t in recv_mfmas(u): b(t)
    trace(b, cfg, 19)
    qw_base(b)
    b("s_mov_b32 s41, 0")
    b("%s:" % pl)
    b.wait_all(vm=False)
    b("s_cmp_eq_u32 s28, 1")
    b("s_cbranch_scc1 %s" % got)
    b(poll(7)[0])
    b("s_add_u32 s41, s41, 1")
    b("s_cmp_gt_u32 s41, %d" % SPIN)
    b("s_cbranch_scc0 %s" % pl)
    b("s_waitcnt lgkmcnt(0)")
    b("%s:" % got)
    trace(b, cfg, 20)
    for t in recv_loads(7): b(t, vm=("r", 7))
    skip = lab("m_np")
    b("s_cmp_lg_u32 s3, 0")
    b("s_cbranch_scc1 %s" % skip)
    g = b.fork()
    qw_pre(g, range(0, cfg["WQP"][0]))
    b.extend(g)
    b("s_mul_i32 s40, s25, %d" % (4 * XT))
    b("s_add_u32 s40, s40, %d" % X2_OFF)
    b("v_add_u32 v10, s40, v10")
    b("s_lshl_b32 s41, s26, 11")
    b("s_lshl_b32 s42, s24, 9")
    b("s_add_u32 s41, s41, s42")
    b("s_add_u32 s41, s41, s40")
    b("v_lshrrev_b32 v3, 1, v5")
    b("v_lshl_add_u32 v3, v3, 4, v6")
    b("v_lshl_add_u32 v11, v3, 4, v11")
    b("v_add_u32 v11, s41, v11")
    b("s_branch %s_e" % skip)
    b("%s:" % skip)
    b("s_mul_i32 s40, s25, %d" % (4 * XT))
    b("s_lshl_b32 s42, s24, 5")
    b("s_add_u32 s40, s40, s42")
    b("s_lshl_b32 s41, s26, 7")
    b("s_add_u32 s41, s41, s40")
    b("v_mul_u32_u24 v2, 1152, v6")
    b("v_lshrrev_b32 v3, 1, v5")
    b("v_lshl_add_u32 v3, v3, 4, v2")
    b("v_add3_u32 v11, v11, v3, s41")
    b("s_mul_i32 s41, s26, %d" % (8 * 1152))
    b("s_add_u32 s41, s41, s40")
    b("s_add_u32 s41, s41, 1024")
    b("v_lshl_add_u32 v10, v5, 3, v2")
    b("v_add_u32 v10, s41, v10")
    b("%s_e:" % skip)
    b("v_add_u32 v12, %d, v11" % (2 * XT))
    b("s_mov_b32 s56, 0x%08x" % f32(LN2))
    b.wait(lg="res")
    T = ACC
    for r in range(10):
        b("v_lshlrev_b32 %s, 16, %s" % (vr(T + 2 * r), vr(MRES + r)))
        b("v_and_b32 %s, 0xffff0000, %s" % (vr(T + 2 * r + 1), vr(MRES + r)))
    for r in range(4):
        b("v_add_f32_dpp %s, %s, %s row_ror:8 row_mask:0xf bank_mask:0xf" % (vr(ST + r), vr(A9 + r), vr(A9 + r)))
    for r in range(4):
        b("v_fmac_f32 %s, s56, %s" % (vr(T + 16 + r), vr(ST + r)))
    for r in range(2):
        b("v_cvt_pk_bf16_f32 %s, %s, %s" % (vr(MRES + 8 + r), vr(T + 16 + 2 * r), vr(T + 17 + 2 * r)))
    b.wait(vm=[("r", 7)])
    trace(b, cfg, 21)
    for t in recv_mfmas(7): b(t)
    b("s_nop 4")
    for r in range(8):
        b("v_fmac_f32 %s, s56, %s" % (vr(T + 2 * r), vr(OWN + 2 * r)))
        b("v_fmac_f32 %s, s56, %s" % (vr(T + 2 * r + 1), vr(OWN + 2 * r + 1)))
        b("v_cvt_pk_bf16_f32 %s, %s, %s" % (vr(MRES + r), vr(T + 2 * r), vr(T + 2 * r + 1)))
    for h in range(2):
        for p in range(2):
            b("v_permlane16_swap_b32 %s, %s" % (vr(MRES + 4 * h + p), vr(MRES + 4 * h + 2 + p)))

    trace(b, cfg, 22)

    def out_stores(bb, base, fl):
        bb("global_store_dwordx4 v11, %s, %s%s" % (vr(MRES, 4), base, fl), vm="pub")
        bb("global_store_dwordx4 v12, %s, %s%s" % (vr(MRES + 4, 4), base, fl), vm="pub")
        bb("s_mov_b32 exec_lo, 0x00ff00ff")
        bb("s_mov_b32 exec_hi, 0x00ff00ff")
        bb("global_store_dwordx2 v10, %s, %s%s" % (vr(MRES + 8, 2), base, fl), vm="pub")
        bb("s_mov_b64 exec, -1")
    return out_stores


def spin_until(b, ptr, first=True):
    pl, ck, ok = lab("sp_p"), lab("sp_c"), lab("sp_k")
    b("s_mov_b32 s41, 0")
    if not first:
        b("s_branch %s" % ck)
    b("%s:" % pl)
    b.L.append("global_load_dword v3, v2, %s offset:128 sc1" % ptr)
    b("s_waitcnt vmcnt(0)")
    b("%s:" % ck)
    b("v_readfirstlane_b32 s28, v3")
    b("s_add_u32 s41, s41, 1")
    b("s_cmp_gt_u32 s41, %d" % SPIN)
    b("s_cbranch_scc1 %s" % ok)
    b("s_cmp_eq_u32 s28, 1")
    b("s_cbranch_scc1 %s" % ok)
    b("s_sleep 2")
    b("s_branch %s" % pl)
    b("%s:" % ok)


def first_layer(b, cfg):
    prep.gen_prep(b, cfg, "L_layer", "L_mega_last")
    trace(b, cfg, 50)
    b("v_mov_b32 v2, 0")
    b("global_load_dword v3, v2, s[20:21] offset:128 sc1", vm="pub")
    q_setup(b, 0)
    xa = x_items(range(0, 6), (0, 1), "xA")
    xb = x_items(range(6, 12), (2,), "xB")
    n0 = 5 * cfg.get("FX", 4)
    for t, tag in xa[:n0]:
        b(t, vm=tag)
    qw_base(b)
    b("s_lshl_b32 s40, s26, 8")
    b("s_add_u32 s40, s40, %d" % (FLAG_OFF + FL_CQ))
    add64(b, 66, 22, "s40")
    trace(b, cfg, 51)
    b.wait(vm="pub")
    b("s_barrier")
    trace(b, cfg, 52)
    b("s_cmp_lg_u32 s24, 0")
    b("s_cbranch_scc1 L_f_na")
    spin_until(b, "s[20:21]", first=False)
    b("s_cmp_eq_u32 s65, 0")
    b("s_cbranch_scc1 L_f_na")
    b("s_atomic_add s65, s[70:71], 0 glc")
    b("s_cmp_ge_u32 s2, 48")
    b("s_cbranch_scc1 L_f_na")
    b("s_waitcnt lgkmcnt(0)")
    b("s_cmp_lg_u32 s65, 5")
    b("s_cbranch_scc1 L_f_na")
    b("s_mov_b32 s29, 1")
    b("s_atomic_add s29, s[70:71], 128")
    b("L_f_na:")
    for t, tag in xa[n0:] + xb:
        b(t, vm=tag)
    b("s_cmp_lg_u32 s24, 0")
    b("s_cbranch_scc1 L_f_go")
    spin_until(b, "s[66:67]")
    b("s_waitcnt lgkmcnt(0)")
    b("L_f_go:")
    trace(b, cfg, 53)
    b.wait(vm="xA")
    b("s_barrier")
    qw_pre(b, range(sum(cfg["WQP"])))
    trace(b, cfg, 54)
    b("s_branch L_q_join")


def gen_mega(cfg):
    cfg.setdefault("RING", [14, 5, 10, 8, 5, 10])
    cfg.setdefault("WQP", [1, 1, 2])
    for k in ("RING", "WQP"):
        if isinstance(cfg[k], str):
            cfg[k] = [int(c) for c in cfg[k].split(".")]
    Lab.n = 0
    Lab.wf = cfg.get("WF", " sc1")
    cfg.setdefault("ONE", 1)
    name = cfg.get("name", "mega_kernel")
    b = B()
    ool = B()
    entry(b, name)
    b("s_cmp_ge_u32 s2, 256")
    b("s_cbranch_scc1 L_mega_end")
    probe(b, cfg, "s", layered=False)
    load_args(b)
    stamp(b, cfg, 0)
    b("v_and_b32 v1, 63, v0")
    b("v_lshrrev_b32 v2, 6, v0")
    b("v_lshrrev_b32 v5, 4, v1")
    b("v_readfirstlane_b32 s24, v2")
    b("v_and_b32 v6, 15, v1")
    b("v_lshlrev_b32 v7, 4, v1")
    decode_wg(b, cfg, 25, 26)
    b("s_lshl_b32 s27, s25, 2")
    b("s_add_u32 s27, s27, s24")
    b("s_waitcnt lgkmcnt(0)")
    if cfg["ONE"]:
        first_layer(b, cfg)
    else:
        qw_base(b)
        qw_pre(b, range(sum(cfg["WQP"])))
        q_setup(b, 0)
    b("L_layer:")
    b.vmq = ["pre"] * 20
    ring = Ring()
    phase_q(b, cfg, ring, ool)
    R = cfg["RING"]
    ring.load(b, R[1])
    sync(b, cfg, FL_C1, "pub", lambda g: ring.load(g, R[2]), o_setup, tr=30)
    assert ring.wo == 22
    phase_o(b, cfg, ring)
    trace(b, cfg, 40)
    ring.load(b, R[4])
    sync(b, cfg, FL_C2, "pub", lambda g: ring.load(g, R[5]), m_setup, tr=41)
    assert ring.n <= NB
    out_stores = phase_m(b, cfg, ring, ool)
    probe(b, cfg, "e")
    b("s_cmp_lg_u32 s3, 0")
    b("s_cbranch_scc1 L_final")
    g = b.fork()
    out_stores(g, "s[22:23]", " sc1")
    stamp_end(g, cfg, 1, wait=False)
    W = cfg["WQP"]
    qw_pre(g, range(W[0], W[0] + W[1]))
    sync(g, cfg, FL_C3, "pub", lambda q: qw_pre(q, range(W[0] + W[1], sum(W))), lambda q: q_setup(q, 1), nbr=True)
    stamp(g, cfg, 0)
    g("s_branch L_layer")
    b.extend(g)
    b("L_final:")
    out_stores(b, "s[18:19]", cfg.get("sc_out", ""))
    stamp_end(b, cfg, 1)
    probe_end(b, cfg)
    b("L_mega_end:")
    b("s_endpgm")
    b.extend(ool)
    b("L_mega_last:")
    return b, [(name, 512, 256)], [(name, 256, 256, LDSM)]
```

```python
from asmlib import *
from layout import *
from common import *

PL = 86 * KB
FR = 16
NZERO = 48


def srd(b, ptr, size):
    b("s_mov_b32 s28, s%d" % ptr)
    b("s_and_b32 s29, s%d, 0xffff" % (ptr + 1))
    b("s_mov_b32 s30, %d" % size)
    b("s_mov_b32 s31, 0x20000")


def div9(b, dst, rem, src):
    b("s_mul_i32 s%d, s%d, 57" % (dst, src))
    b("s_lshr_b32 s%d, s%d, 9" % (dst, dst))
    b("s_mul_i32 s%d, s%d, 9" % (rem, dst))
    b("s_sub_u32 s%d, s%d, s%d" % (rem, src, rem))


def stage_loads(b, cfg, stride, rows, pitch):
    b("s_mul_i32 s34, s24, %d" % (48 * stride))
    b("s_add_u32 s32, s32, s34")
    b("s_mul_i32 s34, s24, %d" % (48 * pitch))
    b("s_add_u32 m0, s34, %d" % PL)
    trace(b, cfg, 60)
    per = 48 // rows
    for ch in range(3):
        for n in range(per):
            b("s_nop 0")
            b("buffer_load_dwordx4 v8, s[28:31], s32 offen lds", vm=("ld", ch))
            step = rows + (144 if n == per - 1 else 0)
            b("s_add_u32 s32, s32, %d" % (step * stride))
            b("s_add_u32 m0, m0, %d" % (step * pitch))


def lane128(b, stride):
    b("v_lshrrev_b32 v8, 3, v1")
    b("v_mul_u32_u24 v8, %d, v8" % stride)
    b("v_and_b32 v9, 7, v1")
    b("v_lshl_add_u32 v8, v9, 4, v8")


def col128(b, dst, extra=0):
    b("v_lshl_add_u32 %s, v3, 3, %s" % (vr(dst), vr(dst)))
    b("s_lshl_b32 s35, s24, 5")
    b("s_add_u32 s35, s35, %d" % (PL + extra))
    b("v_add_u32 %s, s35, %s" % (vr(dst), vr(dst)))


def store(b, cfg, j, sstride, second=None):
    b("global_store_dwordx4 v9, %s, s[22:23] sc1" % vr(FR + 4 * j, 4), vm="pub")
    if second is not None:
        b("global_store_dwordx4 v9, %s, s[22:23] offset:%d sc1" % (vr(FR + 4 * j, 4), second), vm="pub")
    b("v_add_u32 v9, %s, v9" % sstride)


def process(b, cfg, plan, pi, centred, emit_store, fix=None):
    if centred:
        b("v_mov_b32 v13, 0x3f803f80")
        b("v_mov_b32 v14, 0")
        b("v_mov_b32 v15, 0")
    todo = list(range(18))
    trace(b, cfg, 61)
    for ch in range(3):
        b.wait(vm=[("ld", ch)])
        b("s_barrier")
        if ch != 1:
            trace(b, cfg, 62 + ch // 2)
        now = []
        while todo and max(pi(todo[0], g, e) for g in range(4) for e in range(8)) < 192 * (ch + 1):
            now.append(todo.pop(0))
        for j in now:
            for h in range(2):
                base, imm = plan(j, h)
                assert 0 <= imm < 65536
                b("ds_read_b64_tr_b16 %s, %s offset:%d" % (vr(FR + 4 * j + 2 * h, 2), vr(base), imm), lg=("tr", j))
        for j in now:
            b.wait(lg=[("tr", j)])
            if centred:
                for r in range(4):
                    b("v_dot2c_f32_bf16 v%d, %s, v13" % (14 + (r & 1), vr(FR + 4 * j + r)))
            else:
                emit_store(j)
    if not centred:
        return
    b("s_nop 2")
    b("v_add_f32 v14, v14, v15")
    xlane_sum_g(b, 14, 15)
    b("v_mul_f32 v14, 0x%08x, v14" % f32(-1.0 / 576))
    b("v_mov_b32 v12, 0xffff0000")
    trace(b, cfg, 64)
    if fix:
        fix(-1)
    for j in range(18):
        for r in range(4):
            x, t = FR + 4 * j + r, 90 + 2 * (r & 1)
            b("v_lshlrev_b32 %s, 16, %s" % (vr(t), vr(x)))
            b("v_and_b32 %s, v12, %s" % (vr(t + 1), vr(x)))
            b("v_pk_add_f32 %s, %s, v[14:15] op_sel_hi:[1,0]" % (vr(t, 2), vr(t, 2)))
            b("v_cvt_pk_bf16_f32 %s, %s, %s" % (vr(x), vr(t), vr(t + 1)))
        if fix:
            fix(j)
        emit_store(j)


def gen_prep(b, cfg, code_lo, code_hi):
    assert all((x * 57) >> 9 == x // 9 for x in range(72))
    b("v_and_b32 v3, 3, v1")
    b("v_bfe_u32 v4, v1, 2, 2")
    b("s_cmp_lg_u32 s24, 3")
    b("s_cbranch_scc1 L_p_nocode")
    b("s_getpc_b64 s[36:37]")
    b("L_p_pc:")
    b("s_add_u32 s36, s36, %s-L_p_pc" % code_lo)
    b("s_addc_u32 s37, s37, 0")
    b("s_lshr_b32 s38, s2, 3")
    b("s_lshl_b32 s38, s38, 11")
    b("v_lshl_add_u32 v8, v6, 7, s38")
    b("v_min_u32 v8, %s-%s-4, v8" % (code_hi, code_lo))
    b.L.append("global_load_dword v95, v8, s[36:37]")
    b("L_p_nocode:")
    b("s_cmp_ge_u32 s2, 201")
    b("s_cbranch_scc1 L_p_zero")
    b("s_cmp_ge_u32 s2, 192")
    b("s_cbranch_scc1 L_p_wo")
    b("s_cmp_ge_u32 s2, 120")
    b("s_cbranch_scc1 L_p_w2")
    b("s_cmp_ge_u32 s2, 48")
    b("s_cbranch_scc1 L_p_w1")

    g = b.fork()
    srd(g, 6, D * 3 * D * 2)
    assert all((x * 43) >> 8 == x // 6 for x in range(48))
    g("s_mul_i32 s36, s2, 43")
    g("s_lshr_b32 s36, s36, 8")
    g("s_mul_i32 s37, s36, 6")
    g("s_sub_u32 s37, s2, s37")
    g("s_and_b32 s38, s37, 1")
    g("s_lshr_b32 s37, s37, 1")
    g("s_mul_i32 s32, s37, 1152")
    g("s_mul_i32 s33, s36, 144")
    g("s_add_u32 s32, s32, s33")
    g("s_lshl_b32 s33, s38, 6")
    g("s_add_u32 s32, s32, s33")
    assert all((x * 52) >> 8 == x // 5 for x in range(64))
    g("v_mul_u32_u24 v8, 52, v1")
    g("v_lshrrev_b32 v8, 8, v8")
    g("v_mul_u32_u24 v9, 5, v8")
    g("v_sub_u32 v9, v1, v9")
    g("v_mul_u32_u24 v8, 3456, v8")
    g("v_lshl_add_u32 v8, v9, 4, v8")
    stage_loads(g, cfg, 3456, 12, 80)
    g("v_lshl_add_u32 v10, v5, 3, v4")
    g("v_mul_u32_u24 v10, 80, v10")
    g("s_lshl_b32 s39, s38, 3")
    g("s_add_u32 s39, s39, %d" % PL)
    g("s_mul_i32 s40, s24, 40")
    g("s_cmp_ge_u32 s24, 2")
    g("s_cselect_b32 s40, 32, s40")
    g("s_cselect_b32 s41, 0, 8")
    g("s_add_u32 s39, s39, s40")
    g("v_mul_u32_u24 v11, s41, v3")
    g("v_add3_u32 v10, v10, v11, s39")
    g("s_lshl_b32 s39, s38, 1")
    g("s_add_u32 s39, s39, s24")
    g("s_cmp_eq_u32 s37, 0")
    g("s_cselect_b32 s40, 1, 0")
    g("s_cmp_ge_u32 s24, 2")
    g("s_cselect_b32 s39, s40, s39")
    g("s_cselect_b32 s40, 3, s37")
    g("s_lshl_b32 s41, s36, 2")
    g("s_add_u32 s39, s39, s41")
    g("s_mul_i32 s39, s39, %d" % (72 * KB))
    g("s_lshl_b32 s40, s40, 10")
    g("s_add_u32 s39, s39, s40")
    g("s_add_u32 s39, s39, %d" % WQ_OFF)
    g("v_add_u32 v9, s39, v7")
    g("s_lshl_b32 s39, s38, 2")
    g("s_lshl_b32 s40, 0x000f000f, s39")
    g("s_lshl_b32 s41, s40, 8")
    g("s_or_b32 s42, s40, s41")
    g("s_cmp_eq_u32 s37, 1")
    g("s_cselect_b32 s42, s40, s42")
    g("s_cmp_eq_u32 s37, 2")
    g("s_cselect_b32 s42, s41, s42")
    g("s_cmp_ge_u32 s24, 2")
    g("s_cselect_b32 s42, s42, -1")
    g("s_cmp_eq_u32 s37, 0")
    g("s_cselect_b32 s43, 2, 9")
    g("s_cmp_eq_u32 s24, s43")
    g("s_cselect_b32 s44, 0xff00ff00, 0")
    g("s_mov_b32 s45, s44")

    def fixq(j):
        if j < 0:
            g("s_cmp_eq_u32 s24, 3")
            g("s_cbranch_scc1 L_p_wq_end")
            g("s_mov_b32 exec_lo, s42")
            g("s_mov_b32 exec_hi, s42")
        else:
            for r in range(4):
                g("v_cndmask_b32 %s, %s, v13, s[44:45]" % (vr(FR + 4 * j + r), vr(FR + 4 * j + r)))

    process(g, cfg, lambda j, h: (10, 2560 * j + 320 * h), pi_nat, True, lambda j: store(g, cfg, j, "0x1000"), fixq)
    g("s_mov_b64 exec, -1")
    g("L_p_wq_end:")
    g("s_lshl_b32 s40, s36, 8")
    g("s_add_u32 s40, s40, %d" % (FLAG_OFF + FL_CQ))
    g("s_branch L_p_fin")
    b.extend(g)

    b("L_p_w1:")
    g = b.fork()
    srd(g, 12, D * F * 2)
    g("s_sub_u32 s38, s2, 48")
    g("s_lshl_b32 s32, s38, 7")
    g("s_lshl_b32 s39, s38, 6")
    g("v_add_lshl_u32 v94, v1, s39, 1")
    g("global_load_ushort v88, v94, s[14:15]", vm="bias")
    lane128(g, F * 2)
    stage_loads(g, cfg, F * 2, 8, 128)
    g("v_lshl_add_u32 v10, v5, 2, v4")
    g("v_lshlrev_b32 v10, 7, v10")
    col128(g, 10)
    g("v_lshl_add_u32 v11, v5, 3, v4")
    g("v_lshlrev_b32 v11, 7, v11")
    col128(g, 11, 0x10000)
    div9(g, 36, 37, 38)
    g("s_lshl_b32 s39, s36, 2")
    g("s_add_u32 s39, s39, s24")
    g("s_mul_i32 s39, s39, %d" % WM_STREAM)
    g("s_mul_i32 s37, s37, %d" % (18 * KB))
    g("s_add_u32 s39, s39, s37")
    g("s_add_u32 s39, s39, %d" % WM_OFF)
    g("v_add_u32 v9, s39, v7")
    process(g, cfg, lambda j, h: (10, 4096 * j + 2048 * h) if j < 16 else (11, 4096 * (j - 16) + 512 * h), pi_1, True,
            lambda j: store(g, cfg, j, "0x400"))
    g("v_lshlrev_b32 v88, 16, v88")
    g("v_mul_f32 v88, 0x%08x, v88" % f32(LOG2E))
    g("v_lshlrev_b32 v94, 1, v94")
    g("v_add_u32 v94, %d, v94" % B1_OFF)
    g("s_cmp_lg_u32 s24, 0")
    g("s_cbranch_scc1 L_p_wm_end")
    g("global_store_dword v94, v88, s[22:23] sc1")
    g("s_branch L_p_wm_end")
    b.extend(g)

    b("L_p_w2:")
    g = b.fork()
    srd(g, 16, D * F * 2)
    g("s_sub_u32 s38, s2, 120")
    div9(g, 36, 37, 38)
    g("s_mul_i32 s32, s36, %d" % (576 * 1152))
    g("s_lshl_b32 s33, s37, 7")
    g("s_add_u32 s32, s32, s33")
    lane128(g, D * 2)
    stage_loads(g, cfg, D * 2, 8, 128)
    g("v_lshl_add_u32 v10, v5, 2, v4")
    g("v_lshlrev_b32 v10, 7, v10")
    col128(g, 10)
    g("v_add_u32 v11, 0x10000, v10")
    g("s_sub_u32 s38, s37, s36")
    g("s_add_u32 s38, s38, 7")
    g("s_and_b32 s38, s38, 7")
    g("s_add_u32 s38, s38, 1")
    g("s_cmp_eq_u32 s37, 8")
    g("s_cselect_b32 s38, 0, s38")
    g("s_mul_i32 s39, s38, 18")
    g("s_cmp_lt_u32 s38, 2")
    g("s_cselect_b32 s39, s38, s39")
    g("s_cselect_b32 s43, 2, 1")
    g("s_lshl_b32 s43, s43, 10")
    g("s_add_u32 s39, s39, 162")
    g("s_lshl_b32 s39, s39, 10")
    g("s_lshl_b32 s41, s36, 2")
    g("s_add_u32 s41, s41, s24")
    g("s_mul_i32 s41, s41, %d" % WM_STREAM)
    g("s_add_u32 s41, s41, s39")
    g("s_add_u32 s41, s41, %d" % WM_OFF)
    g("v_add_u32 v9, s41, v7")
    process(g, cfg, lambda j, h: (10, 4096 * j + 2048 * h) if j < 16 else (11, 4096 * (j - 16) + 2048 * h), pi_blk, False,
            lambda j: store(g, cfg, j, "s43"))
    g("L_p_wm_end:")
    g("s_lshl_b32 s40, s36, 8")
    g("s_add_u32 s40, s40, %d" % (FLAG_OFF + FL_CW))
    g("s_branch L_p_fin")
    b.extend(g)

    b("L_p_wo:")
    g = b.fork()
    srd(g, 8, D * D * 2)
    g("s_sub_u32 s37, s2, 192")
    g("s_lshl_b32 s32, s37, 7")
    lane128(g, D * 2)
    stage_loads(g, cfg, D * 2, 8, 128)
    g("v_lshrrev_b32 v10, 1, v5")
    g("v_mul_u32_u24 v10, 20, v10")
    g("v_and_b32 v11, 1, v5")
    g("v_lshl_add_u32 v10, v11, 3, v10")
    g("v_add_u32 v10, v10, v4")
    g("v_lshlrev_b32 v10, 7, v10")
    col128(g, 10)
    g("v_add_u32 v11, %d, v10" % (8 * 4608))
    g("v_mul_u32_u24 v12, 72, v5")
    g("v_add3_u32 v12, v12, v4, 16")
    g("v_lshlrev_b32 v12, 7, v12")
    col128(g, 12)
    g("s_mul_i32 s38, s37, %d" % WO_CG)
    g("s_lshl_b32 s39, s24, 10")
    g("s_add_u32 s38, s38, s39")
    g("s_mul_i32 s39, s24, %d" % (2 * WO_CG))
    g("s_add_u32 s39, s39, %d" % (4 * KB))
    g("s_cmp_eq_u32 s37, 8")
    g("s_cselect_b32 s38, s39, s38")
    g("s_cselect_b32 s39, %d, 0" % (WO_CG - 128))
    g("s_cselect_b32 s42, 128, 0")
    g("s_add_u32 s38, s38, %d" % WO_OFF)
    g("v_lshrrev_b32 v9, 3, v6")
    g("v_mul_u32_u24 v9, s39, v9")
    g("v_add3_u32 v9, v9, v7, s38")

    def wo_store(j):
        g("global_store_dwordx4 v9, %s, s[22:23] sc1" % vr(FR + 4 * j, 4), vm="pub")
        g("s_cbranch_scc0 L_p_wo_%d" % j)
        g.L.append("global_store_dwordx4 v9, %s, s[22:23] offset:128 sc1" % vr(FR + 4 * j, 4))
        g("L_p_wo_%d:" % j)
        g("v_add_u32 v9, 0x1400, v9")

    g("s_cmp_eq_u32 s37, 8")
    process(g, cfg, lambda j, h: (10, 4608 * j + 512 * h) if j < 8 else
            (11, 4608 * (j - 8) + 512 * h) if j < 16 else (12, 36864 * (j - 16) + 4608 * h), pi_o, False, wo_store)
    g("s_mov_b32 s40, %d" % (FLAG_OFF + FL_CO))
    g("s_branch L_p_fin")
    b.extend(g)

    b("L_p_zero:")
    b("s_mov_b32 s33, 0")
    b("s_mov_b32 s40, 0")
    b("s_cmp_lt_u32 s2, %d" % (256 - NZERO))
    b("s_cbranch_scc1 L_p_fin0")
    assert FL_USED == NZERO * 8 * KB
    b("s_sub_u32 s38, s2, %d" % (256 - NZERO))
    b("s_lshl_b32 s38, s38, 2")
    b("s_add_u32 s38, s38, s24")
    b("s_lshl_b32 s38, s38, 11")
    b("s_add_u32 s38, s38, %d" % FLAG_OFF)
    b("v_add_u32 v9, s38, v7")
    for r in range(4):
        b("v_mov_b32 v%d, 0" % (12 + r))
    b("global_store_dwordx4 v9, v[12:15], s[22:23] sc1")
    b("global_store_dwordx4 v9, v[12:15], s[22:23] offset:1024 sc1")
    b("s_mov_b32 s28, 1")
    b.wait_all()
    b("s_barrier")
    b("s_cmp_lg_u32 s24, 0")
    b("s_cbranch_scc1 L_p_fin0")
    b("s_atomic_add s28, s[20:21], 0 glc")
    b("s_waitcnt lgkmcnt(0)")
    b("s_cmp_lg_u32 s28, %d" % (NZERO - 1))
    b("s_cbranch_scc1 L_p_fin0")
    b("s_mov_b32 s28, 1")
    b("s_atomic_add s28, s[20:21], 128")
    b("s_waitcnt lgkmcnt(0)")
    b("s_branch L_p_fin0")
    b("L_p_fin:")
    b("s_mov_b32 s33, 1")
    b("L_p_fin0:")
    add64(b, 70, 22, "s40")
    b("s_mov_b32 s65, s33")
    b.vmq, b.lgq = ["pub"], []
```

```python
import sys
from asmlib import *
from layout import *
import k0, k1, k2, k3, k4, mega

HEAD = open("interleave_layers__sliding_local_dilated__dense_activation_mish__prompt.s.ref").read().split("; Override launch")[0] if __import__("os").path.exists("interleave_layers__sliding_local_dilated__dense_activation_mish__prompt.s.ref") else ""

NAME = "interleave_layers__sliding_local_dilated__dense_activation_mish__prompt_kernel"


def desc(name, vgpr, acc):
    return ("""
.p2align 6
.amdhsa_kernel %s
  .amdhsa_next_free_vgpr %d
  .amdhsa_next_free_sgpr 102
  .amdhsa_accum_offset %d
  .amdhsa_group_segment_fixed_size 0
  .amdhsa_kernarg_size 80
  .amdhsa_user_sgpr_count 2
  .amdhsa_user_sgpr_kernarg_segment_ptr 1
  .amdhsa_system_sgpr_workgroup_id_x 1
.end_amdhsa_kernel""" % (name, vgpr, acc))


def generate(cfg):
    cfg.setdefault("R", 4)
    b0, d0, l0 = k0.gen_k0(cfg)
    launches = list(l0)
    if cfg.get("multi"):
        parts = [k1.gen_k1(cfg), k2.gen_k2(cfg), k3.gen_k3(cfg), k4.gen_k4(cfg)]
        for lay in range(2):
            for (bb, dd, lds) in parts:
                launches.append((dd[lay][0], 256, 256, lds))
    else:
        if cfg.get("plain"):
            cfg["name"] = NAME
        parts = [mega.gen_mega(cfg)]
        if cfg["ONE"]:
            b0, d0, launches = B(), [], []
        launches += parts[0][2]
    if cfg.get("empty_pre") or cfg.get("empty_post"):
        b0(".p2align 8\n.globl nop_kernel\n.type nop_kernel,@function\nnop_kernel:\ns_endpgm")
        d0 = d0 + [("nop_kernel", 8, 8)]
        launches = [("nop_kernel", 256, 256, 0)] * cfg.get("empty_pre", 0) + launches + [("nop_kernel", 256, 256, 0)] * cfg.get("empty_post", 0)
    if cfg.get("twice"):
        launches = launches + launches
    if cfg.get("k0twice"):
        launches = launches[:1] + launches
    errs = check_hazards(b0.L, "k0")
    for n, (bb, dd, lds) in enumerate(parts):
        errs += check_hazards(bb.L, "k%d" % (n + 1))
    for e in errs[:40]:
        print("HAZARD", e, file=sys.stderr)
    assert not errs
    out = HEAD
    for (k, g, blk, lds) in launches:
        if cfg.get("plain"):
            out += "; @launch grid=(%d,1,1) block=(%d,1,1) lds=%d\n" % (g, blk, lds)
        else:
            out += "; @launch kernel=%s grid=(%d,1,1) block=(%d,1,1) lds=%d\n" % (k, g, blk, lds)
    out += '.amdgcn_target "amdgcn-amd-amdhsa--gfx950"\n.text\n'
    out += b0.text()
    for (bb, dd, lds) in parts:
        out += bb.text()
    out += '.section .rodata,"a"\n'
    for d in d0 + [d for (bb, dd, lds) in parts for d in dd]:
        out += desc(*d)
    return out + "\n"


if __name__ == "__main__":
    cfg = {}
    for a in sys.argv[2:]:
        k, v = a.split("=", 1)
        try: v = int(v)
        except ValueError: v = v.replace("_", " ")
        cfg[k] = v
    open(sys.argv[1], "w").write(generate(cfg))
    if cfg.get("_late"): print("late reads:", cfg["_late"])
```

```python
from asmlib import *
from asmlib import _regs
from layout import *
from common import *
import prep

XT = 18 * KB
STL = 144 * KB
LDSM = 158 * KB
SPIN = 1 << 21

SB = 5 * XT
QO, KO, VO = 0, 80 * 144, 160 * 144
SUMO = 240 * 144
SSQO = SUMO + 320
RSO = SSQO + 320
ACC_Q, ACC_K, ACC_V, ACC_E = 16, 32, 52, 72
XB, NXB = 92, 3
RES = 244
OACC, OF, OWB = 16, 48, 120
HB = 72 * KB
ACC, BIAS, RS, TMP, PK, ST = 16, 64, 72, 76, 78, 84
SEL, RB0, RB1, A9, MRES, OWN = 64, 72, 92, 80, 36, 48
NB = 30
MADV = ["s_add_u32 s30, s30, 0x1800", "s_addc_u32 s31, s31, 0"]
MBACK = ["s_sub_u32 s30, s30, 0x3000", "s_subb_u32 s31, s31, 0"]
QADV = ["s_add_u32 s30, s30, 0x2000", "s_addc_u32 s31, s31, 0"]
RDY = "global_load_dword v152, v153, s[22:23] sc1"
MFMA = "v_mfma_f32_16x16x32_bf16 %s, %s, %s, %s"


def is_scalar(t):
    return t.startswith("s_")


class Lab:
    n = 0
    wf = ""


def lab(stem):
    Lab.n += 1
    return "L_%s_%d" % (stem, Lab.n)


def sync(b, cfg, cnt, tag, shadow, idle_work, nbr=False, tr=99):
    other, done, poll = lab("sy_o"), lab("sy_d"), lab("sy_p")
    b("s_lshl_b32 s40, s25, 8")
    b("s_add_u32 s40, s40, %d" % cnt)
    add64(b, 70, 68, "s40")
    if nbr:
        b("s_cmp_eq_u32 s25, 0")
        b("s_cselect_b32 s41, 0, 256")
        b("s_sub_u32 s66, s70, s41")
        b("s_subb_u32 s67, s71, 0")
    b("s_mov_b32 s28, 1")
    trace(b, cfg, tr)
    b.wait(vm=tag)
    b.wait_all(vm=False)
    trace(b, cfg, tr + 1)
    b("s_barrier")
    trace(b, cfg, tr + 2)
    b("s_cmp_lg_u32 s24, 0")
    b("s_cbranch_scc1 %s" % other)
    b("s_atomic_add s28, s[70:71], 0 glc")
    if nbr:
        b("s_load_dword s29, s[66:67], 0 glc")
    b("%s:" % other)
    idle_work(b)
    shadow(b)
    trace(b, cfg, tr + 3)
    b("s_cmp_lg_u32 s24, 0")
    b("s_cbranch_scc1 %s" % done)
    b("s_mov_b32 s41, 0")
    b("s_waitcnt lgkmcnt(0)")
    b("s_add_u32 s28, s28, 1")
    b("%s:" % poll)
    if nbr:
        b("s_and_b32 s28, s28, s29")
    b("s_cmp_eq_u32 s28, 8")
    b("s_cbranch_scc1 %s" % done)
    b("s_mov_b32 s28, 0")
    b("s_atomic_add s28, s[70:71], 0 glc")
    if nbr:
        b("s_mov_b32 s29, 0")
        b("s_atomic_add s29, s[66:67], 0 glc")
    b("s_add_u32 s41, s41, 1")
    b("s_cmp_gt_u32 s41, %d" % SPIN)
    b("s_waitcnt lgkmcnt(0)")
    b("s_cbranch_scc0 %s" % poll)
    b("%s:" % done)
    trace(b, cfg, tr + 4)
    b.wait(vm="wo")
    b("s_barrier")
    trace(b, cfg, tr + 5)


def qw(j, s):
    n = 4 * j + s
    return ar(4 * n, 4) if n < 64 else vr(224 + 4 * (n - 64), 4)


def qx(j, m):
    return vr(XB + 20 * (j % NXB) + 4 * m, 4)


def qw_load(j, s):
    return "global_load_dwordx4 %s, v7, s[30:31] offset:%d%s" % (qw(j, s), (j & 1) * 4096 - 4096 + 1024 * s, Lab.wf)


def qw_base(b):
    b("s_lshl_b32 s46, s26, 2")
    b("s_add_u32 s46, s46, s24")
    b("s_mul_i32 s46, s46, %d" % (72 * KB))
    b("s_add_u32 s46, s46, %d" % (WQ_OFF + 4096))
    add64(b, 30, 22, "s46")


def qw_pre(b, js):
    for j in js:
        for s in range(3):
            b(qw_load(j, s), vm="pre")
        skip = lab("qp")
        b("s_cmp_ge_u32 s24, 2")
        b("s_cbranch_scc1 %s" % skip)
        b.L.append(qw_load(j, 3))
        b("%s:" % skip)
        if j & 1:
            for t in QADV: b(t)


def q_setup(b, layer):
    b("s_mov_b32 s3, %d" % layer)
    add64(b, 48, 22, LAYER_OFF + layer * LAYER_SZ)
    add64(b, 68, 22, FLAG_OFF + layer * FL_LAYER)
    ps = 128 if layer == 0 else 2048
    b("s_mov_b32 s38, %d" % ps)
    b("s_mov_b32 s39, %d" % (2 * ps))
    b("s_mov_b32 s64, %d" % (ps // 4))
    b("s_mul_i32 s42, s27, %d" % XT)
    b("s_lshl_b32 s43, s25, 2")
    b("s_max_u32 s43, s43, 1")
    b("s_sub_u32 s43, s43, 1")
    b("s_mul_i32 s43, s43, %d" % XT)
    b("s_lshr_b32 s44, s24, 1")
    b("s_mul_i32 s44, s44, %d" % ps)
    b("s_add_u32 s43, s43, s44")
    if layer == 0:
        add64(b, 32, 4, "s42")
        add64(b, 34, 4, "s43")
    else:
        b("s_add_u32 s42, s42, %d" % X2_OFF)
        b("s_add_u32 s43, s43, %d" % X2_OFF)
        add64(b, 32, 22, "s42")
        add64(b, 34, 22, "s43")
    b("s_add_u32 s36, s24, 1")
    b("s_mul_i32 s36, s36, %d" % XT)
    b("s_lshl_b32 s37, s24, 10")
    b("v_lshrrev_b32 v13, 1, v5")
    if layer == 0:
        b("v_lshrrev_b32 v9, 3, v1")
        b("v_mul_u32_u24 v8, 1152, v9")
        b("v_and_b32 v10, 7, v1")
        b("v_xor_b32 v10, v10, v5")
        b("v_lshl_add_u32 v8, v10, 4, v8")
        b("v_xor_b32 v155, 64, v8")
        b("v_add_u32 v155, %d, v155" % (8 * 1152))
        b("v_lshrrev_b32 v10, 1, v6")
        b("v_xor_b32 v9, v10, v5")
        b("v_xor_b32 v13, v10, v13")
        b("v_xor_b32 v15, s26, v10")
        for r in (9, 13, 15):
            b("v_lshl_add_u32 v%d, v6, 3, v%d" % (r, r))
        b("v_lshlrev_b32 v9, 4, v9")
        b("v_xor_b32 v157, 64, v9")
    else:
        b("v_mov_b32 v8, v7")
        b("v_add_u32 v155, 0x400, v7")
        b("v_mov_b32 v9, v7")
        b("v_add_u32 v157, 0x400, v7")
        b("v_lshl_add_u32 v13, v13, 4, v6")
        b("v_lshl_add_u32 v15, s26, 4, v6")
    b("s_bitcmp1_b32 s24, 0")
    b("s_cselect_b64 vcc, -1, 0")
    b("v_add_u32 v10, %d, v9" % (3 * XT))
    b("v_add_u32 v158, %d, v157" % (3 * XT))
    b("v_cndmask_b32 v156, v8, v155, vcc")
    b("v_and_b32 v11, 1, v5")
    b("v_lshlrev_b32 v11, 3, v11")
    b("s_lshl_b32 s44, s26, 11")
    b("s_add_u32 s44, s44, s36")
    b("s_add_u32 s45, s36, %d" % (16 * KB))
    for r, s in ((13, 44), (15, 45)):
        b("v_lshl_add_u32 v%d, v%d, 4, v11" % (r, r))
        b("v_add_u32 v%d, s%d, v%d" % (r, s, r))
    b("v_xor_b32 v14, s64, v13")
    b("s_lshl_b32 s64, s64, 1")
    b("v_xor_b32 v159, s64, v13")
    b("v_xor_b32 v160, s64, v14")
    b("v_mul_u32_u24 v11, 144, v6")
    b("v_lshl_add_u32 v12, v5, 3, v11")
    b("s_lshl_b32 s47, s24, 5")
    b("s_add_u32 s47, s47, %d" % SB)
    b("v_add_u32 v11, s47, v12")
    b("s_lshl_b32 s44, s26, 8")
    b("s_sub_u32 s44, %d, s44" % (FL_CO - FL_CW))
    b("v_and_b32 v154, 1, v1")
    b("v_mul_u32_u24 v153, s44, v154")
    b("v_sub_u32 v153, %d, v153" % (FLAG_OFF + FL_CO))
    b("v_mad_u32_u24 v154, v154, 9, 9")


def x_items(js, qs, tag):
    out = []
    for j in js:
        out += [("s_mov_b32 m0, s36", None), ("s_add_u32 s36, s36, 0x400", None),
                ("global_load_lds_dwordx4 v%d, s[32:33] sc1" % (155 if j & 1 else 8), tag)]
        if j & 1:
            out += [("s_add_u32 s32, s32, s38", None), ("s_addc_u32 s33, s33, 0", None)]
    for q in qs:
        if q == 4:
            out += [("s_lshr_b32 s40, s24, 1", None), ("s_mul_i32 s41, s40, s38", None),
                    ("s_sub_u32 s34, s34, s41", None), ("s_subb_u32 s35, s35, 0", None),
                    ("s_lshl_b32 s41, s40, 11", None), ("s_sub_u32 s37, s37, s41", None)]
        out += [("s_mov_b32 m0, s37", None), ("s_add_u32 s37, s37, 0x1000", None),
                ("global_load_lds_dwordx4 v156, s[34:35] sc1", tag),
                ("s_add_u32 s34, s34, s39", None), ("s_addc_u32 s35, s35, 0", None)]
    return out


def qx_read(j, m):
    regs = (157, 158) if j & 1 else (9, 10)
    base, off = (regs[0], m * XT + (j >> 1) * 2 * KB) if m < 3 else (regs[1], (m - 3) * XT + (j >> 1) * 2 * KB)
    return "ds_read_b128 %s, %s offset:%d" % (qx(j, m), vr(base), off)


def q_gemm(b, cfg, kind):
    ns = 4 if kind == 0 else 3
    P = sum(cfg["WQP"])

    def w_items(js):
        out = []
        for j in js:
            out += [(qw_load(j, s), ("W", j)) for s in range(ns)]
            if j & 1:
                out += [(t, None) for t in QADV]
        return out

    xc_at = max(P, cfg.get("QXC", 7))
    q = w_items(range(P, xc_at)) + x_items(range(12, 18), (3, 4), "xC") + w_items(range(xc_at, 18))
    if cfg["ONE"]:
        q.append((RDY, "rdy"))
    b.vmq = ["xB"] * 7 + [("W", j) for j in range(P) for s in range(ns)]
    b.vmq[-1] = "J"
    nun = {0: 19, 1: 19, 2: 14}[kind]
    nvm = sum(1 for t, tag in q if tag)
    span = (18 - cfg.get("QLEAD", 3)) * nun
    issued = 0
    gap = 0
    for j in range(2):
        for m in range(5):
            b(qx_read(j, m), lg=("X", j))
    for j in range(18):
        reads = [qx_read(j + 2, m) for m in range(5)] if j + 2 < 18 else []
        need = [("W", j)] + (["xC"] if j == 9 else [])
        while any(tag in need for t, tag in q):
            t, tag = q.pop(0)
            b(t, vm=tag)
            issued += 1 if tag else 0
            cfg.setdefault("_late", []).append(("q", kind, j))
        b.wait(vm=need + (["J"] if j == min(3, P - 1) else []), lg=[("X", j)])
        if j in (3, 9):
            b("s_barrier")
        units = [(ACC_K + 4 * m, qw(j, 1), m) for m in range(5)]
        units += [(ACC_V + 4 * m, qw(j, 2), m) for m in range(5)]
        units += [(ACC_Q + 4 * (m - 1), qw(j, 0), m) for m in range(1, 5)]
        if kind == 0:
            units += [(ACC_E + 4 * m, qw(j, 3), m) for m in range(5)]
        elif kind == 1:
            units += [(ACC_E + 4 * m, qx(j, m), m) for m in range(5)]
        for acc, a, m in units:
            b(MFMA % (vr(acc, 4), a, qx(j, m), vr(acc, 4) if j else "0"))
            slots = 3
            if reads:
                if q and is_scalar(q[0][0]):
                    b(q.pop(0)[0])
                b(reads.pop(0), lg=("X", j + 2))
                slots = 1
            while q and slots:
                t, tag = q[0]
                if tag and issued * span > gap * nvm:
                    break
                q.pop(0)
                b(t, vm=tag)
                issued += 1 if tag else 0
                slots -= 1
            gap += 1
    assert not q
    stamp(b, cfg, 2)
    for t in range(4):
        b("ds_read_b64 %s, v%d" % (vr(RES + 2 * t, 2), (13, 14, 159, 160)[t]))
    b("ds_read_b64 %s, v15" % vr(RES + 8, 2))
    b("s_nop 2")


def pack_write(b, acc, addr, off, t):
    b("v_cvt_pk_bf16_f32 %s, %s, %s" % (vr(t), vr(acc), vr(acc + 1)))
    b("v_cvt_pk_bf16_f32 %s, %s, %s" % (vr(t + 1), vr(acc + 2), vr(acc + 3)))
    b("ds_write_b64 %s, %s offset:%d" % (vr(addr), vr(t, 2), off))


def main_writes(b):
    n = 0
    for acc, reg, ms in ((ACC_K, KO, range(5)), (ACC_V, VO, range(5)), (ACC_Q - 4, QO, range(1, 5))):
        for m in ms:
            pack_write(b, acc + 4 * m, 11, reg + 2304 * m, XB + 2 * (n % 8))
            n += 1


class Ring:
    def __init__(self):
        self.n = 0
        self.wo = 0

    def load(self, b, cnt):
        for _ in range(cnt):
            if self.wo < 22:
                b("global_load_lds_dwordx4 v7, s[34:35]" + Lab.wf, vm="wo")
                b("s_add_u32 m0, m0, 0x1000")
                b("s_add_u32 s34, s34, 0x1000")
                b("s_addc_u32 s35, s35, 0")
                if self.wo == 0:
                    b("s_cmp_ge_u32 s24, 2")
                    b("s_cbranch_scc1 L_q_wo_skip")
                    b.L.append("global_load_lds_dwordx4 v15, s[34:35]" + Lab.wf)
                    b("L_q_wo_skip:")
                    b("s_sub_u32 m0, m0, %d" % (21 * 4096))
                    b.L[-8] = "s_add_u32 m0, m0, %d" % (22 * 4096)
                    b("s_nop 0")
                self.wo += 1
            elif self.n < NB:
                b(mw_load(self.n), vm="pre")
                if self.n % 6 == 5:
                    for t in MADV: b(t)
                self.n += 1


def phase_q(b, cfg, ring, ool):
    for t, tag in x_items(range(0, 6), (0, 1), "xA") + x_items(range(6, 12), (2,), "xB"):
        b(t, vm=tag)
    b.wait(vm="xA")
    b("s_barrier")
    b("L_q_join:")
    stamp(b, cfg, 1)
    b("s_cmp_eq_u32 s24, 2")
    b("s_cbranch_scc1 L_q_w2")
    b("s_cmp_eq_u32 s24, 3")
    b("s_cbranch_scc1 L_q_w3")

    g = b.fork()
    q_gemm(g, cfg, 0)
    main_writes(g)
    g("s_cmp_eq_u32 s24, 1")
    g("s_cbranch_scc1 L_q_e1")
    g("v_lshrrev_b32 v3, 1, v5")
    g("v_mul_u32_u24 v3, %d, v3" % (VO - KO - 16))
    g("v_add_u32 v3, v3, v12")
    g("v_add_u32 v3, %d, v3" % (SB + KO + 128))
    for m in range(5):
        pack_write(g, ACC_E + 4 * m, 3, 2304 * m, XB + 16 + 2 * m)
    g("s_branch L_q_att")
    g("L_q_e1:")
    g("v_add_u32 v3, %d, v12" % (SB + QO + 128))
    g("v_lshlrev_b32 v4, 2, v6")
    g("v_add_u32 v4, %d, v4" % (SB + SUMO))
    g("s_mov_b32 exec_lo, 0")
    g("s_mov_b32 exec_hi, 0x0000ffff")
    for m in range(5):
        g("ds_write_b32 v4, %s offset:%d" % (vr(ACC_E + 4 * m), 64 * m))
    g("s_mov_b32 exec_lo, -1")
    g("s_mov_b32 exec_hi, 0")
    for m in range(1, 5):
        pack_write(g, ACC_E + 4 * m, 3, 2304 * m, XB + 16 + 2 * m)
    g("s_mov_b64 exec, -1")
    g("s_branch L_q_att")
    b.extend(g)

    b("L_q_w2:")
    g = b.fork()
    q_gemm(g, cfg, 1)
    main_writes(g)
    g("v_and_b32 v3, 3, v6")
    g("v_cmp_eq_u32 s[50:51], 1, v3")
    g("v_cmp_eq_u32 s[52:53], 2, v3")
    g("v_cmp_eq_u32 s[54:55], 3, v3")
    g("v_lshlrev_b32 v4, 2, v6")
    g("v_add_u32 v4, %d, v4" % (SB + SSQO))
    for m in range(5):
        a = ACC_E + 4 * m
        for r in range(1, 4):
            g("v_cndmask_b32 %s, %s, %s, s[%d:%d]" % (vr(a), vr(a), vr(a + r), 48 + 2 * r, 49 + 2 * r))
    g("s_mov_b32 exec_lo, 0x00f0000f")
    g("s_mov_b32 exec_hi, 0xf0000f00")
    for m in range(5):
        g("ds_write_b32 v4, %s offset:%d" % (vr(ACC_E + 4 * m), 64 * m))
    g("s_mov_b64 exec, -1")
    g("s_branch L_q_att")
    b.extend(g)

    b("L_q_w3:")
    g = b.fork()
    q_gemm(g, cfg, 2)
    main_writes(g)
    b.extend(g)

    b("L_q_att:")
    b.vmq, b.lgq = [], []
    Q, KR, VR, Z, RSV, O, SL = 16, 28, 124, 220, 228, 28, 46
    b("v_add_u32 v3, 2, v1")
    b("v_mul_u32_u24 v12, 144, v3")
    b("v_add_u32 v13, s47, v12")
    b("s_lshl_b32 s46, s24, 2")
    b("s_add_u32 s46, s46, %d" % (SB + 128))
    b("v_add_u32 v14, s46, v12")
    b("v_lshlrev_b32 v2, 2, v1")
    b("v_add_u32 v2, %d, v2" % SB)
    b("v_lshlrev_b32 v4, 2, v6")
    b("v_add_u32 v4, %d, v4" % SB)
    b("s_mul_i32 s40, s26, %d" % WO_CG)
    b("s_lshl_b32 s41, s24, 10")
    b("s_add_u32 s40, s40, s41")
    b("s_add_u32 s40, s40, %d" % WO_OFF)
    add64(b, 34, 22, "s40")
    b("s_mov_b32 m0, s41")
    b("v_add_u32 v15, %d, v7" % (21 * 4096))
    b("s_lshl_b32 s40, s26, 2")
    b("s_add_u32 s40, s40, s24")
    b("s_mul_i32 s40, s40, %d" % WM_STREAM)
    b("s_add_u32 s40, s40, %d" % (WM_OFF + 3072))
    add64(b, 30, 22, "s40")
    if cfg["ONE"]:
        b("s_waitcnt vmcnt(0)")
        b("v_cmp_ne_u32 vcc, v152, v154")
        b("s_cbranch_vccnz L_q_rdy_s")
        b("L_q_rdy_b:")
        ool("L_q_rdy_s:")
        ool("s_mov_b32 s41, 0")
        ool("L_q_rdy_l:")
        ool.L.append(RDY)
        ool("s_add_u32 s41, s41, 1")
        ool("s_cmp_gt_u32 s41, %d" % SPIN)
        ool("s_waitcnt vmcnt(0)")
        ool("s_cbranch_scc1 L_q_rdy_b")
        ool("v_cmp_ne_u32 vcc, v152, v154")
        ool("s_cbranch_vccnz L_q_rdy_l")
        ool("s_branch L_q_rdy_b")
    b.wait_all(vm=False)
    b("s_barrier")
    stamp(b, cfg, 3)

    st = dict(calls=0, done=0)

    def bg(n=1):
        st["calls"] += n
        want = min(cfg["RING"][0], -(-st["calls"] * cfg["RING"][0] // cfg.get("BGSPAN", 20)))
        ring.load(b, want - st["done"])
        st["done"] = want

    b("ds_read_b32 v236, v2 offset:%d" % (SUMO + 64), lg="st")
    b("ds_read_b32 v237, v2 offset:%d" % (SSQO + 64), lg="st")
    b("ds_read_b32 v238, v4 offset:%d" % SUMO, lg="st")
    b("ds_read_b32 v239, v4 offset:%d" % SSQO, lg="st")

    def row(dst, reg, w, tag):
        off = reg + 288 * (7 - w)
        b("ds_read_b128 %s, v13 offset:%d" % (vr(dst, 4), off), lg=tag)
        b("ds_read_b128 %s, v13 offset:%d" % (vr(dst + 4, 4), off + 16), lg=tag)
        b("ds_read_b32 %s, v14 offset:%d" % (vr(dst + 8), off), lg=tag)

    row(Q, QO, 0, "q")
    row(KR, KO, 0, ("k", 0))
    row(KR + 12, KO, 1, ("k", 1))
    bg(2)
    b.wait(lg="st")
    for t in (236, 238):
        b("v_mul_f32 %s, 0x%08x, %s" % (vr(t), f32(1.0 / 576), vr(t)))
        b("v_mul_f32 %s, 0x%08x, %s" % (vr(t + 1), f32(1.0 / 576), vr(t + 1)))
        b("v_fma_f32 %s, -%s, %s, %s" % (vr(t), vr(t), vr(t), vr(t + 1)))
        b("v_max_f32 %s, 0, %s" % (vr(t), vr(t)))
        b("v_add_f32 %s, 0x%08x, %s" % (vr(t), f32(1e-5), vr(t)))
        b("v_rsq_f32 %s, %s" % (vr(t), vr(t)))
    bg()
    b("s_nop 0")
    b("ds_write_b32 v2, v236 offset:%d" % (RSO + 64))
    b("ds_write_b32 v4, v238 offset:%d" % RSO)
    b("v_add_u32 v3, %d, v2" % (RSO + 8))
    for w in range(0, 8, 2):
        b("ds_read2_b32 %s, v3 offset0:%d offset1:%d" % (vr(RSV + w, 2), 2 * (7 - w), 2 * (6 - w)), lg="rs")
    for w in range(8):
        b("v_mov_b32 %s, 0" % vr(Z + w))
    for w in range(0, 8, 2):
        if w + 2 < 8:
            row(KR + 12 * (w + 2), KO, w + 2, ("k", w + 2))
            row(KR + 12 * (w + 3), KO, w + 3, ("k", w + 3))
        else:
            row(VR, VO, 0, ("v", 0))
            row(VR + 12, VO, 1, ("v", 1))
        bg()
        b.wait(lg=["q", ("k", w), ("k", w + 1)])
        for d in range(9):
            for ww in (w, w + 1):
                b("v_dot2c_f32_bf16 %s, %s, %s" % (vr(Z + ww), vr(Q + d), vr(KR + 12 * ww + d)))
        bg()
    for w in range(2, 5):
        row(VR + 12 * w, VO, w, ("v", w))
    b("v_mul_f32 v236, 0x%08x, v236" % f32(18 ** -0.5 * LOG2E))
    for w in range(8):
        b("v_mul_f32 %s, %s, %s" % (vr(Z + w), vr(Z + w), vr(RSV + w)))
    bg()
    for w in range(8):
        b("v_mul_f32 %s, %s, v236" % (vr(Z + w), vr(Z + w)))
    b("s_cmp_lg_u32 s25, 0")
    b("s_cbranch_scc1 L_q_nomask")
    b("v_mov_b32 v237, 0x%08x" % f32(-1e9 * LOG2E))
    for w in range(1, 8):
        b("v_cmp_le_u32 vcc, %d, v1" % (2 * w))
        b("s_nop 1")
        b("v_cndmask_b32 %s, v237, %s, vcc" % (vr(Z + w), vr(Z + w)))
    b("L_q_nomask:")
    b("v_max3_f32 v237, %s, %s, %s" % (vr(Z), vr(Z + 1), vr(Z + 2)))
    b("v_max3_f32 v238, %s, %s, %s" % (vr(Z + 3), vr(Z + 4), vr(Z + 5)))
    b("v_max3_f32 v237, v237, %s, %s" % (vr(Z + 6), vr(Z + 7)))
    b("v_max_f32 v237, v237, v238")
    for w in range(8):
        b("v_sub_f32 %s, %s, v237" % (vr(Z + w), vr(Z + w)))
    bg()
    for w in range(8):
        b("v_exp_f32 %s, %s" % (vr(Z + w), vr(Z + w)))
    bg()
    b.wait(lg=[("v", 0), ("v", 1)])
    for w in range(5, 8):
        row(VR + 12 * w, VO, w, ("v", w))
    b("v_add_f32 v237, %s, %s" % (vr(Z), vr(Z + 1)))
    b("v_add_f32 v238, %s, %s" % (vr(Z + 2), vr(Z + 3)))
    b("v_add_f32 v239, %s, %s" % (vr(Z + 4), vr(Z + 5)))
    b("v_add_f32 v240, %s, %s" % (vr(Z + 6), vr(Z + 7)))
    b("v_add_f32 v237, v237, v238")
    b("v_add_f32 v239, v239, v240")
    b("v_add_f32 v237, v237, v239")
    b("v_rcp_f32 v237, v237")
    bg()
    for w in range(8):
        b("v_mul_f32 %s, %s, %s" % (vr(Z + w), vr(Z + w), vr(RSV + w)))
    for w in range(8):
        b("v_mul_f32 %s, %s, v237" % (vr(Z + w), vr(Z + w)))
    bg()
    for w in range(8):
        b("v_cvt_pk_bf16_f32 %s, %s, 0" % (vr(SL + 2 * w), vr(Z + w)))
        b("v_lshlrev_b32 %s, 16, %s" % (vr(SL + 2 * w + 1), vr(SL + 2 * w)))
    for w in range(8):
        bg()
        b.wait(lg=[("v", w)])
        for d in range(9):
            for hh in range(2):
                o = vr(O + 2 * d + hh)
                if w == 0:
                    b("v_dot2_f32_bf16 %s, %s, %s, 0" % (o, vr(VR + d), vr(SL + hh)))
                else:
                    b("v_dot2c_f32_bf16 %s, %s, %s" % (o, vr(VR + 12 * w + d), vr(SL + 2 * w + hh)))
    bg(99)
    b("v_lshrrev_b32 v3, 4, v1")
    b("v_mul_u32_u24 v3, %d, v3" % XT)
    b("v_lshl_add_u32 v3, v6, 4, v3")
    b("s_mul_i32 s40, s25, %d" % (4 * XT))
    b("s_lshl_b32 s41, s26, 11")
    b("s_lshl_b32 s42, s24, 9")
    b("s_add_u32 s41, s41, s42")
    b("s_add_u32 s41, s41, s40")
    b("v_add_u32 v8, s41, v3")
    b("s_lshl_b32 s40, s25, 5")
    b("s_lshl_b32 s41, s26, 2")
    b("s_add_u32 s40, s40, s41")
    b("s_add_u32 s40, s40, s24")
    b("s_lshl_b32 s40, s40, 8")
    b("s_add_u32 s40, s40, %d" % L_OT)
    b("v_lshl_add_u32 v9, v1, 2, s40")
    for d in range(9):
        b("v_cvt_pk_bf16_f32 %s, %s, %s" % (vr(Q + d), vr(O + 2 * d), vr(O + 2 * d + 1)))
    assert L_O == 0
    b("global_store_dwordx4 v8, %s, s[48:49] sc1" % vr(Q, 4), vm="pub")
    b("global_store_dwordx4 v8, %s, s[48:49] offset:256 sc1" % vr(Q + 4, 4), vm="pub")
    b("global_store_dword v9, %s, s[48:49] sc1" % vr(Q + 8), vm="pub")
    stamp(b, cfg, 4)
    trace(b, cfg, 29)


def ow(j, t):
    return vr(OWB + 20 * (j % 3) + 4 * t, 4)


def ow_read(j, t):
    n = 5 * j + t
    regs = (10, 11) if t == 4 else (7, 9)
    base, off = (regs[0], n * KB) if n < 60 else (regs[1], (n - 60) * KB)
    return "ds_read_b128 %s, %s offset:%d" % (ow(j, t), vr(base), off)


def o_setup(b):
    b("v_add_u32 v9, %d, v7" % (60 * KB))
    b("v_and_b32 v10, 0x37f, v7")
    b("v_add_u32 v11, %d, v10" % (60 * KB))
    for j in range(2):
        for t in range(5):
            b(ow_read(j, t), lg=("W", j))
    b("s_mul_i32 s36, s27, %d" % XT)
    b("s_add_u32 s37, s36, 4096")
    add64(b, 32, 48, "s37")
    b("s_lshl_b32 s37, s25, 13")
    b("s_lshl_b32 s42, s24, 6")
    b("s_add_u32 s37, s37, s42")
    b("s_add_u32 s37, s37, %d" % (L_OT + 4096))
    b("v_lshlrev_b32 v8, 10, v5")
    b("v_lshl_add_u32 v8, v6, 2, v8")
    b("v_add_u32 v8, s37, v8")
    b("s_lshl_b32 s37, s26, 11")
    b("s_add_u32 s37, s37, s36")
    b("s_add_u32 s37, s37, %d" % L_X1)
    b("v_add_u32 v12, s37, v7")
    b("s_lshl_b32 s37, s26, 8")
    b("s_add_u32 s37, s37, s36")
    b("s_add_u32 s37, s37, %d" % (L_X1 + 16 * KB))
    b("v_lshlrev_b32 v13, 4, v6")
    b("v_lshl_add_u32 v13, v5, 3, v13")
    b("v_add_u32 v13, s37, v13")
    b("s_lshl_b32 s37, s27, 10")
    b("s_lshl_b32 s42, s26, 7")
    b("s_add_u32 s37, s37, s42")
    b("s_add_u32 s37, s37, %d" % L_ST)
    b("v_lshl_add_u32 v14, v6, 3, s37")


def phase_o(b, cfg, ring):
    q = []
    for j in range(16):
        q.append(("global_load_dwordx4 %s, v7, s[32:33] offset:%d sc1" % (vr(OF + 4 * j, 4), (j % 8) * KB - 4096), ("o", j)))
        if j == 7:
            q += [("s_add_u32 s32, s32, 0x2000", None), ("s_addc_u32 s33, s33, 0", None)]
    for j in (16, 17):
        for h in range(4):
            q.append(("global_load_dword %s, v8, s[48:49] offset:%d sc1" % (vr(OF + 4 * j + h), (j - 17) * 4096 + 256 * h), ("o", j)))
    first = cfg.get("OFIRST", 8)
    while sum(1 for t in b.vmq if isinstance(t, tuple) and t[0] == "o") < first:
        t, tag = q.pop(0)
        b(t, vm=tag)
    nring = cfg["RING"][3]
    for j in range(18):
        assert not any(tag == ("o", j) for t, tag in q)
        b.wait(vm=[("o", j)], lg=[("W", j)])
        if j in (0, 8, 16):
            trace(b, cfg, 36 + j // 8)
        for t in range(5):
            a = vr(OACC + 4 * t, 4)
            b(MFMA % (a, ow(j, t), vr(OF + 4 * j, 4), a if j else "0"))
            if t in (0, 2):
                while q and not q[0][1]:
                    b(q.pop(0)[0])
                if q:
                    tt, tag = q.pop(0)
                    b(tt, vm=tag)
                elif nring and t == 0:
                    ring.load(b, 1)
                    nring -= 1
            if j + 2 < 18:
                b(ow_read(j + 2, t), lg=("W", j + 2))
    assert not q
    ring.load(b, nring)
    stamp(b, cfg, 5)
    trace(b, cfg, 39)
    T = OF
    for t in range(5):
        for p in range(2):
            b("v_lshlrev_b32 %s, 16, %s" % (vr(T + 8 + 4 * t + 2 * p), vr(RES + 2 * t + p)))
            b("v_and_b32 %s, 0xffff0000, %s" % (vr(T + 9 + 4 * t + 2 * p), vr(RES + 2 * t + p)))
    for t in range(5):
        for p in range(2):
            a = OACC + 4 * t + 2 * p
            b("v_pk_add_f32 %s, %s, %s" % (vr(a, 2), vr(a, 2), vr(T + 8 + 4 * t + 2 * p, 2)))
            b("v_cvt_pk_bf16_f32 %s, %s, %s" % (vr(RES + 2 * t + p), vr(a), vr(a + 1)))
        if t == 1:
            b("global_store_dwordx4 v12, %s, s[48:49] sc1" % vr(RES, 4), vm="pub")
        if t == 3:
            b("global_store_dwordx4 v12, %s, s[48:49] offset:1024 sc1" % vr(RES + 4, 4), vm="pub")
    b("v_mov_b32 v2, 0x3f803f80")
    b("v_mov_b32 %s, 0" % vr(T + 2))
    b("v_mov_b32 %s, 0" % vr(T + 3))
    b("s_mov_b32 exec_hi, 0")
    b("global_store_dwordx2 v13, %s, s[48:49] sc1" % vr(RES + 8, 2), vm="pub")
    for r in (8, 9, -1, 0, 1, 2, 3, 4, 5, 6, 7):
        if r < 0:
            b("s_mov_b32 exec_hi, -1")
            continue
        b("v_dot2c_f32_bf16 %s, %s, v2" % (vr(T + 2), vr(RES + r)))
        b("v_dot2c_f32_bf16 %s, %s, %s" % (vr(T + 3), vr(RES + r), vr(RES + r)))
    b("s_nop 2")
    for op in ("v_permlane16_swap_b32", "v_permlane32_swap_b32"):
        b("v_mov_b32 %s, %s" % (vr(T + 4), vr(T + 2)))
        b("v_mov_b32 %s, %s" % (vr(T + 5), vr(T + 3)))
        b("s_nop 0")
        b("%s %s, %s" % (op, vr(T + 2), vr(T + 4)))
        b("%s %s, %s" % (op, vr(T + 3), vr(T + 5)))
        b("v_add_f32 %s, %s, %s" % (vr(T + 2), vr(T + 2), vr(T + 4)))
        b("v_add_f32 %s, %s, %s" % (vr(T + 3), vr(T + 3), vr(T + 5)))
    b("s_mov_b64 exec, 0xffff")
    b("global_store_dwordx2 v14, %s, s[48:49] sc1" % vr(T + 2, 2), vm="pub")
    b("s_mov_b64 exec, -1")


def mx(j, m):
    n = 4 * j + m
    return ar(120 + 4 * n, 4) if n < 34 else vr(104 + 4 * (n - 34), 4)


def slot(n):
    return ar(4 * (n % NB), 4)


def mw_load(n):
    return "global_load_dwordx4 %s, v7, s[30:31] offset:%d%s" % (slot(n), (n % 6) * KB - 3072, Lab.wf)


class M:
    pass


def aset2(u):
    return (1, 2, 0, 1, 0, 1, 0, 1, 2)[u]


def build_mfmas(cfg):
    G = cfg.get("G", 6)
    GD = cfg.get("GD", 4)
    std = [list(range(k, min(k + G, 18))) for k in range(0, 18, G)]
    dbl = [list(range(k, min(k + GD, 16))) for k in range(0, 16, GD)] + [[16, 17]]
    out = []

    def add(seg, aset, m, j, n, src):
        x = M()
        x.seg, x.aset, x.m, x.j, x.n, x.src = seg, aset, m, j, n, src
        out.append(x)

    for t in range(9):
        for grp in std:
            for m in range(4):
                for j in grp:
                    add(("p1", t), t % 2, m, j, 18 * t + j, "X")
    for grp in dbl:
        for m in range(4):
            for u in range(2):
                for j in grp:
                    add(("p2", u), aset2(u), m, j, w2_pos(u, j), "H")
    for u in range(2, 9):
        for grp in std:
            for m in range(4):
                for j in grp:
                    add(("p2", u), aset2(u), m, j, w2_pos(u, j), "H")
    return out


def mish_groups(t, m):
    a = ACC + 16 * (t % 2) + 4 * m
    bi = BIAS + 4 * (t % 2)
    G = []
    for p in (0, 2):
        x, y = a + p, a + p + 1
        G.append(["v_fma_f32 %s, %s, %s, %s" % (vr(x), vr(x), vr(RS + m), vr(bi + p)),
                  "v_fma_f32 %s, %s, %s, %s" % (vr(y), vr(y), vr(RS + m), vr(bi + p + 1))])
        G.append(["v_exp_f32 %s, %s" % (vr(TMP), vr(x))])
        G.append(["v_exp_f32 %s, %s" % (vr(TMP + 1), vr(y))])
        G.append(["v_fma_f32 %s, %s, s56, s56" % (vr(TMP + q), vr(TMP + q)) for q in range(2)])
        G.append(["v_fma_f32 %s, -%s, %s, -0.5" % (vr(TMP + q), vr(TMP + q), vr(TMP + q)) for q in range(2)])
        G.append(["v_rcp_f32 %s, %s" % (vr(TMP), vr(TMP))])
        G.append(["v_rcp_f32 %s, %s" % (vr(TMP + 1), vr(TMP + 1))])
        G.append(["v_fmac_f32 %s, %s, %s" % (vr(x), vr(x), vr(TMP)),
                  "v_fmac_f32 %s, %s, %s" % (vr(y), vr(y), vr(TMP + 1))])
    pk = PK + 2 * (m & 1)
    G.append(["v_cvt_pk_bf16_f32 %s, %s, %s" % (vr(pk), vr(a), vr(a + 1)),
              "v_cvt_pk_bf16_f32 %s, %s, %s" % (vr(pk + 1), vr(a + 2), vr(a + 3))])
    base, off = (11, 8192 * t + KB * m) if t < 4 else (12, 8192 * (t - 4) + KB * m)
    G.append(["ds_write_b64 %s, %s offset:%d" % (vr(base), vr(pk, 2), off)])
    return G


def m_setup(b):
    b("v_add_u32 v8, %d, v7" % (2 * XT))
    b("v_add_u32 v9, %d, v7" % HB)
    b("v_add_u32 v10, %d, v7" % (HB + 32768))
    b("s_lshr_b32 s46, s24, 1")
    b("s_lshl_b32 s46, s46, 12")
    b("s_and_b32 s47, s24, 1")
    b("s_lshl_b32 s47, s47, 3")
    b("s_add_u32 s46, s46, s47")
    b("v_add_u32 v11, s46, v9")
    b("v_add_u32 v12, s46, v10")
    b("s_mul_i32 s46, s26, 2304")
    b("s_lshl_b32 s47, s24, 6")
    b("s_add_u32 s46, s46, s47")
    b("s_add_u32 s46, s46, %d" % B1_OFF)
    b("v_lshl_add_u32 v13, v5, 4, s46")
    b("s_lshl_b32 s46, s27, 10")
    b("s_add_u32 s46, s46, %d" % L_ST)
    add64(b, 34, 48, "s46")
    b("s_lshl_b32 s37, s24, 10")
    b("s_add_u32 s37, s37, %d" % STL)
    b("v_lshlrev_b32 v14, 10, v5")
    b("v_lshl_add_u32 v14, v6, 3, v14")
    b("v_add_u32 v14, %d, v14" % STL)
    b("s_mov_b32 s56, 0x%08x" % f32(0.5 ** 0.5))
    b("s_mul_i32 s46, s25, %d" % (36 * 16 * KB))
    b("s_lshl_b32 s47, s24, 14")
    b("s_add_u32 s46, s46, s47")
    b("s_add_u32 s46, s46, %d" % L_PART)
    add64(b, 58, 48, "s46")
    b("s_lshl_b32 s46, s25, 12")
    b("s_lshl_b32 s47, s24, 7")
    b("s_add_u32 s46, s46, s47")
    b("s_add_u32 s46, s46, %d" % FL_P)
    add64(b, 72, 68, "s46")
    b("s_mul_i32 s46, s27, %d" % XT)
    b("s_add_u32 s46, s46, %d" % L_X1)
    add64(b, 32, 48, "s46")
    b("s_mul_i32 s36, s24, %d" % XT)
    b("s_mov_b32 m0, s37")
    b("s_mov_b32 s54, 1")
    for t in range(2):
        b("global_load_dwordx4 %s, v13, s[22:23] offset:%d%s" % (vr(BIAS + 4 * t, 4), 256 * t, Lab.wf), vm="pre")


def send_ptr(u):
    sp, fp = 60 + 2 * (u % 2), 64 + 2 * (u % 2)
    if u == 0:
        return ["s_lshl_b32 s57, s26, 11", "s_add_u32 s57, s57, %d" % (32 * 16 * KB),
                "s_add_u32 s%d, s58, s57" % sp, "s_addc_u32 s%d, s59, 0" % (sp + 1)]
    return ["s_add_u32 s57, s26, %d" % u, "s_and_b32 s57, s57, 7", "s_lshl_b32 s55, s57, 9",
            "s_lshl_b32 s57, s57, 16", "s_add_u32 s57, s57, %d" % (u * 2048),
            "s_add_u32 s%d, s58, s57" % sp, "s_addc_u32 s%d, s59, 0" % (sp + 1),
            "s_add_u32 s%d, s72, s55" % fp, "s_addc_u32 s%d, s73, 0" % (fp + 1)]


def flag_store(u):
    fp = 64 + 2 * (u % 2)
    return ["s_atomic_add s54, s[%d:%d], %d" % (fp, fp + 1, 4 * u)]


def tail_setup():
    I = []
    I += ["v_lshrrev_b32 v2, 2, v6", "v_and_b32 v3, 1, v6", "v_cmp_eq_u32 vcc, v2, v5", "v_lshlrev_b32 v3, 4, v3",
          "v_mov_b32 v4, 0x3f80", "v_lshlrev_b32 v3, v3, v4", "v_cndmask_b32 v3, 0, v3, vcc", "v_and_b32 v2, 2, v6",
          "v_cmp_eq_u32 vcc, 0, v2", "v_mov_b32 %s, 0" % vr(SEL + 2), "v_mov_b32 %s, 0" % vr(SEL + 3), "v_and_b32 v4, 7, v1",
          "v_cndmask_b32 %s, 0, v3, vcc" % vr(SEL), "v_sub_u32 %s, v3, %s" % (vr(SEL + 1), vr(SEL))]
    for r in (4, 6):
        I += ["v_mov_b32 %s, %s" % (vr(SEL + r), vr(SEL)), "v_mov_b32 %s, %s" % (vr(SEL + r + 1), vr(SEL + 1))]
    I += ["v_add_u32 v4, s74, v4"]
    I += ["v_lshl_add_u32 v8, v5, 4, v4", "v_lshrrev_b32 v2, 3, v6", "v_lshlrev_b32 v8, 4, v8", "v_lshrrev_b32 v3, 1, v5",
          "v_lshl_add_u32 v8, v2, 11, v8", "v_lshl_add_u32 v10, v3, 4, v4", "v_add_u32 v8, s75, v8", "v_and_b32 v2, 1, v5",
          "v_lshlrev_b32 v10, 4, v10", "v_add_u32 v9, s76, v7", "v_lshl_add_u32 v10, v2, 3, v10", "v_mul_u32_u24 v11, %d, v2" % XT,
          "v_add_u32 v10, s77, v10", "v_add_u32 v13, 0x2000, v8"]
    return [I[k:k + 2] for k in range(0, len(I), 2)]


def tail_scalars():
    return ["s_and_b32 s74, s26, 1", "s_lshl_b32 s74, s74, 3",
            "s_lshr_b32 s75, s26, 2", "s_lshl_b32 s75, s75, 10", "s_and_b32 s55, s26, 2", "s_lshl_b32 s55, s55, 2",
            "s_add_u32 s75, s75, s55", "s_add_u32 s75, s75, %d" % (32 * 16 * KB + 4096),
            "s_lshl_b32 s76, s26, 1", "s_lshr_b32 s55, s24, 1", "s_add_u32 s76, s76, s55", "s_lshl_b32 s76, s76, 10",
            "s_and_b32 s55, s24, 1", "s_lshl_b32 s55, s55, 3", "s_add_u32 s76, s76, s55",
            "s_lshr_b32 s77, s26, 1", "s_mul_i32 s77, s77, %d" % XT, "s_lshl_b32 s55, s24, 9", "s_add_u32 s77, s77, s55",
            "s_add_u32 s77, s77, %d" % (16 * KB),
            "s_lshl_b32 s55, s26, 16", "s_add_u32 s55, s55, %d" % (2048 + 4096), "s_add_u32 s52, s58, s55", "s_addc_u32 s53, s59, 0",
            "s_add_u32 s50, s52, 0x2000", "s_addc_u32 s51, s53, 0",
            "s_lshl_b32 s55, s26, 9", "s_add_u32 s78, s72, s55", "s_addc_u32 s79, s73, 0"]


def rbuf(u):
    return (RB0, RB1)[u % 2]


def recv_loads(u):
    base, k = ("s[52:53]", u - 1) if u <= 4 else ("s[50:51]", u - 5)
    return ["global_load_dwordx4 %s, v7, %s offset:%d sc1" % (vr(rbuf(u) + 4 * h, 4), base, (2 * k + h) * KB - 4096) for h in range(2)]


def recv_mfmas(u):
    out = []
    for h in range(2):
        for p in range(2):
            a = vr(OWN + 4 * (2 * h + p), 4)
            out.append(MFMA % (a, vr(SEL + 2 * p, 4), vr(rbuf(u) + 4 * h, 4), a if u > 1 else "0"))
    return out


def assert_free(vq, i, reg):
    r = _regs(reg)
    for it in vq:
        if it["e"] - 8 > i:
            break
        for t in it["g"]:
            p = parse(t)
            if p is not None:
                assert not (r & (p.r | p.w)), (i, reg, t)


def phase_m(b, cfg, ring, ool):
    def xd(js, tag):
        out = []
        for j in js:
            if j % 4 == 0 and j:
                out += [("s_add_u32 m0, m0, 0x1000", None), ("s_add_u32 s32, s32, 0x1000", None), ("s_addc_u32 s33, s33, 0", None)]
            out.append(("global_load_lds_dwordx4 v7, s[32:33] offset:%d sc1" % ((j % 4) * KB), tag))
        return out

    b("global_load_lds_dwordx4 v7, s[34:35] sc1", vm="xA")
    b("s_mov_b32 m0, s36")
    b("s_nop 0")
    xall = xd(range(0, 6), "xA") + xd(range(6, 12), "xB") + xd(range(12, 18), "xC")
    while sum(1 for t in b.vmq if t in ("xA", "xB", "xC")) < 1 + cfg.get("MFIRST", 12):
        t, tag = xall.pop(0)
        b(t, vm=tag)
    SV = ACC + 16
    gq = xall

    mf = build_mfmas(cfg)
    N = len(mf)
    first_w, last_w, first_b, last_acc, last_x, seg_start = {}, {}, {}, {}, {}, {}
    for i, x in enumerate(mf):
        first_w.setdefault(x.n, i)
        last_w[x.n] = i
        first_b.setdefault((x.src, x.j, x.m), i)
        last_acc[(x.seg, x.m)] = i
        seg_start.setdefault(x.seg, i)
        if x.src == "X":
            last_x[(x.j, x.m)] = i

    def bread(src, j, m):
        if src == "X":
            base, off = (7, m * XT + j * KB) if m < 2 else (8, (m - 2) * XT + j * KB)
        else:
            base, off = (9, 4096 * j + KB * m) if j < 8 else (10, 4096 * (j - 8) + KB * m)
        return "ds_read_b128 %s, %s offset:%d" % (mx(j, m), vr(base), off)

    def stage(src, j):
        if src == "X":
            return "xA" if j < 6 else "xB" if j < 12 else "xC"
        return "hA" if j < 14 else "hB" if j < 16 else "hC"

    LA = cfg.get("LA", 12)
    dq = sorted(first_b, key=lambda k: first_b[k])
    vq = []

    def V(e, g, tag=None, wait=None, force=False):
        vq.append(dict(e=e, g=g, tag=tag, wait=wait, force=force))

    sti = []
    for step in (8, 4, 2):
        sti += ["v_add_f32 %s, %s, %s" % (vr(SV + q), vr(SV + q), vr(SV + q + step)) for q in range(step)]
    sti += ["v_mul_f32 %s, 0x%08x, %s" % (vr(SV + q), f32(1.0 / 576), vr(SV + q)) for q in range(2)]
    sti += ["v_fma_f32 %s, -%s, %s, %s" % (vr(SV), vr(SV), vr(SV), vr(SV + 1)), "v_max_f32 %s, 0, %s" % (vr(SV), vr(SV))]
    stg = [sti[k:k + 2] for k in range(0, len(sti), 2)]
    stg += [["v_add_f32 %s, 0x%08x, %s" % (vr(SV), f32(1e-5), vr(SV)), "v_rsq_f32 %s, %s" % (vr(SV), vr(SV))],
            ["v_mul_f32 %s, 0x%08x, %s" % (vr(RS + q), f32(LOG2E), vr(SV)) for q in range(2)],
            ["s_nop 0", "v_permlane16_swap_b32 %s, %s" % (vr(RS), vr(RS + 1))],
            ["v_mov_b32 %s, %s" % (vr(RS + 2 + q), vr(RS + q)) for q in range(2)],
            ["s_nop 0", "v_permlane32_swap_b32 %s, %s" % (vr(RS), vr(RS + 2))],
            ["v_permlane32_swap_b32 %s, %s" % (vr(RS + 1), vr(RS + 3))]]
    for q in range(4):
        V(cfg.get("STAT_AT", 42) - 12, ["ds_read2_b64 %s, v14 offset0:%d offset1:%d" % (vr(SV + 4 * q, 4), 32 * q, 32 * q + 16)], tag="st", force=True)
    for n, g in enumerate(stg):
        V(cfg.get("STAT_AT", 42), g, wait="st" if n == 0 else None, force=True)
    for t in range(9):
        for m in range(4):
            gs = mish_groups(t, m)
            for n, g in enumerate(gs):
                V(last_acc[(("p1", t), m)] + 4, g, tag=("hw", t) if n == len(gs) - 1 else None,
                  wait=("bias", t) if (m == 0 and n == 0) else None)

    def stbuf(u):
        return ST + (8 if u == 1 else 0)

    def cvts(u):
        st = stbuf(u)
        a = ACC + 16 * aset2(u)
        for m in range(4):
            V(last_acc[(("p2", u), m)] + 8, ["v_cvt_pk_bf16_f32 %s, %s, %s" % (vr(st + 2 * m + r), vr(a + 4 * m + 2 * r), vr(a + 4 * m + 2 * r + 1))
                                            for r in range(2)])

    def stores(u):
        st, sp = stbuf(u), 60 + 2 * (u % 2)
        if cfg.get("NOST"):
            return ["s_nop 0"]
        return ["global_store_dwordx4 v7, %s, s[%d:%d] offset:%d%s" % (vr(st + 4 * h, 4), sp, sp + 1, h * KB, cfg.get("sc_part", " sc1")) for h in range(2)]

    UP = cfg.get("UP", 5)
    PB = rbuf(UP - 1)

    def poll(u):
        g = ["s_load_dword s28, s[78:79], %d glc" % (4 * u)]
        if u == UP - 2:
            g.append("s_load_dword s29, s[72:73], 64 glc")
        return g

    def test(u):
        return (["s_lshr_b32 s29, s29, 3", "s_and_b32 s28, s28, s29"] if u == UP - 2 else []) + ["s_cmp_eq_u32 s28, 1"]

    def check(e, u):
        slow, back = lab("rc_s"), lab("rc_b")
        V(e, ["s_waitcnt lgkmcnt(0)"] + test(u) + ["s_cbranch_scc0 %s" % slow, "%s:" % back])
        ool("%s:" % slow)
        ool("s_mov_b32 s41, 0")
        ool("%s_l:" % slow)
        for t in poll(u): ool(t)
        ool("s_add_u32 s41, s41, 1")
        ool("s_cmp_gt_u32 s41, %d" % SPIN)
        ool("s_waitcnt lgkmcnt(0)")
        ool("s_cbranch_scc1 %s" % back)
        for t in test(u): ool(t)
        ool("s_cbranch_scc0 %s_l" % slow)
        ool("s_branch %s" % back)

    E = {u: last_acc[(("p2", u), 3)] + 8 for u in range(9)}
    PAT, SAT, FAT = cfg.get("POLL_AT", 40), cfg.get("SUM_AT", 48), cfg.get("FLAG_AT", 40)
    piece = ["global_load_dwordx2 %s, v%d, s[58:59] offset:%d sc1" % (vr(PB + 2 * q, 2), (8, 13)[q >> 1], (q & 1) * 4096 - 4096) for q in range(4)]
    for u in range(1, 8):
        if u == 1:
            cvts(0)
        cvts(u)
        e = E[u]
        if u >= 3:
            check(e, u - 2)
        if u == 1:
            V(e, stores(0), tag=("st", 1))
        V(e, stores(u), tag=("st", u))
        if u == 1:
            for g in tail_setup():
                V(e, g)
        if u >= 3 and not cfg.get("NORECV"):
            V(e, recv_loads(u - 2), tag=("r", u - 2))
        if u == UP:
            V(e, piece[:2], tag="r9")
            V(e, piece[2:], tag="r9")
        if u == 7:
            V(e, ["ds_read_b64 %s, v9" % vr(MRES, 2), "ds_read_b64 %s, v9 offset:%d" % (vr(MRES + 2, 2), XT)], tag="res")
            V(e, ["ds_read_b64 %s, v9 offset:%d" % (vr(MRES + 4 + 2 * q, 2), (2 + q) * XT) for q in range(2)], tag="res")
            V(e, ["ds_read_b64 %s, v10" % vr(MRES + 8, 2)], tag="res")
            V(e, poll(6))
            check(e + cfg.get("FLAG7", 32), 6)
            V(e, flag_store(7), wait=("st", 7))
            V(e, recv_loads(6), tag=("r", 6))
        ev = []
        if 2 <= u <= 6:
            ev.append((PAT, poll(u - 1), None))
        if u <= 6:
            ev.append((FAT, flag_store(u) + (["s_atomic_add s54, s[72:73], 64"] if u == 1 else []), ("st", u)))
        if 3 <= u <= 6:
            ev.append((SAT, recv_mfmas(u - 2), ("r", u - 2)))
        if u == UP:
            ev.append((SAT, [MFMA % (vr(A9, 4), vr(SEL + 4, 4), vr(PB, 4), "0"), MFMA % (vr(A9, 4), vr(SEL + 4, 4), vr(PB + 4, 4), vr(A9, 4))], "r9"))
        for at, g, wt in sorted(ev, key=lambda z: z[0]):
            V(e + at, g, wait=wt)

    hw_left = {t: 4 for t in range(9)}
    done = set()
    sq = []
    nextw = ring.n
    last_load = -4
    bias_next = 2
    ptr_next = 0
    sq_age = 0
    D0 = seg_start[("p2", 2)] if cfg.get("D0", 1) else seg_start[("p2", 0)]
    drain_n0 = {}

    def ensure_stage(sg):
        if sg in done:
            return True
        if sg[0] == "x":
            while any(tag == sg for t, tag in gq):
                t, tag = gq.pop(0)
                b(t, vm=tag)
            b.wait(vm=sg)
        else:
            t = {"hA": 6, "hB": 7, "hC": 8}[sg]
            if hw_left[t]:
                return False
            b.wait(lg=[("hw", tt) for tt in range(t + 1)])
        b("s_barrier")
        done.add(sg)
        return True

    def emit_v():
        it = vq.pop(0)
        if it["wait"]:
            assert not any(tag == it["wait"] for t, tag in gq)
            b.wait(vm=[it["wait"]], lg=[it["wait"]])
        if any(t.startswith("s_") and not t.startswith(("s_nop", "s_mov", "s_atomic", "s_load")) for t in it["g"]):
            while sq:
                b(sq.pop(0))
        for t in it["g"]:
            b(t, vm=it["tag"], lg=it["tag"])
        if it["tag"] and it["tag"][0] == "hw":
            hw_left[it["tag"][1]] -= 1

    ensure_stage("xA")
    stamp(b, cfg, 6)
    trace(b, cfg, 47)
    while first_b[dq[0]] < LA:
        k = dq.pop(0)
        b(bread(*k), lg=k)
    for i, x in enumerate(mf):
        if i == 0:
            b.wait(lg=[(x.src, x.j, x.m)])
        if i % 72 == 0:
            trace(b, cfg, i // 72)
        a = vr(ACC + 16 * x.aset + 4 * x.m, 4)
        if x.j == 0 and x.seg != ("p2", 8):
            assert_free(vq, i, a)
        b(MFMA % (a, slot(x.n), mx(x.j, x.m), a if (x.j or x.seg == ("p2", 8)) else "0"))
        used = False
        budget = 2
        if i + 1 < N:
            y = mf[i + 1]
            ky = (y.src, y.j, y.m)
            while ky in dq:
                while not ensure_stage(stage(dq[0][0], dq[0][1])):
                    assert vq[0]["e"] <= i
                    emit_v()
                k = dq.pop(0)
                b(bread(*k), lg=k)
                cfg.setdefault("_late", []).append((i, k))
            assert y.n < nextw
            wl = [ky]
            if vq and vq[0]["e"] <= i and vq[0]["wait"]:
                wl.append(vq[0]["wait"])
            wv = []
            if b.pending(vm=[("W", y.n)]):
                wv = [("W", z.n) for z in mf[i + 1:i + 1 + cfg.get("WGRAN", 3)] if z.n < nextw]
            used = b.wait(vm=wv + wl, lg=wl)
        if ptr_next < 8 and not sq and i >= seg_start[("p2", ptr_next)] + (40 if ptr_next >= 2 else 0):
            assert_free(vq, i, sr(60 + 2 * (ptr_next % 2), 2))
            assert_free(vq, i, sr(64 + 2 * (ptr_next % 2), 2))
            sq += send_ptr(ptr_next)
            if ptr_next == 1:
                sq += tail_scalars()
            ptr_next += 1
        sq_age = sq_age + 1 if sq else 0
        if sq and (not used or sq_age > 1):
            b(sq.pop(0))
            sq_age = 0
        paced = True
        if cfg.get("DRAIN") and nextw < 324 and i >= D0:
            n0 = drain_n0.setdefault(0, nextw)
            paced = (i - D0) * (324 - n0) >= (nextw - n0) * (first_w[323] - cfg["DRAIN"] - D0)
        if gq:
            if i - last_load >= 2:
                while not gq[0][1]:
                    b(gq.pop(0)[0])
                t, tag = gq.pop(0)
                b(t, vm=tag)
                last_load = i
        elif nextw < 324 and (nextw < NB or i >= last_w[nextw - NB]) and i - last_load >= cfg.get("LDGAP", 3) and not any(t in MADV + MBACK for t in sq) and paced:
            b(mw_load(nextw), vm=("W", nextw))
            if nextw % 6 == 5 and nextw < 323:
                pos = 0
                while pos < len(sq) and sq[pos].startswith(("s_addc", "s_subb")):
                    pos += 1
                sq[pos:pos] = MBACK if (cfg.get("FAKEW") and nextw % 18 == 17) else MADV
            nextw += 1
            last_load = i
            if x.seg[0] == "p2" or x.seg == ("p1", 0):
                budget -= 1
        if bias_next < 9 and i >= seg_start[("p1", bias_next)] - cfg.get("BIAS_AT", 4):
            assert_free(vq, i, vr(BIAS + 4 * (bias_next % 2), 4))
            b("global_load_dwordx4 %s, v13, s[22:23] offset:%d%s" % (vr(BIAS + 4 * (bias_next % 2), 4), 256 * bias_next, Lab.wf), vm=("bias", bias_next))
            bias_next += 1
        while dq and budget > 0 and first_b[dq[0]] <= i + LA + (12 if budget == 1 and x.seg[0] == "p2" else 0):
            k = dq[0]
            if k[0] == "H" and last_x[(k[1], k[2])] > i:
                break
            if not ensure_stage(stage(k[0], k[1])):
                break
            dq.pop(0)
            b(bread(*k), lg=k)
            budget -= 1
        if vq and vq[0]["e"] <= i and (budget == 2 or vq[0]["force"] or (x.seg[0] == "p1" and x.seg[1] > 0)):
            emit_v()
    assert not dq and not sq and nextw == 324 and not gq
    while vq:
        emit_v()

    trace(b, cfg, 18)
    pl, got = lab("rB_p"), lab("rB_g")
    b(poll(7)[0])
    for u in (5, 6):
        b.wait(vm=[("r", u)])
        for t in recv_mfmas(u): b(t)
    trace(b, cfg, 19)
    qw_base(b)
    b("s_mov_b32 s41, 0")
    b("%s:" % pl)
    b.wait_all(vm=False)
    b("s_cmp_eq_u32 s28, 1")
    b("s_cbranch_scc1 %s" % got)
    b(poll(7)[0])
    b("s_add_u32 s41, s41, 1")
    b("s_cmp_gt_u32 s41, %d" % SPIN)
    b("s_cbranch_scc0 %s" % pl)
    b("s_waitcnt lgkmcnt(0)")
    b("%s:" % got)
    trace(b, cfg, 20)
    for t in recv_loads(7): b(t, vm=("r", 7))
    skip = lab("m_np")
    b("s_cmp_lg_u32 s3, 0")
    b("s_cbranch_scc1 %s" % skip)
    g = b.fork()
    qw_pre(g, range(0, cfg["WQP"][0]))
    b.extend(g)
    b("s_mul_i32 s40, s25, %d" % (4 * XT))
    b("s_add_u32 s40, s40, %d" % X2_OFF)
    b("v_add_u32 v10, s40, v10")
    b("s_lshl_b32 s41, s26, 11")
    b("s_lshl_b32 s42, s24, 9")
    b("s_add_u32 s41, s41, s42")
    b("s_add_u32 s41, s41, s40")
    b("v_lshrrev_b32 v3, 1, v5")
    b("v_lshl_add_u32 v3, v3, 4, v6")
    b("v_lshl_add_u32 v11, v3, 4, v11")
    b("v_add_u32 v11, s41, v11")
    b("s_branch %s_e" % skip)
    b("%s:" % skip)
    b("s_mul_i32 s40, s25, %d" % (4 * XT))
    b("s_lshl_b32 s42, s24, 5")
    b("s_add_u32 s40, s40, s42")
    b("s_lshl_b32 s41, s26, 7")
    b("s_add_u32 s41, s41, s40")
    b("v_mul_u32_u24 v2, 1152, v6")
    b("v_lshrrev_b32 v3, 1, v5")
    b("v_lshl_add_u32 v3, v3, 4, v2")
    b("v_add3_u32 v11, v11, v3, s41")
    b("s_mul_i32 s41, s26, %d" % (8 * 1152))
    b("s_add_u32 s41, s41, s40")
    b("s_add_u32 s41, s41, 1024")
    b("v_lshl_add_u32 v10, v5, 3, v2")
    b("v_add_u32 v10, s41, v10")
    b("%s_e:" % skip)
    b("v_add_u32 v12, %d, v11" % (2 * XT))
    b("s_mov_b32 s56, 0x%08x" % f32(LN2))
    b.wait(lg="res")
    T = ACC
    for r in range(10):
        b("v_lshlrev_b32 %s, 16, %s" % (vr(T + 2 * r), vr(MRES + r)))
        b("v_and_b32 %s, 0xffff0000, %s" % (vr(T + 2 * r + 1), vr(MRES + r)))
    for r in range(4):
        b("v_add_f32_dpp %s, %s, %s row_ror:8 row_mask:0xf bank_mask:0xf" % (vr(ST + r), vr(A9 + r), vr(A9 + r)))
    for r in range(4):
        b("v_fmac_f32 %s, s56, %s" % (vr(T + 16 + r), vr(ST + r)))
    for r in range(2):
        b("v_cvt_pk_bf16_f32 %s, %s, %s" % (vr(MRES + 8 + r), vr(T + 16 + 2 * r), vr(T + 17 + 2 * r)))
    b.wait(vm=[("r", 7)])
    trace(b, cfg, 21)
    for t in recv_mfmas(7): b(t)
    b("s_nop 4")
    for r in range(8):
        b("v_fmac_f32 %s, s56, %s" % (vr(T + 2 * r), vr(OWN + 2 * r)))
        b("v_fmac_f32 %s, s56, %s" % (vr(T + 2 * r + 1), vr(OWN + 2 * r + 1)))
        b("v_cvt_pk_bf16_f32 %s, %s, %s" % (vr(MRES + r), vr(T + 2 * r), vr(T + 2 * r + 1)))
    for h in range(2):
        for p in range(2):
            b("v_permlane16_swap_b32 %s, %s" % (vr(MRES + 4 * h + p), vr(MRES + 4 * h + 2 + p)))

    trace(b, cfg, 22)

    def out_stores(bb, base, fl):
        bb("global_store_dwordx4 v11, %s, %s%s" % (vr(MRES, 4), base, fl), vm="pub")
        bb("global_store_dwordx4 v12, %s, %s%s" % (vr(MRES + 4, 4), base, fl), vm="pub")
        bb("s_mov_b32 exec_lo, 0x00ff00ff")
        bb("s_mov_b32 exec_hi, 0x00ff00ff")
        bb("global_store_dwordx2 v10, %s, %s%s" % (vr(MRES + 8, 2), base, fl), vm="pub")
        bb("s_mov_b64 exec, -1")
    return out_stores


def spin_until(b, ptr, off, want, first=True, sleep=2):
    pl, ck, ok = lab("sp_p"), lab("sp_c"), lab("sp_k")
    b("s_mov_b32 s41, 0")
    if not first:
        b("s_branch %s" % ck)
    b("%s:" % pl)
    b.L.append("global_load_dword v3, v2, %s offset:%d sc1" % (ptr, off))
    b("s_waitcnt vmcnt(0)")
    b("%s:" % ck)
    b("v_cmp_ne_u32 vcc, %d, v3" % want)
    b("s_add_u32 s41, s41, 1")
    b("s_cmp_gt_u32 s41, %d" % SPIN)
    b("s_cbranch_scc1 %s" % ok)
    b("s_cbranch_vccz %s" % ok)
    b("s_sleep %d" % sleep)
    b("s_branch %s" % pl)
    b("%s:" % ok)


def first_layer(b, cfg):
    prep.gen_prep(b, cfg, "L_layer", "L_mega_last")
    trace(b, cfg, 50)
    b("v_mov_b32 v2, 0")
    b("global_load_dword v3, v2, s[20:21] offset:128 sc1", vm="pub")
    q_setup(b, 0)
    xa = x_items(range(0, 6), (0, 1), "xA")
    xb = x_items(range(6, 12), (2,), "xB")
    n0 = 4 * cfg.get("FX", 4)
    for t, tag in xa[:n0]:
        b(t, vm=tag)
    qw_base(b)
    b("s_lshl_b32 s40, s26, 8")
    b("s_add_u32 s40, s40, %d" % (FLAG_OFF + FL_CQ))
    add64(b, 66, 22, "s40")
    trace(b, cfg, 51)
    b.wait(vm="pub")
    b("s_barrier")
    trace(b, cfg, 52)
    b("s_cmp_lg_u32 s24, 0")
    b("s_cbranch_scc1 L_f_na")
    spin_until(b, "s[20:21]", 128, 1, first=False, sleep=4)
    b("s_cmp_eq_u32 s65, 0")
    b("s_cbranch_scc1 L_f_na")
    b("s_atomic_add s65, s[70:71], 0")
    b("L_f_na:")
    for t, tag in xa[n0:] + xb:
        b(t, vm=tag)
    b("s_cmp_lg_u32 s24, 0")
    b("s_cbranch_scc1 L_f_go")
    b("v_and_b32 v2, 1, v1")
    b("v_lshlrev_b32 v2, 8, v2")
    spin_until(b, "s[66:67]", 0, 6, sleep=cfg.get("QSLEEP", 4))
    b("s_waitcnt lgkmcnt(0)")
    b("L_f_go:")
    trace(b, cfg, 53)
    b.wait(vm="xA")
    b("s_barrier")
    qw_pre(b, range(sum(cfg["WQP"])))
    trace(b, cfg, 54)
    b("s_branch L_q_join")


def gen_mega(cfg):
    cfg.setdefault("RING", [14, 5, 10, 8, 5, 10])
    cfg.setdefault("WQP", [1, 1, 2])
    for k in ("RING", "WQP"):
        if isinstance(cfg[k], str):
            cfg[k] = [int(c) for c in cfg[k].split(".")]
    Lab.n = 0
    Lab.wf = cfg.get("WF", " sc1")
    cfg.setdefault("ONE", 1)
    name = cfg.get("name", "mega_kernel")
    b = B()
    ool = B()
    entry(b, name)
    b("s_cmp_ge_u32 s2, 256")
    b("s_cbranch_scc1 L_mega_end")
    probe(b, cfg, "s", layered=False)
    load_args(b)
    stamp(b, cfg, 0)
    b("v_and_b32 v1, 63, v0")
    b("v_lshrrev_b32 v2, 6, v0")
    b("v_lshrrev_b32 v5, 4, v1")
    b("v_readfirstlane_b32 s24, v2")
    b("v_and_b32 v6, 15, v1")
    b("v_lshlrev_b32 v7, 4, v1")
    decode_wg(b, cfg, 25, 26)
    b("s_lshl_b32 s27, s25, 2")
    b("s_add_u32 s27, s27, s24")
    b("s_waitcnt lgkmcnt(0)")
    if cfg["ONE"]:
        first_layer(b, cfg)
    else:
        qw_base(b)
        qw_pre(b, range(sum(cfg["WQP"])))
        q_setup(b, 0)
    b("L_layer:")
    b.vmq = ["pre"] * 20
    ring = Ring()
    phase_q(b, cfg, ring, ool)
    R = cfg["RING"]
    ring.load(b, R[1])
    sync(b, cfg, FL_C1, "pub", lambda g: ring.load(g, R[2]), o_setup, tr=30)
    assert ring.wo == 22
    phase_o(b, cfg, ring)
    trace(b, cfg, 40)
    ring.load(b, R[4])
    sync(b, cfg, FL_C2, "pub", lambda g: ring.load(g, R[5]), m_setup, tr=41)
    assert ring.n <= NB
    out_stores = phase_m(b, cfg, ring, ool)
    probe(b, cfg, "e")
    b("s_cmp_lg_u32 s3, 0")
    b("s_cbranch_scc1 L_final")
    g = b.fork()
    out_stores(g, "s[22:23]", " sc1")
    stamp_end(g, cfg, 1, wait=False)
    W = cfg["WQP"]
    qw_pre(g, range(W[0], W[0] + W[1]))
    sync(g, cfg, FL_C3, "pub", lambda q: qw_pre(q, range(W[0] + W[1], sum(W))), lambda q: q_setup(q, 1), nbr=True)
    stamp(g, cfg, 0)
    g("s_branch L_layer")
    b.extend(g)
    b("L_final:")
    out_stores(b, "s[18:19]", cfg.get("sc_out", ""))
    stamp_end(b, cfg, 1)
    probe_end(b, cfg)
    b("L_mega_end:")
    b("s_endpgm")
    b.extend(ool)
    b("L_mega_last:")
    return b, [(name, 512, 256)], [(name, 256, 256, LDSM)]
```

```python
from asmlib import *
from layout import *
from common import *

PL = 86 * KB
FR = 16
NZERO = 16
P_W1, P_W2, P_WO, P_END = 64, 136, 208, 217


def srd(b, ptr, size):
    b("s_mov_b32 s28, s%d" % ptr)
    b("s_and_b32 s29, s%d, 0xffff" % (ptr + 1))
    b("s_mov_b32 s30, %d" % size)
    b("s_mov_b32 s31, 0x20000")


def div9(b, dst, rem, src):
    b("s_mul_i32 s%d, s%d, 57" % (dst, src))
    b("s_lshr_b32 s%d, s%d, 9" % (dst, dst))
    b("s_mul_i32 s%d, s%d, 9" % (rem, dst))
    b("s_sub_u32 s%d, s%d, s%d" % (rem, src, rem))


class Loader:
    def __init__(self, b, cfg, stride, nch):
        self.b, self.stride, self.nch, self.next = b, stride, nch, 0
        self.per = 18 // nch
        b("s_mul_i32 s34, s24, %d" % (8 * self.per * stride))
        b("s_add_u32 s32, s32, s34")
        b("s_mul_i32 s34, s24, %d" % (8 * self.per * 128))
        b("s_add_u32 m0, s34, %d" % PL)
        trace(b, cfg, 60)

    def issue(self, n):
        b = self.b
        for _ in range(n):
            if self.next >= self.nch:
                return
            for k in range(self.per):
                b("s_nop 0")
                b("buffer_load_dwordx4 v8, s[28:31], s32 offen lds", vm=("ld", self.next))
                step = 8 + (24 * self.per if k == self.per - 1 else 0)
                b("s_add_u32 s32, s32, %d" % (step * self.stride))
                b("s_add_u32 m0, m0, %d" % (step * 128))
            self.next += 1


def lane128(b, stride):
    b("v_lshrrev_b32 v8, 3, v1")
    b("v_mul_u32_u24 v8, %d, v8" % stride)
    b("v_and_b32 v9, 7, v1")
    b("v_lshl_add_u32 v8, v9, 4, v8")


def col128(b, dst, extra=0):
    b("v_lshl_add_u32 %s, v3, 3, %s" % (vr(dst), vr(dst)))
    b("s_lshl_b32 s35, s24, 5")
    b("s_add_u32 s35, s35, %d" % (PL + extra))
    b("v_add_u32 %s, s35, %s" % (vr(dst), vr(dst)))


def store(b, cfg, j, sstride, second=None):
    b("global_store_dwordx4 v9, %s, s[22:23] sc1" % vr(FR + 4 * j, 4), vm="pub")
    if second is not None:
        b("global_store_dwordx4 v9, %s, s[22:23] offset:%d sc1" % (vr(FR + 4 * j, 4), second), vm="pub")
    b("v_add_u32 v9, %s, v9" % sstride)


def process(b, cfg, ld, plan, pi, centred, emit_store, halves=False):
    if centred:
        b("v_mov_b32 v13, 0x3f803f80")
        b("v_mov_b32 v14, 0")
        b("v_mov_b32 v15, 0")
    todo = list(range(18))
    trace(b, cfg, 61)
    for ch in range(ld.nch):
        b.wait(vm=[("ld", ch)])
        b("s_barrier")
        if ch in (0, ld.nch - 1):
            trace(b, cfg, 62 + (ch > 0))
        now = []
        while todo and max(pi(todo[0], g, e) for g in range(4) for e in range(8)) < 576 // ld.nch * (ch + 1):
            now.append(todo.pop(0))
        for j in now:
            for h in range(2):
                base, imm = plan(j, h)
                assert 0 <= imm < 65536
                b("ds_read_b64_tr_b16 %s, %s offset:%d" % (vr(FR + 4 * j + 2 * h, 2), vr(base), imm), lg=("tr", j))
        for j in now:
            b.wait(lg=[("tr", j)])
            if centred:
                for r in range(4):
                    b("v_dot2c_f32_bf16 v%d, %s, v13" % (14 + (r & 1), vr(FR + 4 * j + r)))
            else:
                emit_store(j)
        ld.issue(1)
    if not centred:
        return
    b("s_nop 2")
    b("v_add_f32 v14, v14, v15")
    xlane_sum_g(b, 14, 15)
    b("v_mul_f32 v14, 0x%08x, v14" % f32(-1.0 / 576))
    b("v_mov_b32 v12, 0xffff0000")
    trace(b, cfg, 64)
    if halves:
        b("s_cmp_eq_u32 s38, 1")
        b("s_cbranch_scc1 L_p_half1")
    for j in range(18):
        if halves and j == 9:
            b("s_branch L_p_half_end")
            b("L_p_half1:")
        for r in range(4):
            x, t = FR + 4 * j + r, 90 + 2 * (r & 1)
            b("v_lshlrev_b32 %s, 16, %s" % (vr(t), vr(x)))
            b("v_and_b32 %s, v12, %s" % (vr(t + 1), vr(x)))
            b("v_pk_add_f32 %s, %s, v[14:15] op_sel_hi:[1,0]" % (vr(t, 2), vr(t, 2)))
            b("v_cvt_pk_bf16_f32 %s, %s, %s" % (vr(x), vr(t), vr(t + 1)))
        emit_store(j)
    if halves:
        b("L_p_half_end:")


def gen_prep(b, cfg, code_lo, code_hi):
    assert all((x * 57) >> 9 == x // 9 for x in range(72))
    b("v_and_b32 v3, 3, v1")
    b("v_bfe_u32 v4, v1, 2, 2")
    b("s_cmp_lg_u32 s24, 3")
    b("s_cbranch_scc1 L_p_nocode")
    b("s_getpc_b64 s[36:37]")
    b("L_p_pc:")
    b("s_add_u32 s36, s36, %s-L_p_pc" % code_lo)
    b("s_addc_u32 s37, s37, 0")
    b("s_lshr_b32 s38, s2, 3")
    b("s_lshl_b32 s38, s38, 11")
    b("v_lshl_add_u32 v8, v6, 7, s38")
    b("v_min_u32 v8, %s-%s-4, v8" % (code_hi, code_lo))
    b.L.append("global_load_dword v95, v8, s[36:37]")
    b("L_p_nocode:")
    b("s_cmp_ge_u32 s2, %d" % P_END)
    b("s_cbranch_scc1 L_p_zero")
    b("s_cmp_ge_u32 s2, %d" % P_WO)
    b("s_cbranch_scc1 L_p_wo")
    b("s_cmp_ge_u32 s2, %d" % P_W2)
    b("s_cbranch_scc1 L_p_w2")
    b("s_cmp_ge_u32 s2, %d" % P_W1)
    b("s_cbranch_scc1 L_p_w1")
    b("s_and_b32 s39, s2, 31")
    b("s_cmp_ge_u32 s39, 27")
    b("s_cbranch_scc1 L_p_zero")

    g = b.fork()
    srd(g, 6, D * 3 * D * 2)
    g("s_lshr_b32 s38, s2, 5")
    g("s_lshl_b32 s32, s39, 7")
    lane128(g, 3456)
    ld = Loader(g, cfg, 3456, 3)
    ld.issue(3)
    g("v_lshl_add_u32 v10, v5, 3, v4")
    g("v_lshlrev_b32 v10, 7, v10")
    col128(g, 10)
    g("v_add_u32 v11, 0x10000, v10")
    div9(g, 36, 37, 39)
    g("s_lshl_b32 s40, s37, 4")
    g("s_lshl_b32 s41, s24, 2")
    g("s_add_u32 s40, s40, s41")
    g("v_add_u32 v12, s40, v4")
    assert all((x * 57) >> 9 == x // 9 for x in range(144))
    g("v_mul_u32_u24 v13, 57, v12")
    g("v_lshrrev_b32 v13, 9, v13")
    g("v_mul_u32_u24 v14, 9, v13")
    g("v_sub_u32 v14, v12, v14")
    g("v_cmp_lt_u32 vcc, 4, v14")
    g("v_lshlrev_b32 v15, 1, v13")
    g("v_subrev_u32 v12, 5, v14")
    g("v_cndmask_b32 v12, v14, v12, vcc")
    g("v_addc_co_u32 v15, vcc, 0, v15, vcc")
    g("v_mul_u32_u24 v15, %d, v15" % (72 * KB))
    g("v_lshl_add_u32 v15, v12, 6, v15")
    g("s_lshl_b32 s40, s36, 10")
    g("v_add_u32 v15, s40, v15")
    g("v_and_b32 v12, 1, v13")
    g("v_lshrrev_b32 v13, 1, v13")
    g("v_mul_u32_u24 v13, %d, v13" % (4 * 72 * KB))
    g("v_lshl_add_u32 v13, v12, 6, v13")
    g("s_cmp_eq_u32 s36, 0")
    g("s_cselect_b32 s40, %d, 0" % (72 * KB))
    g("s_cmp_eq_u32 s36, 2")
    g("s_cselect_b32 s41, 128, 0")
    g("s_add_u32 s40, s40, s41")
    g("s_add_u32 s40, s40, %d" % (3 * KB))
    g("v_add_u32 v13, s40, v13")
    g("v_cmp_eq_u32 vcc, 4, v14")
    g("v_lshlrev_b32 v9, 8, v5")
    g("v_lshl_add_u32 v9, v3, 4, v9")
    g("v_cndmask_b32 v15, v15, v13, vcc")
    g("s_mul_i32 s40, s38, %d" % (9 * 4 * KB))
    g("s_add_u32 s40, s40, %d" % WQ_OFF)
    g("v_add3_u32 v9, v9, v15, s40")
    process(g, cfg, ld, lambda j, h: (10, 4096 * j + 512 * h) if j < 16 else (11, 4096 * (j - 16) + 512 * h), pi_nat, True,
            lambda j: store(g, cfg, j, "0x1000"), halves=True)
    g("s_lshl_b32 s40, s37, 8")
    g("s_add_u32 s40, s40, %d" % (FLAG_OFF + FL_CQ))
    g("s_branch L_p_fin")
    b.extend(g)

    b("L_p_w1:")
    g = b.fork()
    srd(g, 12, D * F * 2)
    g("s_sub_u32 s38, s2, %d" % P_W1)
    g("s_lshl_b32 s32, s38, 7")
    g("s_lshl_b32 s39, s38, 6")
    g("v_add_lshl_u32 v94, v1, s39, 1")
    g("global_load_ushort v88, v94, s[14:15]", vm="bias")
    lane128(g, F * 2)
    ld = Loader(g, cfg, F * 2, 3)
    ld.issue(3)
    g("v_lshl_add_u32 v10, v5, 2, v4")
    g("v_lshlrev_b32 v10, 7, v10")
    col128(g, 10)
    g("v_lshl_add_u32 v11, v5, 3, v4")
    g("v_lshlrev_b32 v11, 7, v11")
    col128(g, 11, 0x10000)
    div9(g, 36, 37, 38)
    g("s_lshl_b32 s39, s36, 2")
    g("s_add_u32 s39, s39, s24")
    g("s_mul_i32 s39, s39, %d" % WM_STREAM)
    g("s_mul_i32 s37, s37, %d" % (18 * KB))
    g("s_add_u32 s39, s39, s37")
    g("s_add_u32 s39, s39, %d" % WM_OFF)
    g("v_add_u32 v9, s39, v7")
    process(g, cfg, ld, lambda j, h: (10, 4096 * j + 2048 * h) if j < 16 else (11, 4096 * (j - 16) + 512 * h), pi_1, True,
            lambda j: store(g, cfg, j, "0x400"))
    g("v_lshlrev_b32 v88, 16, v88")
    g("v_mul_f32 v88, 0x%08x, v88" % f32(LOG2E))
    g("v_lshlrev_b32 v94, 1, v94")
    g("v_add_u32 v94, %d, v94" % B1_OFF)
    g("s_cmp_lg_u32 s24, 0")
    g("s_cbranch_scc1 L_p_wm_end")
    g("global_store_dword v94, v88, s[22:23] sc1")
    g("s_branch L_p_wm_end")
    b.extend(g)

    b("L_p_w2:")
    g = b.fork()
    srd(g, 16, D * F * 2)
    g("s_sub_u32 s38, s2, %d" % P_W2)
    div9(g, 36, 37, 38)
    g("s_mul_i32 s32, s36, %d" % (576 * 1152))
    g("s_lshl_b32 s33, s37, 7")
    g("s_add_u32 s32, s32, s33")
    lane128(g, D * 2)
    ld = Loader(g, cfg, D * 2, cfg.get("PCH", 9))
    ld.issue(cfg.get("PAH", 2))
    g("v_lshl_add_u32 v10, v5, 2, v4")
    g("v_lshlrev_b32 v10, 7, v10")
    col128(g, 10)
    g("v_add_u32 v11, 0x10000, v10")
    g("s_sub_u32 s38, s37, s36")
    g("s_add_u32 s38, s38, 7")
    g("s_and_b32 s38, s38, 7")
    g("s_add_u32 s38, s38, 1")
    g("s_cmp_eq_u32 s37, 8")
    g("s_cselect_b32 s38, 0, s38")
    g("s_mul_i32 s39, s38, 18")
    g("s_cmp_lt_u32 s38, 2")
    g("s_cselect_b32 s39, s38, s39")
    g("s_cselect_b32 s43, 2, 1")
    g("s_lshl_b32 s43, s43, 10")
    g("s_add_u32 s39, s39, 162")
    g("s_lshl_b32 s39, s39, 10")
    g("s_lshl_b32 s41, s36, 2")
    g("s_add_u32 s41, s41, s24")
    g("s_mul_i32 s41, s41, %d" % WM_STREAM)
    g("s_add_u32 s41, s41, s39")
    g("s_add_u32 s41, s41, %d" % WM_OFF)
    g("v_add_u32 v9, s41, v7")
    process(g, cfg, ld, lambda j, h: (10, 4096 * j + 2048 * h) if j < 16 else (11, 4096 * (j - 16) + 2048 * h), pi_blk, False,
            lambda j: store(g, cfg, j, "s43"))
    g("L_p_wm_end:")
    g("s_lshl_b32 s40, s36, 8")
    g("s_add_u32 s40, s40, %d" % (FLAG_OFF + FL_CW))
    g("s_branch L_p_fin")
    b.extend(g)

    b("L_p_wo:")
    g = b.fork()
    srd(g, 8, D * D * 2)
    g("s_sub_u32 s37, s2, %d" % P_WO)
    g("s_lshl_b32 s32, s37, 7")
    lane128(g, D * 2)
    ld = Loader(g, cfg, D * 2, cfg.get("PCH", 9))
    ld.issue(cfg.get("PAH", 2))
    g("v_lshrrev_b32 v10, 1, v5")
    g("v_mul_u32_u24 v10, 20, v10")
    g("v_and_b32 v11, 1, v5")
    g("v_lshl_add_u32 v10, v11, 3, v10")
    g("v_add_u32 v10, v10, v4")
    g("v_lshlrev_b32 v10, 7, v10")
    col128(g, 10)
    g("v_add_u32 v11, %d, v10" % (8 * 4608))
    g("v_mul_u32_u24 v12, 72, v5")
    g("v_add3_u32 v12, v12, v4, 16")
    g("v_lshlrev_b32 v12, 7, v12")
    col128(g, 12)
    g("s_mul_i32 s38, s37, %d" % WO_CG)
    g("s_lshl_b32 s39, s24, 10")
    g("s_add_u32 s38, s38, s39")
    g("s_mul_i32 s39, s24, %d" % (2 * WO_CG))
    g("s_add_u32 s39, s39, %d" % (4 * KB))
    g("s_cmp_eq_u32 s37, 8")
    g("s_cselect_b32 s38, s39, s38")
    g("s_cselect_b32 s39, %d, 0" % (WO_CG - 128))
    g("s_add_u32 s38, s38, %d" % WO_OFF)
    g("v_lshrrev_b32 v9, 3, v6")
    g("v_mul_u32_u24 v9, s39, v9")
    g("v_add3_u32 v9, v9, v7, s38")

    process(g, cfg, ld, lambda j, h: (10, 4608 * j + 512 * h) if j < 8 else
            (11, 4608 * (j - 8) + 512 * h) if j < 16 else (12, 36864 * (j - 16) + 4608 * h), pi_o, False,
            lambda j: store(g, cfg, j, "0x1400"))
    g("s_mov_b32 s40, %d" % (FLAG_OFF + FL_CO))
    g("s_branch L_p_fin")
    b.extend(g)

    b("L_p_zero:")
    b("s_mov_b32 s33, 0")
    b("s_mov_b32 s40, 0")
    b("s_cmp_lt_u32 s2, %d" % (256 - NZERO))
    b("s_cbranch_scc1 L_p_fin0")
    assert FL_USED == NZERO * 24 * KB
    b("s_sub_u32 s38, s2, %d" % (256 - NZERO))
    b("s_lshl_b32 s38, s38, 2")
    b("s_add_u32 s38, s38, s24")
    b("s_mul_i32 s39, s38, %d" % (6 * KB))
    b("s_add_u32 s39, s39, %d" % (FLAG_OFF + 2 * KB))
    b("v_add_u32 v9, s39, v7")
    for r in range(4):
        b("v_mov_b32 v%d, 0" % (12 + r))
        b("v_mov_b32 v%d, 0x3f803f80" % (16 + r))
    for n in range(6):
        b("global_store_dwordx4 v9, v[12:15], s[22:23] offset:%d sc1" % (n * KB - 2 * KB))
    b("s_cmp_ge_u32 s38, 24")
    b("s_cbranch_scc1 L_p_noone")
    b("s_and_b32 s39, s38, 7")
    b("s_mul_i32 s39, s39, %d" % (4 * 72 * KB))
    b("s_lshr_b32 s38, s38, 3")
    b("s_mul_i32 s38, s38, %d" % (24 * KB))
    b("s_add_u32 s39, s39, s38")
    b("s_add_u32 s39, s39, %d" % (WQ_OFF + 75 * KB + 128))
    b("v_lshrrev_b32 v9, 3, v6")
    b("v_mul_u32_u24 v9, %d, v9" % (4 * KB - 128))
    b("v_add3_u32 v9, v9, v7, s39")
    for n in range(3):
        b("global_store_dwordx4 v9, v[16:19], s[22:23] sc1")
        b("v_add_u32 v9, 0x2000, v9")
    b("L_p_noone:")
    b("s_mov_b32 s28, 1")
    b.wait_all()
    b("s_barrier")
    b("s_cmp_lg_u32 s24, 0")
    b("s_cbranch_scc1 L_p_fin0")
    b("s_atomic_add s28, s[20:21], 0 glc")
    b("s_waitcnt lgkmcnt(0)")
    b("s_cmp_lg_u32 s28, %d" % (NZERO - 1))
    b("s_cbranch_scc1 L_p_fin0")
    b("s_mov_b32 s28, 1")
    b("s_atomic_add s28, s[20:21], 128")
    b("s_waitcnt lgkmcnt(0)")
    b("s_branch L_p_fin0")
    b("L_p_fin:")
    b("s_mov_b32 s33, 1")
    b("L_p_fin0:")
    add64(b, 70, 22, "s40")
    b("s_mov_b32 s65, s33")
    b.vmq, b.lgq = ["pub"], []
```

```python
import re

def vr(b, n=1):
    return "v%d" % b if n == 1 else "v[%d:%d]" % (b, b + n - 1)

def ar(b, n=1):
    return "a%d" % b if n == 1 else "a[%d:%d]" % (b, b + n - 1)

def sr(b, n=1):
    return "s%d" % b if n == 1 else "s[%d:%d]" % (b, b + n - 1)

def ur(u, n=1):
    return vr(u, n) if u < 256 else ar(u - 256, n)


class Mark:
    def __init__(self, tag):
        self.tag = tag


class B:
    def __init__(self):
        self.L = []
        self.vmq = []
        self.lgq = []

    def fork(self):
        o = B()
        o.vmq = list(self.vmq)
        o.lgq = list(self.lgq)
        return o

    def __call__(self, text, vm=None, lg=None):
        for t in text.split("\n"):
            self.L.append(t)
        mn = text.split()[0] if text.strip() else ""
        if "\n" not in text:
            if mn.startswith(("global_", "buffer_")) and not mn.startswith(("buffer_inv", "buffer_wbl2")):
                self.vmq.append(vm)
                assert len(self.vmq) <= 63, "vmcnt overflow: " + text
            elif mn.startswith("ds_"):
                self.lgq.append(lg)

    def _need(self, q, tags):
        last = -1
        for i, t in enumerate(q):
            if (t.tag if isinstance(t, Mark) else t) in tags:
                last = i
        return last

    def wait(self, vm=(), lg=()):
        if not isinstance(vm, (list, tuple, set)): vm = (vm,)
        if not isinstance(lg, (list, tuple, set)): lg = (lg,)
        parts = []
        i = self._need(self.vmq, set(vm))
        if i >= 0:
            n = sum(1 for t in self.vmq[i + 1:] if not isinstance(t, Mark))
            parts.append("vmcnt(%d)" % n)
            self.vmq = self.vmq[i + 1:]
        i = self._need(self.lgq, set(lg))
        if i >= 0:
            n = len(self.lgq) - 1 - i
            if n > 15:
                n = 15
            parts.append("lgkmcnt(%d)" % n)
            self.lgq = self.lgq[len(self.lgq) - n:] if n else []
        if parts:
            self.L.append("s_waitcnt " + " ".join(parts))
            return True
        return False

    def pending(self, vm=(), lg=()):
        if not isinstance(vm, (list, tuple, set)): vm = (vm,)
        if not isinstance(lg, (list, tuple, set)): lg = (lg,)
        return self._need(self.vmq, set(vm)) >= 0 or self._need(self.lgq, set(lg)) >= 0

    def wait_all(self, vm=True, lg=True):
        parts = []
        if vm:
            parts.append("vmcnt(0)"); self.vmq = []
        if lg:
            parts.append("lgkmcnt(0)"); self.lgq = []
        self.L.append("s_waitcnt " + " ".join(parts))

    def extend(self, other):
        self.L.extend(other.L)

    def text(self):
        return "\n".join(self.L) + "\n"


_REG = re.compile(r"(?<![\w.])([vas])(?:(\d+)|\[(\d+):(\d+)\])(?![\w])")
TRANS = ("v_exp_f32", "v_log_f32", "v_rcp_f32", "v_rsq_f32", "v_sqrt_f32", "v_sin_f32", "v_cos_f32")


def _regs(op):
    out = set()
    for m in _REG.finditer(op):
        k = m.group(1)
        lo = int(m.group(2) if m.group(2) is not None else m.group(3))
        hi = int(m.group(2) if m.group(2) is not None else m.group(4))
        for r in range(lo, hi + 1):
            out.add((k, r))
    if re.search(r"\bvcc\b", op):
        out.add(("s", "vcc"))
    if re.search(r"\bm0\b", op):
        out.add(("s", "m0"))
    if re.search(r"\bexec\b", op):
        out.add(("s", "exec"))
    return out


def _split(rest):
    ops, depth, cur = [], 0, ""
    for ch in rest:
        if ch == "[": depth += 1
        if ch == "]": depth -= 1
        if ch == "," and depth == 0:
            ops.append(cur.strip()); cur = ""
        else:
            cur += ch
    if cur.strip():
        ops.append(cur.strip())
    return ops


class Ins:
    pass


def parse(line):
    s = line.split(";")[0].strip()
    if not s or s.startswith((".", "#")) or s.endswith(":"):
        return None
    p = s.split(None, 1)
    i = Ins()
    i.text = s
    i.mn = p[0]
    ops = _split(p[1]) if len(p) > 1 else []
    mn = i.mn
    i.mfma = mn.startswith("v_mfma")
    i.valu = mn.startswith("v_") and not i.mfma
    i.trans = mn.replace("_e64", "").replace("_e32", "") in TRANS
    i.dot = mn.startswith("v_dot")
    i.vmem = mn.startswith(("global_", "buffer_")) and not mn.startswith(("buffer_inv", "buffer_wbl2"))
    i.ds = mn.startswith("ds_")
    i.salu = mn.startswith("s_")
    i.dpp = "_dpp" in mn
    i.sdwa = "_sdwa" in mn
    i.perml = mn.startswith("v_permlane")
    i.rdlane = mn.startswith(("v_readlane", "v_readfirstlane"))
    i.dma = i.vmem and ("_lds_" in mn or re.search(r"\blds\b", s) is not None)
    i.w, i.r = set(), set()
    i.srcc, i.ab = set(), set()
    i.stdata = set()
    R = [_regs(o) for o in ops]
    if i.mfma:
        i.w = R[0]; i.ab = R[1] | R[2]; i.srcc = R[3]; i.r = i.ab | i.srcc
        i.passes = 8 if "32x32" in mn else 4
    elif i.perml:
        i.w = R[0] | R[1]; i.r = R[0] | R[1]
    elif i.valu:
        i.w = set(R[0])
        k = 1
        if mn.startswith(("v_add_co", "v_sub_co", "v_addc_co", "v_subb_co", "v_subrev_co")):
            i.w |= R[1]; k = 2
        for x in R[k:]: i.r |= x
        if mn.startswith(("v_fmac", "v_dot2c", "v_pk_fmac")) or i.dpp or mn.startswith("v_writelane"):
            i.r |= R[0]
        if mn.startswith("v_cmpx"):
            i.w.add(("s", "exec"))
    elif i.vmem:
        store = "store" in mn or "atomic" in mn
        if i.dma:
            for x in R: i.r |= x
            i.r.add(("s", "m0"))
        elif store:
            for x in R: i.r |= x
            d = R[1] if mn.startswith("global_") else R[0]
            if "x4" in mn or "x3" in mn: i.stdata = d
        else:
            i.w = R[0]
            for x in R[1:]: i.r |= x
    elif i.ds:
        if mn.startswith(("ds_read", "ds_bpermute", "ds_permute", "ds_swizzle")):
            i.w = R[0]
            for x in R[1:]: i.r |= x
        else:
            for x in R: i.r |= x
    elif i.salu:
        if mn.startswith(("s_cmp", "s_waitcnt", "s_nop", "s_barrier", "s_branch", "s_cbranch", "s_endpgm", "s_sleep", "s_setprio", "s_bitcmp")):
            for x in R: i.r |= x
        else:
            if R: i.w = set(R[0])
            for x in R[1:]: i.r |= x
            if "saveexec" in mn: i.w.add(("s", "exec"))
    i.states = 1
    if mn == "s_nop":
        i.states = int(ops[0], 0) + 1
    return i


def check_hazards(lines, name=""):
    ins = [x for x in (parse(l) for l in lines) if x is not None]
    errs = []
    for n, c in enumerate(ins):
        dist = 0
        for k in range(n - 1, max(n - 24, -1), -1):
            p = ins[k]
            if p.mn in ("s_endpgm", "s_branch"):
                break
            need = 0
            vw = {x for x in p.w if x[0] in "va"}
            sw = {x for x in p.w if x[0] == "s"}
            if p.mfma:
                big = {4: 8, 8: 12}[p.passes]
                if c.mfma:
                    if vw & c.ab: need = max(need, big)
                    if vw & c.srcc and not (c.srcc == p.w and c.passes == p.passes):
                        need = max(need, {4: 6, 8: 10}[p.passes])
                    if vw & c.w and not (vw & c.srcc):
                        need = max(need, 0)
                elif (c.valu or c.vmem or c.ds) and (vw & (c.r | c.w)):
                    need = max(need, big)
                if c.valu and (p.srcc & c.w):
                    need = max(need, {4: 3, 8: 7}[p.passes])
            if p.valu:
                if c.mfma and (vw & c.r): need = max(need, 3 if p.dot else 2)
                if (c.dpp or c.perml) and (vw & c.r): need = max(need, 2)
                if c.rdlane and (vw & c.r): need = max(need, 1)
                if p.trans and c.valu and not c.trans and (vw & c.r): need = max(need, 1)
                if p.trans and (c.vmem or c.ds or c.trans) and (vw & c.r): need = max(need, 1)
                if p.sdwa and c.valu and (vw & (c.r | c.w)): need = max(need, 1)
                if p.dot and (vw & (c.r | c.w)) and (c.valu or c.vmem or c.ds):
                    same_acc = c.dot and c.mn == p.mn and not (vw & (c.r - c.w))
                    if not same_acc: need = max(need, 3)
                if c.vmem and (sw & c.r): need = max(need, 5)
                if c.valu and (sw & c.r): need = max(need, 4 if c.rdlane else 2)
                if ("s", "exec") in sw and (c.dpp or c.mfma or c.perml or c.rdlane): need = max(need, 5)
            if p.stdata and (c.valu or c.ds or c.vmem) and (p.stdata & c.w):
                need = max(need, 2)
            if p.salu and ("s", "m0") in p.w and c.dma:
                need = max(need, 1)
            if dist < need:
                errs.append("%s: need %d have %d: [%s] -> [%s]" % (name, need, dist, p.text, c.text))
            dist += p.states
    return errs
```

```python
from asmlib import *
from asmlib import _regs
from layout import *
from common import *
import prep

XT = 18 * KB
STL = 144 * KB
LDSM = 158 * KB
SPIN = 1 << 21

SB = 5 * XT
QO, KO, VO = 0, 80 * 144, 160 * 144
SUMO = 240 * 144
SSQO = SUMO + 320
RSO = SSQO + 320
TLO = RSO + 320
ACC_Q, ACC_K, ACC_V, ACC_E = 16, 32, 52, 72
XB, NXF = 92, 12
QT = 140
DUM = 130 * KB
RES = 244
OACC, OF, OWB = 16, 48, 120
HB = 72 * KB
ACC, BIAS, RS, TMP, PK, ST = 16, 64, 72, 76, 78, 84
SEL, RB0, RB1, A9, A9B, MRES, OWN = 64, 70, 92, 78, 100, 16, 48
NB = 30
PSLOT = 2048 * KB
MADV = ["s_add_u32 s30, s30, 0x1800", "s_addc_u32 s31, s31, 0"]
MBACK = ["s_sub_u32 s30, s30, 0x3000", "s_subb_u32 s31, s31, 0"]
QADV = ["s_add_u32 s30, s30, 0x2000", "s_addc_u32 s31, s31, 0"]
RDY = "global_load_dword v152, v153, s[22:23] sc1"
MFMA = "v_mfma_f32_16x16x32_bf16 %s, %s, %s, %s"


def is_scalar(t):
    return t.startswith("s_")


class Lab:
    n = 0
    wf = ""
    sent = 1


def lab(stem):
    Lab.n += 1
    return "L_%s_%d" % (stem, Lab.n)


def sync(b, cfg, cnt, tag, shadow, idle_work, nbr=False, tr=99, touch=(), shadow_first=False):
    other, done, poll = lab("sy_o"), lab("sy_d"), lab("sy_p")
    b("s_lshl_b32 s40, s25, 8")
    b("s_add_u32 s40, s40, %d" % cnt)
    add64(b, 70, 68, "s40")
    if nbr:
        b("s_cmp_eq_u32 s25, 0")
        b("s_cselect_b32 s41, 0, 256")
        b("s_sub_u32 s66, s70, s41")
        b("s_subb_u32 s67, s71, 0")
    b("s_mov_b32 s28, 1")
    trace(b, cfg, tr)
    b.wait(vm=tag)
    if cfg.get("TOUCH", 0) == 2:
        for t in touch: b(t, vm="pre")
    b.wait_all(vm=False)
    trace(b, cfg, tr + 1)
    b("s_barrier")
    trace(b, cfg, tr + 2)
    b("s_cmp_lg_u32 s24, 0")
    b("s_cbranch_scc1 %s" % other)
    b("s_atomic_add s28, s[70:71], 0 glc")
    if nbr:
        b("s_load_dword s29, s[66:67], 0 glc")
    b("%s:" % other)
    if shadow_first:
        shadow(b)
    idle_work(b)
    if not shadow_first:
        shadow(b)
    trace(b, cfg, tr + 3)
    b("s_cmp_lg_u32 s24, 0")
    b("s_cbranch_scc1 %s" % done)
    b("s_mov_b32 s41, 0")
    b("s_waitcnt lgkmcnt(0)")
    b("s_add_u32 s28, s28, 1")
    b("%s:" % poll)
    if nbr:
        b("s_and_b32 s28, s28, s29")
    b("s_cmp_eq_u32 s28, 8")
    b("s_cbranch_scc1 %s" % done)
    b("s_mov_b32 s28, 0")
    b("s_atomic_add s28, s[70:71], 0 glc")
    if nbr:
        b("s_mov_b32 s29, 0")
        b("s_atomic_add s29, s[66:67], 0 glc")
    b("s_add_u32 s41, s41, 1")
    b("s_cmp_gt_u32 s41, %d" % SPIN)
    b("s_waitcnt lgkmcnt(0)")
    b("s_cbranch_scc0 %s" % poll)
    b("%s:" % done)
    trace(b, cfg, tr + 4)
    b.wait(vm="wo")
    b("s_barrier")
    trace(b, cfg, tr + 5)


def qw(j, s):
    n = 4 * j + s
    return ar(4 * n, 4) if n < 64 else vr(192 + 4 * (n - 64), 4)


def qw_load(j, s):
    return "global_load_dwordx4 %s, v7, s[30:31] offset:%d%s" % (qw(j, s), (j & 1) * 4096 - 4096 + 1024 * s, Lab.wf)


def qw_base(b):
    b("s_lshl_b32 s46, s26, 2")
    b("s_add_u32 s46, s46, s24")
    b("s_mul_i32 s46, s46, %d" % (72 * KB))
    b("s_add_u32 s46, s46, %d" % (WQ_OFF + 4096))
    add64(b, 30, 22, "s46")


def qw_pre(b, js):
    for j in js:
        for s in range(3):
            b(qw_load(j, s), vm="pre")
        skip = lab("qp")
        b("s_cmp_ge_u32 s24, 2")
        b("s_cbranch_scc1 %s" % skip)
        b.L.append(qw_load(j, 3))
        b("%s:" % skip)
        if j & 1:
            for t in QADV: b(t)


def q_setup(b, layer):
    b("s_mov_b32 s3, %d" % layer)
    add64(b, 48, 22, LAYER_OFF + layer * LAYER_SZ)
    add64(b, 68, 22, FLAG_OFF + layer * FL_LAYER)
    ps = 128 if layer == 0 else 2048
    b("s_mov_b32 s38, %d" % ps)
    b("s_mov_b32 s39, %d" % (2 * ps))
    b("s_mov_b32 s64, %d" % (ps // 4))
    b("s_mul_i32 s42, s27, %d" % XT)
    b("s_lshl_b32 s43, s25, 2")
    b("s_max_u32 s43, s43, 1")
    b("s_sub_u32 s43, s43, 1")
    b("s_mul_i32 s43, s43, %d" % XT)
    b("s_lshr_b32 s44, s24, 1")
    b("s_mul_i32 s44, s44, %d" % ps)
    b("s_add_u32 s43, s43, s44")
    if layer == 0:
        add64(b, 32, 4, "s42")
        add64(b, 34, 4, "s43")
    else:
        b("s_add_u32 s42, s42, %d" % X2_OFF)
        b("s_add_u32 s43, s43, %d" % X2_OFF)
        add64(b, 32, 22, "s42")
        add64(b, 34, 22, "s43")
    b("s_add_u32 s36, s24, 1")
    b("s_mul_i32 s36, s36, %d" % XT)
    b("s_lshl_b32 s37, s24, 10")
    b("v_lshrrev_b32 v13, 1, v5")
    if layer == 0:
        b("v_lshrrev_b32 v9, 3, v1")
        b("v_mul_u32_u24 v8, 1152, v9")
        b("v_and_b32 v10, 7, v1")
        b("v_xor_b32 v10, v10, v5")
        b("v_lshl_add_u32 v8, v10, 4, v8")
        b("v_xor_b32 v155, 64, v8")
        b("v_add_u32 v155, %d, v155" % (8 * 1152))
        b("v_lshrrev_b32 v10, 1, v6")
        b("v_xor_b32 v9, v10, v5")
        b("v_xor_b32 v13, v10, v13")
        b("v_xor_b32 v15, s26, v10")
        for r in (9, 13, 15):
            b("v_lshl_add_u32 v%d, v6, 3, v%d" % (r, r))
        b("v_lshlrev_b32 v9, 4, v9")
        b("v_xor_b32 v157, 64, v9")
    else:
        b("v_mov_b32 v8, v7")
        b("v_add_u32 v155, 0x400, v7")
        b("v_mov_b32 v9, v7")
        b("v_add_u32 v157, 0x400, v7")
        b("v_lshl_add_u32 v13, v13, 4, v6")
        b("v_lshl_add_u32 v15, s26, 4, v6")
    b("s_bitcmp1_b32 s24, 0")
    b("s_cselect_b64 vcc, -1, 0")
    b("v_add_u32 v10, %d, v9" % (3 * XT))
    b("v_add_u32 v158, %d, v157" % (3 * XT))
    b("v_cndmask_b32 v156, v8, v155, vcc")
    b("v_and_b32 v11, 1, v5")
    b("v_lshlrev_b32 v11, 3, v11")
    b("s_lshl_b32 s44, s26, 11")
    b("s_add_u32 s44, s44, s36")
    b("s_add_u32 s45, s36, %d" % (16 * KB))
    for r, s in ((13, 44), (15, 45)):
        b("v_lshl_add_u32 v%d, v%d, 4, v11" % (r, r))
        b("v_add_u32 v%d, s%d, v%d" % (r, s, r))
    b("v_xor_b32 v14, s64, v13")
    b("s_lshl_b32 s64, s64, 1")
    b("v_xor_b32 v159, s64, v13")
    b("v_xor_b32 v160, s64, v14")
    b("v_mul_u32_u24 v11, 144, v6")
    b("v_lshl_add_u32 v12, v5, 3, v11")
    b("s_lshl_b32 s47, s24, 5")
    b("s_add_u32 s47, s47, %d" % SB)
    b("v_add_u32 v11, s47, v12")
    b("s_cmp_eq_u32 s24, 0")
    b("s_cselect_b32 s44, 0, %d" % (DUM - SB - TLO - 1280))
    b("s_cselect_b32 s45, 1280, 0")
    b("s_add_u32 s45, s45, %d" % (SB + TLO))
    b("v_lshrrev_b32 v161, 1, v5")
    b("v_mul_u32_u24 v161, s44, v161")
    b("v_mul_u32_u24 v163, 640, v5")
    b("v_lshl_add_u32 v163, v6, 2, v163")
    b("v_add3_u32 v161, v161, v163, s45")
    b("s_cmp_eq_u32 s24, 1")
    b("s_cselect_b32 vcc_hi, 0xffff, 0")
    b("s_mov_b32 vcc_lo, 0")
    b("s_cmp_eq_u32 s24, 2")
    b("s_cselect_b32 vcc_lo, 0x00f0000f, vcc_lo")
    b("s_cselect_b32 vcc_hi, 0xf0000f00, vcc_hi")
    b("s_cselect_b32 s44, %d, 0" % (SSQO - SUMO))
    b("s_add_u32 s44, s44, %d" % (SB + SUMO))
    b("v_lshl_add_u32 v162, v6, 2, s44")
    b("v_lshlrev_b32 v163, 2, v1")
    b("v_add_u32 v163, %d, v163" % (DUM + 2 * KB))
    b("v_cndmask_b32 v162, v163, v162, vcc")
    for r in range(1, 4):
        b("s_mov_b32 s%d, 0x%08x" % (48 + 2 * r, 0x11111111 << r))
        b("s_mov_b32 s%d, 0x%08x" % (49 + 2 * r, 0x11111111 << r))
    b("s_lshl_b32 s44, s26, 8")
    b("s_sub_u32 s44, %d, s44" % (FL_CO - FL_CW))
    b("v_and_b32 v154, 1, v1")
    b("v_mul_u32_u24 v153, s44, v154")
    b("v_sub_u32 v153, %d, v153" % (FLAG_OFF + FL_CO))
    b("v_mad_u32_u24 v154, v154, 9, 9")


def x_items(js, qs, tag):
    out = []
    for j in js:
        out += [("s_mov_b32 m0, s36", None), ("s_add_u32 s36, s36, 0x400", None),
                ("global_load_lds_dwordx4 v%d, s[32:33] sc1" % (155 if j & 1 else 8), tag)]
        if j & 1:
            out += [("s_add_u32 s32, s32, s38", None), ("s_addc_u32 s33, s33, 0", None)]
    for q in qs:
        if q == 4:
            out += [("s_lshr_b32 s40, s24, 1", None), ("s_mul_i32 s41, s40, s38", None),
                    ("s_sub_u32 s34, s34, s41", None), ("s_subb_u32 s35, s35, 0", None),
                    ("s_lshl_b32 s41, s40, 11", None), ("s_sub_u32 s37, s37, s41", None)]
        out += [("s_mov_b32 m0, s37", None), ("s_add_u32 s37, s37, 0x1000", None),
                ("global_load_lds_dwordx4 v156, s[34:35] sc1", tag),
                ("s_add_u32 s34, s34, s39", None), ("s_addc_u32 s35, s35, 0", None)]
    return out


def att_scalars():
    return ["s_mul_i32 s40, s26, %d" % WO_CG, "s_lshl_b32 s41, s24, 12", "s_add_u32 s40, s40, s41", "s_add_u32 s40, s40, %d" % WO_OFF,
            "s_add_u32 s34, s22, s40", "s_addc_u32 s35, s23, 0", "s_lshl_b32 s41, s24, 10", "s_add_u32 m0, s41, %d" % (88 * KB),
            "s_lshl_b32 s40, s26, 2", "s_add_u32 s40, s40, s24", "s_mul_i32 s40, s40, %d" % WM_STREAM,
            "s_add_u32 s40, s40, %d" % (WM_OFF + 3072), "s_add_u32 s30, s22, s40", "s_addc_u32 s31, s23, 0",
            "s_lshl_b32 s40, s25, 5", "s_lshl_b32 s41, s26, 2", "s_add_u32 s40, s40, s41", "s_add_u32 s40, s40, s24", "s_lshl_b32 s40, s40, 11",
            "s_add_u32 s40, s40, %d" % (L_PART + 7 * PSLOT), "s_add_u32 s32, s48, s40", "s_addc_u32 s33, s49, 0"]


def att_early_scalars():
    return ["s_mul_i32 s46, s24, 320", "s_add_u32 s46, s46, %d" % (SB + TLO + 8),
            "s_mul_i32 s42, s25, %d" % (4 * XT), "s_lshl_b32 s43, s26, 11", "s_add_u32 s42, s42, s43",
            "s_lshl_b32 s43, s24, 9", "s_add_u32 s42, s42, s43",
            "s_lshl_b32 s43, s25, 5", "s_lshl_b32 s44, s26, 2", "s_add_u32 s43, s43, s44", "s_add_u32 s43, s43, s24",
            "s_lshl_b32 s43, s43, 8", "s_add_u32 s43, s43, %d" % L_OT,
            "s_mul_i32 s44, s24, 3072", "s_sub_u32 s44, %d, s44" % (88 * KB), "s_lshl_b32 s45, s24, 11", "s_sub_u32 s45, 0x4000, s45"]


def att_vectors():
    return ["v_add_u32 v3, 2, v1", "v_mul_u32_u24 v3, 144, v3", "v_add_u32 v13, s47, v3",
            "v_lshlrev_b32 v2, 2, v1", "v_add_u32 v14, s46, v2", "v_add_u32 v12, 1280, v14", "v_add_u32 v243, 2560, v14", "v_lshlrev_b32 v4, 2, v6", "v_add_u32 v242, s43, v2", "v_add_u32 v2, %d, v2" % (SB + SUMO),
            "v_add_u32 v4, %d, v4" % (SB + SUMO), "v_mul_u32_u24 v241, %d, v5" % XT, "v_add_u32 v3, %d, v2" % (RSO - SUMO + 8),
            "v_lshl_add_u32 v241, v6, 4, v241", "v_add_u32 v15, s44, v7", "v_add_u32 v241, s42, v241"] + ["v_mov_b32 v%d, -1" % r for r in range(176, 180)]


def q_gemm(b, cfg, kind):
    ns = 4 if kind == 0 else 3
    P = sum(cfg["WQP"])
    order = (1, 2, 0, 3)[:ns]

    def w_items(js):
        out = []
        for p in sorted(set(j >> 1 for j in js)):
            out += [(qw_load(j, s), ("W", j, s)) for s in order for j in (2 * p, 2 * p + 1) if j in js]
            if 2 * p + 1 in js:
                out += [(t, None) for t in QADV]
        return out

    xc_at = max(P + (P & 1), cfg.get("QXC", 8))
    q = [(t, None) for t in att_early_scalars()]
    q += w_items(range(P, xc_at)) + x_items(range(12, 18), (3, 4), "xC") + w_items(range(xc_at, 18))
    if cfg["ONE"]:
        q.append((RDY, "rdy"))
    q += [(t, None) for t in att_scalars()]
    b.vmq = ["xB"] * 7 + [("W", j, s) for j in range(P) for s in range(ns)] + [Mark("J")]

    mf, frags = [], []
    for p in range(9):
        for m in (1, 2, 3, 4, 0):
            f0 = len(frags)
            frags += [(2 * p, m), (2 * p + 1, m)]
            units = [(ACC_K + 4 * m, 1), (ACC_V + 4 * m, 2)] + ([(ACC_Q + 4 * (m - 1), 0)] if m else [])
            if kind < 2:
                units.append((ACC_E + 4 * m, 3))
            for acc, s in units:
                for d in range(2):
                    mf.append((acc, s, 2 * p + d, m, f0 + d))
    N = len(mf)
    first, last, lastacc = {}, {}, {}
    for i, (acc, s, j, m, f) in enumerate(mf):
        first.setdefault(f, i)
        last[f] = i
        lastacc[acc] = i
    xr = lambda f: vr(XB + 4 * (f % NXF), 4)

    def read(f):
        j, m = frags[f]
        regs = (157, 158) if j & 1 else (9, 10)
        base, off = (regs[0], m * XT + (j >> 1) * 2 * KB) if m < 3 else (regs[1], (m - 3) * XT + (j >> 1) * 2 * KB)
        if f == 30:
            b.wait(vm="J")
            b("s_barrier")
        if f == 60:
            while any(tag == "xC" for t, tag in q):
                t, tag = q.pop(0)
                b(t, vm=tag)
                cfg.setdefault("_late", []).append(("qx", kind))
            b.wait(vm="xC")
            b("s_barrier")
        b("ds_read_b128 %s, %s offset:%d" % (xr(f), vr(base), off), lg=("X", f))

    vq = []
    e0 = first[62]
    for t in range(4):
        vq.append((e0, ["ds_read_b64 %s, v%d" % (vr(RES + 2 * t, 2), (13, 14, 159, 160)[t])]))
    vq.append((e0, ["ds_read_b64 %s, v15" % vr(RES + 8, 2)]))
    vq += [(e0, [t]) for t in att_vectors()]
    nt = 0
    for m in (1, 2, 3, 4, 0):
        outs = [(ACC_K + 4 * m, 11, KO), (ACC_V + 4 * m, 11, VO)] + ([(ACC_Q + 4 * (m - 1), 11, QO)] if m else [])
        if kind == 0:
            outs.append((ACC_E + 4 * m, 161, 0))
        for acc, addr, reg in outs:
            t = QT + 2 * (nt % 6)
            nt += 1
            vq.append((lastacc[acc], ["v_cvt_pk_bf16_f32 %s, %s, %s" % (vr(t + r), vr(acc + 2 * r), vr(acc + 2 * r + 1)) for r in range(2)]))
            if addr == 161:
                vq.append((lastacc[acc], ["ds_write2_b32 v161, %s, %s offset0:%d offset1:%d" % (vr(t), vr(t + 1), 16 * m, 80 + 16 * m)]))
            else:
                vq.append((lastacc[acc], ["ds_write_b64 %s, %s offset:%d" % (vr(addr), vr(t, 2), reg + 2304 * m)]))
        a = ACC_E + 4 * m
        if kind == 1:
            vq.append((lastacc[a], ["v_cndmask_b32 %s, %s, %s, s[%d:%d]" % (vr(a), vr(a), vr(a + r), 48 + 2 * r, 49 + 2 * r) for r in range(1, 4)]))
        if kind < 2:
            vq.append((lastacc[a], ["ds_write_b32 v162, %s offset:%d" % (vr(a), 64 * m)]))

    LA = cfg.get("QLA", 24)
    nvm = sum(1 for t, tag in q if tag)
    span = N * (18 - cfg.get("QLEAD", 5)) // 18
    issued = 0
    nf = 0
    pos = {}
    while first[nf] <= LA:
        read(nf)
        nf += 1
    for i, (acc, s, j, m, f) in enumerate(mf):
        need = ("W", j, s)
        while any(tag == need for t, tag in q):
            t, tag = q.pop(0)
            b(t, vm=tag)
            issued += 1 if tag else 0
            cfg.setdefault("_late", []).append(("q", kind, j))
        assert f < nf
        b.wait(vm=[need], lg=[("X", f)])
        a = xr(f) if (kind == 1 and s == 3) else qw(j, s)
        b(MFMA % (vr(acc, 4), a, xr(f), vr(acc, 4) if j else "0"))
        pos[i] = len(b.L)
        slots = 3
        if i + 1 < N:
            y = mf[i + 1]
            if not any(tag == ("W", y[2], y[1]) for t, tag in q) and y[4] < nf:
                z = mf[min(i + 2, N - 1)]
                pend = b.pending(vm=[("W", y[2], y[1])], lg=[("X", y[4])])
                if pend and b.wait(vm=[("W", y[2], y[1]), ("W", z[2], z[1])], lg=[("X", y[4]), ("X", z[4])]):
                    slots = 2
        if slots == 3 and q and is_scalar(q[0][0]):
            b(q.pop(0)[0])
        slots = 2
        if q and q[0][1] and issued * span <= i * nvm:
            t, tag = q.pop(0)
            b(t, vm=tag)
            issued += 1
            slots -= 1
        if nf < len(frags) and first[nf] <= i + LA and (nf < NXF or last[nf - NXF] <= i):
            read(nf)
            nf += 1
            slots -= 1
        while slots > 0 and q and is_scalar(q[0][0]):
            b(q.pop(0)[0])
            slots -= 1
        if vq and vq[0][0] <= i and slots > 0 and len(b.L) - pos[vq[0][0]] >= 8:
            for t in vq.pop(0)[1]: b(t)
    assert not q and nf == len(frags)
    stamp(b, cfg, 2)
    extra = 0
    for e, g in vq:
        d = len(b.L) - pos[e] + extra
        if d < 8:
            b("s_nop %d" % (7 - d))
            extra += 7 - d
        for t in g: b(t)


class Ring:
    def __init__(self):
        self.n = 0
        self.wo = 0
        self.pend = []

    def scalars(self, b, cnt=99):
        while self.pend and cnt:
            b(self.pend.pop(0))
            cnt -= 1

    def load(self, b, cnt):
        for _ in range(cnt):
            self.scalars(b)
            if self.wo < 22:
                q = self.wo
                if q == 0:
                    b("s_cmp_ge_u32 s24, 2")
                    b("s_cbranch_scc1 L_q_wo_skip")
                    b.L.append("global_load_lds_dwordx4 v15, s[34:35]" + Lab.wf)
                    b("L_q_wo_skip:")
                    b("s_lshl_b32 m0, s24, 12")
                    b("s_nop 0")
                b("global_load_lds_dwordx4 v7, s[34:35] offset:%d%s" % ((q % 4) * KB, Lab.wf), vm="wo")
                if q % 4 == 3:
                    step = "0x4000" if q < 19 else "s45"
                    self.pend = ["s_add_u32 m0, m0, %s" % step, "s_add_u32 s34, s34, %s" % step, "s_addc_u32 s35, s35, 0"]
                self.wo += 1
            elif self.n < NB:
                b(mw_load(self.n), vm="pre")
                if self.n % 6 == 5:
                    self.pend = list(MADV)
                self.n += 1


def phase_q(b, cfg, ring, ool):
    for t, tag in x_items(range(0, 6), (0, 1), "xA") + x_items(range(6, 12), (2,), "xB"):
        b(t, vm=tag)
    b.wait(vm="xA")
    b("s_barrier")
    b("L_q_join:")
    stamp(b, cfg, 1)
    b("s_cmp_eq_u32 s24, 2")
    b("s_cbranch_scc1 L_q_w2")
    b("s_cmp_eq_u32 s24, 3")
    b("s_cbranch_scc1 L_q_w3")

    for kind, lb in enumerate((None, "L_q_w2", "L_q_w3")):
        if lb:
            b("%s:" % lb)
        g = b.fork()
        q_gemm(g, cfg, kind)
        if kind < 2:
            g("s_branch L_q_att")
        b.extend(g)

    b("L_q_att:")
    b.vmq, b.lgq = [], []
    Q, KR, KT, VR, VT, Z, RSV, O, SL = 16, 28, 92, 100, 164, 220, 228, 28, 46
    if cfg["ONE"]:
        b("s_waitcnt vmcnt(0)")
        b("v_cmp_ne_u32 vcc, v152, v154")
        b("s_cbranch_vccnz L_q_rdy_s")
        b("L_q_rdy_b:")
        ool("L_q_rdy_s:")
        ool("s_mov_b32 s41, 0")
        ool("L_q_rdy_l:")
        ool.L.append(RDY)
        ool("s_add_u32 s41, s41, 1")
        ool("s_cmp_gt_u32 s41, %d" % SPIN)
        ool("s_waitcnt vmcnt(0)")
        ool("s_cbranch_scc1 L_q_rdy_b")
        ool("v_cmp_ne_u32 vcc, v152, v154")
        ool("s_cbranch_vccnz L_q_rdy_l")
        ool("s_branch L_q_rdy_b")
    b.wait_all(vm=False)
    b("s_barrier")
    stamp(b, cfg, 3)

    lq = []

    def row(dst, reg, w, tag):
        off = reg + 288 * (7 - w)
        lq.append(("ds_read_b128 %s, v13 offset:%d" % (vr(dst, 4), off), tag))
        lq.append(("ds_read_b128 %s, v13 offset:%d" % (vr(dst + 4, 4), off + 16), tag))

    def rows(dst, tl, addr, reg, w, nm):
        row(dst + 8 * w, reg, w, (nm, w))
        row(dst + 8 * w + 8, reg, w + 1, (nm, w))
        lq.append(("ds_read2_b32 %s, v%d offset0:%d offset1:%d" % (vr(tl + w, 2), addr, 2 * (7 - w), 2 * (6 - w)), (nm, w)))

    st = dict(n=0, done=0)
    NBG, BGS, LDE = cfg["RING"][0], cfg.get("BGSPAN", 200), cfg.get("LDE", 10)

    def lds(n=1):
        for _ in range(min(n, len(lq))):
            t, tag = lq.pop(0)
            b(t, lg=tag)

    def need(*tags):
        while any(tag in tags for t, tag in lq):
            lds()
        b.wait(lg=list(tags))

    def v(t):
        b(t)
        st["n"] += 1
        if st["n"] % LDE == 0:
            ring.scalars(b)
            lds(cfg.get("LDB", 5))
            while st["done"] < NBG and st["n"] * NBG >= st["done"] * BGS:
                ring.load(b, 1)
                st["done"] += 1

    kel = lambda w, d: vr(KR + 8 * w + d) if d < 8 else vr(KT + w)
    vel = lambda w, d: vr(VR + 8 * w + d) if d < 8 else vr(VT + w)
    b("ds_read2_b32 v[236:237], v2 offset0:16 offset1:96", lg="st")
    b("ds_read2_b32 v[238:239], v4 offset0:0 offset1:80", lg="st")
    row(Q, QO, 0, "q")
    lq.append(("ds_read_b32 %s, v14 offset:56" % vr(Q + 8), "q"))
    for w in range(0, 8, 2):
        rows(KR, KT, 12, KO, w, "k")
    lds(cfg.get("LD0", 13))
    if Lab.sent or cfg.get("PREF"):
        for h in range(2):
            b("global_store_dwordx4 v7, v[176:179], s[32:33] offset:%d sc1" % (h * KB), vm="pre")
    ring.load(b, 1)
    st["done"] = 1
    b("s_mov_b32 s40, 0x%08x" % f32(1.0 / 576))
    b.wait(lg="st")
    v("v_pk_mul_f32 v[236:237], v[236:237], s[40:41] op_sel_hi:[1,0]")
    v("v_pk_mul_f32 v[238:239], v[238:239], s[40:41] op_sel_hi:[1,0]")
    for t in (236, 238):
        v("v_fma_f32 %s, -%s, %s, %s" % (vr(t), vr(t), vr(t), vr(t + 1)))
        v("v_max_f32 %s, 0, %s" % (vr(t), vr(t)))
        v("v_add_f32 %s, 0x%08x, %s" % (vr(t), f32(1e-5), vr(t)))
        v("v_rsq_f32 %s, %s" % (vr(t), vr(t)))
    lq.append(("ds_write_b32 v2, v236 offset:%d" % (RSO - SUMO + 64), None))
    lq.append(("ds_write_b32 v4, v238 offset:%d" % (RSO - SUMO), None))
    for w in range(0, 8, 2):
        lq.append(("ds_read2_b32 %s, v3 offset0:%d offset1:%d" % (vr(RSV + w, 2), 2 * (7 - w), 2 * (6 - w)), "rs"))
    for w in range(0, 8, 2):
        rows(VR, VT, 243, VO, w, "v")
    for w in range(0, 8, 2):
        need("q", ("k", w))
        for d in range(9):
            for ww in (w, w + 1):
                if d == 0:
                    b("v_dot2_f32_bf16 %s, %s, %s, 0" % (vr(Z + ww), vr(Q), kel(ww, 0)))
                else:
                    v("v_dot2c_f32_bf16 %s, %s, %s" % (vr(Z + ww), vr(Q + d), kel(ww, d)))
            if d == 0:
                b("s_nop 1")
    need("rs")
    v("v_mul_f32 v236, 0x%08x, v236" % f32(18 ** -0.5 * LOG2E))
    for w in range(0, 8, 2):
        v("v_pk_mul_f32 %s, %s, %s" % (vr(Z + w, 2), vr(Z + w, 2), vr(RSV + w, 2)))
    for w in range(0, 8, 2):
        v("v_pk_mul_f32 %s, %s, v[236:237] op_sel_hi:[1,0]" % (vr(Z + w, 2), vr(Z + w, 2)))
    b("s_cmp_lg_u32 s25, 0")
    b("s_cbranch_scc1 L_q_nomask")
    b("v_mov_b32 v237, 0x%08x" % f32(-1e9 * LOG2E))
    for w in range(1, 8):
        b("v_cmp_le_u32 vcc, %d, v1" % (2 * w))
        b("s_nop 1")
        b("v_cndmask_b32 %s, v237, %s, vcc" % (vr(Z + w), vr(Z + w)))
    b("L_q_nomask:")
    v("v_max3_f32 v237, %s, %s, %s" % (vr(Z), vr(Z + 1), vr(Z + 2)))
    v("v_max3_f32 v238, %s, %s, %s" % (vr(Z + 3), vr(Z + 4), vr(Z + 5)))
    v("v_max3_f32 v237, v237, %s, %s" % (vr(Z + 6), vr(Z + 7)))
    v("v_max_f32 v238, v237, v238")
    for w in range(0, 8, 2):
        v("v_pk_add_f32 %s, %s, v[238:239] op_sel_hi:[1,0] neg_lo:[0,1] neg_hi:[0,1]" % (vr(Z + w, 2), vr(Z + w, 2)))
    for w in range(8):
        v("v_exp_f32 %s, %s" % (vr(Z + w), vr(Z + w)))
    v("v_pk_add_f32 v[236:237], %s, %s" % (vr(Z, 2), vr(Z + 2, 2)))
    v("v_pk_add_f32 v[238:239], %s, %s" % (vr(Z + 4, 2), vr(Z + 6, 2)))
    v("v_pk_add_f32 v[236:237], v[236:237], v[238:239]")
    v("v_add_f32 v236, v236, v237")
    v("v_rcp_f32 v236, v236")
    for w in range(0, 8, 2):
        v("v_pk_mul_f32 %s, %s, %s" % (vr(Z + w, 2), vr(Z + w, 2), vr(RSV + w, 2)))
    for w in range(0, 8, 2):
        v("v_pk_mul_f32 %s, %s, v[236:237] op_sel_hi:[1,0]" % (vr(Z + w, 2), vr(Z + w, 2)))
    for w in range(8):
        v("v_cvt_pk_bf16_f32 %s, %s, 0" % (vr(SL + 2 * w), vr(Z + w)))
        v("v_lshlrev_b32 %s, 16, %s" % (vr(SL + 2 * w + 1), vr(SL + 2 * w)))
    for w in range(8):
        need(("v", w & 6))
        for d in range(9):
            for hh in range(2):
                o = vr(O + 2 * d + hh)
                if w == 0:
                    v("v_dot2_f32_bf16 %s, %s, %s, 0" % (o, vel(0, d), vr(SL + hh)))
                else:
                    v("v_dot2c_f32_bf16 %s, %s, %s" % (o, vel(w, d), vr(SL + 2 * w + hh)))
    assert not lq and st["done"] == NBG
    ring.scalars(b)
    for d in range(9):
        b("v_cvt_pk_bf16_f32 %s, %s, %s" % (vr(Q + d), vr(O + 2 * d), vr(O + 2 * d + 1)))
    assert L_O == 0
    b("global_store_dwordx4 v241, %s, s[48:49] sc1" % vr(Q, 4), vm="pub")
    b("global_store_dwordx4 v241, %s, s[48:49] offset:256 sc1" % vr(Q + 4, 4), vm="pub")
    b("global_store_dword v242, %s, s[48:49] sc1" % vr(Q + 8), vm="pub")
    stamp(b, cfg, 4)
    trace(b, cfg, 29)


def ow(j, t):
    n = (5 * j + t) % 60
    return ar(120 + 4 * n, 4) if n < 30 else vr(OWB + 4 * (n - 30), 4)


def ow_read(j, t):
    n = 5 * j + t
    regs = (10, 11) if t == 4 else (7, 9)
    base, off = (regs[0], n * KB) if n < 60 else (regs[1], (n - 60) * KB)
    return "ds_read_b128 %s, %s offset:%d" % (ow(j, t), vr(base), off)


def o_setup(b, npre):
    b("v_add_u32 v9, %d, v7" % (60 * KB))
    b("v_and_b32 v10, 0x37f, v7")
    b("v_add_u32 v11, %d, v10" % (60 * KB))
    b("s_mul_i32 s36, s27, %d" % XT)
    b("s_add_u32 s37, s36, 4096")
    add64(b, 32, 48, "s37")
    b("s_lshl_b32 s37, s25, 13")
    b("s_lshl_b32 s42, s24, 6")
    b("s_add_u32 s37, s37, s42")
    b("s_add_u32 s37, s37, %d" % (L_OT + 4096))
    b("v_lshlrev_b32 v8, 10, v5")
    b("v_lshl_add_u32 v8, v6, 2, v8")
    b("v_add_u32 v8, s37, v8")
    b("s_lshl_b32 s37, s26, 11")
    b("s_add_u32 s37, s37, s36")
    b("s_add_u32 s37, s37, %d" % L_X1)
    b("v_add_u32 v12, s37, v7")
    b("s_lshl_b32 s37, s26, 8")
    b("s_add_u32 s37, s37, s36")
    b("s_add_u32 s37, s37, %d" % (L_X1 + 16 * KB))
    b("v_lshlrev_b32 v13, 4, v6")
    b("v_and_b32 v14, 1, v5")
    b("v_lshl_add_u32 v13, v14, 3, v13")
    b("v_add_u32 v13, s37, v13")
    b("s_lshl_b32 s37, s27, 10")
    b("s_lshl_b32 s42, s26, 7")
    b("s_add_u32 s37, s37, s42")
    b("s_add_u32 s37, s37, %d" % L_ST)
    b("v_lshl_add_u32 v14, v6, 3, s37")
    for j in range(npre):
        for t in range(5):
            b(ow_read(j, t), lg=("W", j, t))


def phase_o(b, cfg, ring, npre):
    q = []
    for j in range(16):
        q.append(("global_load_dwordx4 %s, v7, s[32:33] offset:%d sc1" % (vr(OF + 4 * j, 4), (j % 8) * KB - 4096), ("o", j)))
        if j == 7:
            q += [("s_add_u32 s32, s32, 0x2000", None), ("s_addc_u32 s33, s33, 0", None)]
    for j in (16, 17):
        for h in range(4):
            q.append(("global_load_dword %s, v8, s[48:49] offset:%d sc1" % (vr(OF + 4 * j + h), (j - 17) * 4096 + 256 * h), ("o", j)))
    first = cfg.get("OFIRST", 8)
    while sum(1 for t in b.vmq if isinstance(t, tuple) and t[0] == "o") < first:
        t, tag = q.pop(0)
        b(t, vm=tag)
    nring = cfg["RING"][3]
    mf = [(2 * p + d, t) for p in range(9) for t in range(5) for d in range(2)]
    rq = [k for k in mf if k[0] >= npre]
    for i, (j, t) in enumerate(mf):
        assert not any(tag == ("o", j) for tt, tag in q) and (j, t) not in rq
        b.wait(vm=[("o", j)], lg=[("W", j, t)])
        if t == 0 and j in (0, 8, 16):
            trace(b, cfg, 36 + j // 8)
        a = vr(OACC + 4 * t, 4)
        b(MFMA % (a, ow(j, t), vr(OF + 4 * j, 4), a if j else "0"))
        if i % 5 in (0, 2):
            while q and not q[0][1]:
                b(q.pop(0)[0])
            if q:
                tt, tag = q.pop(0)
                b(tt, vm=tag)
            elif nring and i % 5 == 0:
                ring.load(b, 1)
                nring -= 1
        if rq and (rq[0][0] < 12 or mf.index((rq[0][0] - 12, rq[0][1])) <= i) and (len(rq) * 2 >= 80 - i or i % 2):
            k = rq.pop(0)
            b(ow_read(*k), lg=("W",) + k)
    assert not q
    ring.load(b, nring)
    stamp(b, cfg, 5)
    trace(b, cfg, 39)
    T = OF
    for t in range(5):
        for p in range(2):
            b("v_lshlrev_b32 %s, 16, %s" % (vr(T + 8 + 4 * t + 2 * p), vr(RES + 2 * t + p)))
            b("v_and_b32 %s, 0xffff0000, %s" % (vr(T + 9 + 4 * t + 2 * p), vr(RES + 2 * t + p)))
    for t in range(5):
        for p in range(2):
            a = OACC + 4 * t + 2 * p
            b("v_pk_add_f32 %s, %s, %s" % (vr(a, 2), vr(a, 2), vr(T + 8 + 4 * t + 2 * p, 2)))
            b("v_cvt_pk_bf16_f32 %s, %s, %s" % (vr(RES + 2 * t + p), vr(a), vr(a + 1)))
        if t == 1:
            b("global_store_dwordx4 v12, %s, s[48:49] sc1" % vr(RES, 4), vm="pub")
        if t == 3:
            b("global_store_dwordx4 v12, %s, s[48:49] offset:1024 sc1" % vr(RES + 4, 4), vm="pub")
    b("v_mov_b32 v2, 0x3f803f80")
    b("v_mov_b32 %s, 0" % vr(T + 2))
    b("v_mov_b32 %s, 0" % vr(T + 3))
    b("s_mov_b32 exec_hi, 0")
    b("global_store_dwordx2 v13, %s, s[48:49] sc1" % vr(RES + 8, 2), vm="pub")
    for r in (8, 9, -1, 0, 1, 2, 3, 4, 5, 6, 7):
        if r < 0:
            b("s_mov_b32 exec_hi, -1")
            continue
        b("v_dot2c_f32_bf16 %s, %s, v2" % (vr(T + 2), vr(RES + r)))
        b("v_dot2c_f32_bf16 %s, %s, %s" % (vr(T + 3), vr(RES + r), vr(RES + r)))
    b("s_nop 2")
    for op in ("v_permlane16_swap_b32", "v_permlane32_swap_b32"):
        b("v_mov_b32 %s, %s" % (vr(T + 4), vr(T + 2)))
        b("v_mov_b32 %s, %s" % (vr(T + 5), vr(T + 3)))
        b("s_nop 0")
        b("%s %s, %s" % (op, vr(T + 2), vr(T + 4)))
        b("%s %s, %s" % (op, vr(T + 3), vr(T + 5)))
        b("v_add_f32 %s, %s, %s" % (vr(T + 2), vr(T + 2), vr(T + 4)))
        b("v_add_f32 %s, %s, %s" % (vr(T + 3), vr(T + 3), vr(T + 5)))
    b("s_mov_b64 exec, 0xffff")
    b("global_store_dwordx2 v14, %s, s[48:49] sc1" % vr(T + 2, 2), vm="pub")
    b("s_mov_b64 exec, -1")


def mx(j, m):
    n = 4 * j + m
    return ar(120 + 4 * n, 4) if n < 34 else vr(104 + 4 * (n - 34), 4)


def slot(n):
    return ar(4 * (n % NB), 4)


def mw_load(n):
    return "global_load_dwordx4 %s, v7, s[30:31] offset:%d%s" % (slot(n), (n % 6) * KB - 3072, Lab.wf)


class M:
    pass


def aset2(u):
    return (1, 2, 0, 1, 0, 1, 0, 1, 2)[u]


def build_mfmas(cfg):
    G = cfg.get("G", 6)
    GD = cfg.get("GD", 4)
    std = [list(range(k, min(k + G, 18))) for k in range(0, 18, G)]
    dbl = [list(range(k, min(k + GD, 16))) for k in range(0, 16, GD)] + [[16, 17]]
    out = []

    def add(seg, aset, m, j, n, src):
        x = M()
        x.seg, x.aset, x.m, x.j, x.n, x.src = seg, aset, m, j, n, src
        out.append(x)

    for t in range(9):
        for grp in std:
            for m in range(4):
                for j in grp:
                    add(("p1", t), t % 2, m, j, 18 * t + j, "X")
    for grp in dbl:
        for m in range(4):
            for u in range(2):
                for j in grp:
                    add(("p2", u), aset2(u), m, j, w2_pos(u, j), "H")
    for u in range(2, 9):
        for grp in std:
            for m in range(4):
                for j in grp:
                    add(("p2", u), aset2(u), m, j, w2_pos(u, j), "H")
    return out


def mish_groups(t, m):
    a = ACC + 16 * (t % 2) + 4 * m
    bi = BIAS + 4 * (t % 2)
    G = []
    for p in (0, 2):
        x, y = a + p, a + p + 1
        G.append(["v_fma_f32 %s, %s, %s, %s" % (vr(x), vr(x), vr(RS + m), vr(bi + p)),
                  "v_fma_f32 %s, %s, %s, %s" % (vr(y), vr(y), vr(RS + m), vr(bi + p + 1))])
        G.append(["v_exp_f32 %s, %s" % (vr(TMP), vr(x))])
        G.append(["v_exp_f32 %s, %s" % (vr(TMP + 1), vr(y))])
        G.append(["v_fma_f32 %s, %s, s56, s56" % (vr(TMP + q), vr(TMP + q)) for q in range(2)])
        G.append(["v_fma_f32 %s, -%s, %s, -0.5" % (vr(TMP + q), vr(TMP + q), vr(TMP + q)) for q in range(2)])
        G.append(["v_rcp_f32 %s, %s" % (vr(TMP), vr(TMP))])
        G.append(["v_rcp_f32 %s, %s" % (vr(TMP + 1), vr(TMP + 1))])
        G.append(["v_fmac_f32 %s, %s, %s" % (vr(x), vr(x), vr(TMP)),
                  "v_fmac_f32 %s, %s, %s" % (vr(y), vr(y), vr(TMP + 1))])
    pk = PK + 2 * (m & 1)
    G.append(["v_cvt_pk_bf16_f32 %s, %s, %s" % (vr(pk), vr(a), vr(a + 1)),
              "v_cvt_pk_bf16_f32 %s, %s, %s" % (vr(pk + 1), vr(a + 2), vr(a + 3))])
    base, off = (11, 8192 * t + KB * m) if t < 4 else (12, 8192 * (t - 4) + KB * m)
    G.append(["ds_write_b64 %s, %s offset:%d" % (vr(base), vr(pk, 2), off)])
    return G


def m_setup(b):
    b("v_add_u32 v8, %d, v7" % (2 * XT))
    b("v_add_u32 v9, %d, v7" % HB)
    b("v_add_u32 v10, %d, v7" % (HB + 32768))
    b("s_lshr_b32 s46, s24, 1")
    b("s_lshl_b32 s46, s46, 12")
    b("s_and_b32 s47, s24, 1")
    b("s_lshl_b32 s47, s47, 3")
    b("s_add_u32 s46, s46, s47")
    b("v_add_u32 v11, s46, v9")
    b("v_add_u32 v12, s46, v10")
    b("s_mul_i32 s46, s26, 2304")
    b("s_lshl_b32 s47, s24, 6")
    b("s_add_u32 s46, s46, s47")
    b("s_add_u32 s46, s46, %d" % B1_OFF)
    b("v_lshl_add_u32 v13, v5, 4, s46")
    b("s_lshl_b32 s46, s27, 10")
    b("s_add_u32 s46, s46, %d" % L_ST)
    add64(b, 34, 48, "s46")
    b("s_lshl_b32 s37, s24, 10")
    b("s_add_u32 s37, s37, %d" % STL)
    b("v_lshlrev_b32 v14, 10, v5")
    b("v_lshl_add_u32 v14, v6, 3, v14")
    b("v_add_u32 v14, %d, v14" % STL)
    b("s_mov_b32 s56, 0x%08x" % f32(0.5 ** 0.5))
    b("s_lshl_b32 s46, s25, 16")
    b("s_lshl_b32 s47, s24, 11")
    b("s_add_u32 s46, s46, s47")
    b("s_add_u32 s46, s46, %d" % L_PART)
    add64(b, 58, 48, "s46")
    if Lab.sent:
        b("s_lshl_b32 s46, s26, 13")
        b("s_add_u32 s46, s46, %d" % (7 * PSLOT))
        add64(b, 44, 58, "s46")
    b("s_lshl_b32 s46, s25, 12")
    b("s_lshl_b32 s47, s24, 7")
    b("s_add_u32 s46, s46, s47")
    b("s_add_u32 s46, s46, %d" % FL_P)
    add64(b, 72, 68, "s46")
    b("s_mul_i32 s46, s27, %d" % XT)
    b("s_add_u32 s46, s46, %d" % L_X1)
    add64(b, 32, 48, "s46")
    b("s_mul_i32 s36, s24, %d" % XT)
    b("s_mov_b32 m0, s37")
    b("s_mov_b32 s54, 1")
    b("v_lshrrev_b32 v102, 2, v6")
    b("v_lshl_add_u32 v102, v102, 2, v5")
    b("v_and_b32 v103, 3, v6")
    b("v_lshl_add_u32 v102, v102, 2, v103")
    b("v_lshlrev_b32 v102, 4, v102")
    for t in range(2):
        b("global_load_dwordx4 %s, v13, s[22:23] offset:%d%s" % (vr(BIAS + 4 * t, 4), 256 * t, Lab.wf), vm="pre")


def send_ptr(u):
    sp, fp = 60 + 2 * (u % 2), 64 + 2 * (u % 2)
    if u == 0:
        return ["s_lshl_b32 s57, s26, 13",
                "s_add_u32 s%d, s58, s57" % sp, "s_addc_u32 s%d, s59, 0" % (sp + 1)]
    return ["s_add_u32 s57, s26, %d" % u, "s_and_b32 s57, s57, 7", "s_lshl_b32 s55, s57, 9",
            "s_lshl_b32 s57, s57, 13", "s_add_u32 s57, s57, %d" % (u * PSLOT),
            "s_add_u32 s%d, s58, s57" % sp, "s_addc_u32 s%d, s59, 0" % (sp + 1),
            "s_add_u32 s%d, s72, s55" % fp, "s_addc_u32 s%d, s73, 0" % (fp + 1)]


def flag_store(u):
    fp = 64 + 2 * (u % 2)
    return ["s_atomic_add s54, s[%d:%d], %d" % (fp, fp + 1, 4 * u)]


def tail_setup():
    I = []
    I += ["v_lshrrev_b32 v2, 2, v6", "v_and_b32 v3, 1, v6", "v_cmp_eq_u32 vcc, v2, v5", "v_lshlrev_b32 v3, 4, v3",
          "v_mov_b32 v4, 0x3f80", "v_lshlrev_b32 v3, v3, v4", "v_cndmask_b32 v3, 0, v3, vcc", "v_and_b32 v4, 2, v6",
          "v_cmp_eq_u32 vcc, 0, v4", "v_mov_b32 %s, 0" % vr(SEL + 2), "v_mov_b32 %s, 0" % vr(SEL + 3), "v_and_b32 v4, 3, v1",
          "v_cndmask_b32 %s, 0, v3, vcc" % vr(SEL), "v_sub_u32 %s, v3, %s" % (vr(SEL + 1), vr(SEL)),
          "v_mov_b32 %s, %s" % (vr(SEL + 4), vr(SEL)), "v_mov_b32 %s, %s" % (vr(SEL + 5), vr(SEL + 1))]
    I += ["v_and_b32 v8, 0xff, v102", "v_and_b32 v14, 1, v2", "v_lshl_add_u32 v8, v2, 13, v8", "v_add_u32 v4, s74, v4",
          "v_add_u32 v8, s75, v8", "v_lshrrev_b32 v3, 1, v5", "v_add_u32 v13, 0x8000, v8", "v_lshl_add_u32 v10, v3, 4, v4",
          "v_and_b32 v2, 1, v5", "v_lshlrev_b32 v10, 4, v10", "v_add_u32 v9, s76, v7", "v_lshl_add_u32 v10, v2, 3, v10",
          "v_mul_u32_u24 v11, %d, v2" % XT, "v_mul_u32_u24 v14, %d, v14" % XT, "v_add3_u32 v10, v10, v14, s77", "v_mov_b32 v15, v4"]
    return [I[k:k + 2] for k in range(0, len(I), 2)]


def tail_scalars():
    return ["s_and_b32 s74, s26, 3", "s_lshl_b32 s74, s74, 2", "s_lshl_b32 s75, s26, 8",
            "s_lshl_b32 s76, s26, 1", "s_lshr_b32 s55, s24, 1", "s_add_u32 s76, s76, s55", "s_lshl_b32 s76, s76, 10",
            "s_and_b32 s55, s24, 1", "s_lshl_b32 s55, s55, 3", "s_add_u32 s76, s76, s55",
            "s_lshr_b32 s77, s26, 2", "s_mul_i32 s77, s77, %d" % (2 * XT), "s_lshl_b32 s55, s24, 9", "s_add_u32 s77, s77, s55",
            "s_add_u32 s77, s77, %d" % (16 * KB),
            "s_lshl_b32 s55, s26, 13", "s_add_u32 s52, s58, s55", "s_addc_u32 s53, s59, 0",
            "s_lshl_b32 s55, s26, 9", "s_add_u32 s78, s72, s55", "s_addc_u32 s79, s73, 0"]


def out_scalars():
    return ["s_cmp_eq_u32 s3, 0", "s_cselect_b32 s74, 0x100, 16", "s_cselect_b32 s75, 16, 0x480", "s_cselect_b32 s76, %d, 0" % X2_OFF,
            "s_mul_i32 s55, s25, %d" % (4 * XT), "s_add_u32 s76, s76, s55", "s_lshl_b32 s55, s24, 1", "s_mul_i32 s55, s55, s74",
            "s_add_u32 s76, s76, s55", "s_lshr_b32 s77, s26, 2", "s_mul_i32 s77, s77, %d" % (2 * XT), "s_add_u32 s77, s77, s76",
            "s_lshl_b32 s55, s74, 6", "s_add_u32 s77, s77, s55", "s_mul_i32 s55, s74, s26", "s_lshl_b32 s55, s55, 3", "s_add_u32 s76, s76, s55",
            "s_mov_b32 s56, 0x%08x" % f32(LN2),
            "s_lshl_b32 s55, s26, 2", "s_add_u32 s55, s55, s24", "s_mul_i32 s55, s55, %d" % (72 * KB), "s_add_u32 s55, s55, %d" % (WQ_OFF + 4096),
            "s_add_u32 s30, s22, s55", "s_addc_u32 s31, s23, 0"]


def rbuf(u):
    return (RB0, RB1)[u % 2]


def recv_loads(u):
    return ["s_add_u32 s52, s52, %d" % PSLOT, "s_addc_u32 s53, s53, 0"] + [
        "global_load_dwordx4 %s, v7, s[52:53] offset:%d sc1" % (vr(rbuf(u) + 4 * h, 4), h * KB) for h in range(2)]


def recv_mfmas(u):
    out = []
    for h in range(2):
        for p in range(2):
            a = vr(OWN + 4 * (2 * h + p), 4)
            out.append(MFMA % (a, vr(SEL + 2 * p, 4), vr(rbuf(u) + 4 * h, 4), a if u > 1 else "0"))
    return out


def assert_free(vq, i, reg):
    r = _regs(reg)
    for it in vq:
        if it["e"] - 8 > i:
            break
        for t in it["g"]:
            p = parse(t)
            if p is not None:
                assert not (r & (p.r | p.w)), (i, reg, t)


def phase_m(b, cfg, ring, ool):
    def xd(js, tag):
        out = []
        for j in js:
            if j % 4 == 0 and j:
                out += [("s_add_u32 m0, m0, 0x1000", None), ("s_add_u32 s32, s32, 0x1000", None), ("s_addc_u32 s33, s33, 0", None)]
            out.append(("global_load_lds_dwordx4 v7, s[32:33] offset:%d sc1" % ((j % 4) * KB), tag))
        return out

    b("global_load_lds_dwordx4 v7, s[34:35] sc1", vm="xA")
    b("s_mov_b32 m0, s36")
    b("s_nop 0")
    xall = xd(range(0, 6), "xA") + xd(range(6, 12), "xB") + xd(range(12, 18), "xC")
    while sum(1 for t in b.vmq if t in ("xA", "xB", "xC")) < 1 + cfg.get("MFIRST", 15):
        t, tag = xall.pop(0)
        b(t, vm=tag)
    SV = ACC + 16
    gq = xall

    mf = build_mfmas(cfg)
    N = len(mf)
    first_w, last_w, first_b, last_acc, last_x, seg_start = {}, {}, {}, {}, {}, {}
    for i, x in enumerate(mf):
        first_w.setdefault(x.n, i)
        last_w[x.n] = i
        first_b.setdefault((x.src, x.j, x.m), i)
        last_acc[(x.seg, x.m)] = i
        seg_start.setdefault(x.seg, i)
        if x.src == "X":
            last_x[(x.j, x.m)] = i

    def bread(src, j, m):
        if src == "X":
            base, off = (7, m * XT + j * KB) if m < 2 else (8, (m - 2) * XT + j * KB)
        else:
            base, off = (9, 4096 * j + KB * m) if j < 8 else (10, 4096 * (j - 8) + KB * m)
        return "ds_read_b128 %s, %s offset:%d" % (mx(j, m), vr(base), off)

    def stage(src, j):
        if src == "X":
            return "xA" if j < 6 else "xB" if j < 12 else "xC"
        return "hA" if j < 14 else "hB" if j < 16 else "hC"

    LA = cfg.get("LA", 12)
    dq = sorted(first_b, key=lambda k: first_b[k])
    vq = []

    def V(e, g, tag=None, wait=None, force=False):
        vq.append(dict(e=e, g=g, tag=tag, wait=wait, force=force))

    sti = []
    for step in (8, 4, 2):
        sti += ["v_add_f32 %s, %s, %s" % (vr(SV + q), vr(SV + q), vr(SV + q + step)) for q in range(step)]
    sti += ["v_mul_f32 %s, 0x%08x, %s" % (vr(SV + q), f32(1.0 / 576), vr(SV + q)) for q in range(2)]
    sti += ["v_fma_f32 %s, -%s, %s, %s" % (vr(SV), vr(SV), vr(SV), vr(SV + 1)), "v_max_f32 %s, 0, %s" % (vr(SV), vr(SV))]
    stg = [sti[k:k + 2] for k in range(0, len(sti), 2)]
    stg += [["v_add_f32 %s, 0x%08x, %s" % (vr(SV), f32(1e-5), vr(SV)), "v_rsq_f32 %s, %s" % (vr(SV), vr(SV))],
            ["v_mul_f32 %s, 0x%08x, %s" % (vr(RS + q), f32(LOG2E), vr(SV)) for q in range(2)],
            ["s_nop 0", "v_permlane16_swap_b32 %s, %s" % (vr(RS), vr(RS + 1))],
            ["v_mov_b32 %s, %s" % (vr(RS + 2 + q), vr(RS + q)) for q in range(2)],
            ["s_nop 0", "v_permlane32_swap_b32 %s, %s" % (vr(RS), vr(RS + 2))],
            ["v_permlane32_swap_b32 %s, %s" % (vr(RS + 1), vr(RS + 3))]]
    for q in range(4):
        V(cfg.get("STAT_AT", 42) - 12, ["ds_read2_b64 %s, v14 offset0:%d offset1:%d" % (vr(SV + 4 * q, 4), 32 * q, 32 * q + 16)], tag="st", force=True)
    for n, g in enumerate(stg):
        V(cfg.get("STAT_AT", 42), g, wait="st" if n == 0 else None, force=True)
    for t in range(9):
        for m in range(4):
            gs = mish_groups(t, m)
            if cfg.get("NOMISH"):
                gs = [gs[0], gs[8], ["s_nop 0"], ["s_nop 0"]] + gs[-2:]
            for n, g in enumerate(gs):
                V(last_acc[(("p1", t), m)] + (8 if cfg.get("NOMISH") else 4), g, tag=("hw", t) if n == len(gs) - 1 else None,
                  wait=("bias", t) if (m == 0 and n == 0) else None)

    def stbuf(u):
        return ST + (8 if u == 1 else 0)

    def cvts(u):
        st = stbuf(u)
        a = ACC + 16 * aset2(u)
        for m in range(4):
            V(last_acc[(("p2", u), m)] + 8, ["v_cvt_pk_bf16_f32 %s, %s, %s" % (vr(st + 2 * m + r), vr(a + 4 * m + 2 * r), vr(a + 4 * m + 2 * r + 1))
                                            for r in range(2)])

    def stores(u):
        st, sp = stbuf(u), 60 + 2 * (u % 2)
        if cfg.get("NOST"):
            return ["s_nop 0"]
        return ["global_store_dwordx4 v%d, %s, s[%d:%d] offset:%d%s" % (7 if u else 102, vr(st + 4 * h, 4), sp, sp + 1, h * KB, cfg.get("sc_part", " sc1")) for h in range(2)]

    UP = cfg.get("UP", 4)
    PB = rbuf(UP - 1)

    def poll(u):
        g = ["s_load_dword s28, s[78:79], %d glc" % (4 * u)]
        if u == UP - 2:
            g.append("s_load_dword s29, s[72:73], 64 glc")
        return g

    def test(u):
        return (["s_lshr_b32 s29, s29, 3", "s_and_b32 s28, s28, s29"] if u == UP - 2 else []) + ["s_cmp_eq_u32 s28, 1"]

    def check(e, u):
        slow, back = lab("rc_s"), lab("rc_b")
        V(e, ["s_waitcnt lgkmcnt(0)"] + test(u) + ["s_cbranch_scc0 %s" % slow, "%s:" % back])
        ool("%s:" % slow)
        ool("s_mov_b32 s41, 0")
        ool("%s_l:" % slow)
        for t in poll(u): ool(t)
        ool("s_add_u32 s41, s41, 1")
        ool("s_cmp_gt_u32 s41, %d" % SPIN)
        ool("s_waitcnt lgkmcnt(0)")
        ool("s_cbranch_scc1 %s" % back)
        for t in test(u): ool(t)
        ool("s_cbranch_scc0 %s_l" % slow)
        ool("s_branch %s" % back)

    E = {u: last_acc[(("p2", u), 3)] + 8 for u in range(9)}
    PAT, SAT, FAT = cfg.get("POLL_AT", 28), cfg.get("SUM_AT", 44), cfg.get("FLAG_AT", 38)
    piece = ["global_load_dwordx4 %s, v%d, s[58:59] sc1" % (vr(PB + 4 * q, 4), (8, 13)[q]) for q in range(2)]
    piece_sum = [MFMA % (vr(a, 4), vr(SEL + 2 * p, 4), vr(PB + 4 * q, 4), vr(a, 4) if q else "0") for p, a in enumerate((A9, A9B)) for q in range(2)]
    RAT = cfg.get("RECV_AT", 36)
    SMAX = cfg.get("SMAX", 5)
    F7 = cfg.get("FLAG7", 28)
    p2 = len(vq)
    seq = [0]

    def at(e, g, **kw):
        V(e, g, **kw)
        seq[0] += 1
        vq[-1]["key"] = (e, seq[0])

    def either(e, even, odd, tag):
        lo, end = lab("ei_o"), lab("ei_e")
        nv = lambda g: sum(1 for t in g if t.startswith("global_"))
        cnt, unc = (even, odd) if nv(even) <= nv(odd) else (odd, even)
        br = "s_cbranch_scc1" if cnt is even else "s_cbranch_scc0"
        at(e, ["s_bitcmp1_b32 s25, 0", "%s %s" % (br, lo)] + cnt + ["%s:" % end], tag=tag)
        ool("%s:" % lo)
        ool.L.extend(unc)
        ool("s_branch %s" % end)

    def spec(u):
        return ["global_load_dwordx4 %s, v7, %s offset:%d sc1" % (vr(rbuf(u) + 4 * h, 4), "s[50:51]" if u == 6 else "s[44:45]", h * KB) for h in range(2)]

    T = 26
    rpos, rdone = {}, {}
    for u in range(1, 8):
        e = E[u]
        n0 = len(vq)
        if u == 1:
            cvts(0)
        cvts(u)
        for it in vq[n0:]:
            seq[0] += 1
            it["key"] = (it["e"] if u > 1 else e, seq[0])
        k = u - 2
        if u >= 3:
            at(e - PAT, poll(k))
            n0 = len(vq)
            check(e, k)
            seq[0] += 1
            vq[-1]["key"] = (e, seq[0])
        rl = recv_loads(k) if u >= 3 and not cfg.get("NORECV") else []
        if u == 1:
            at(e, stores(0), tag=("st", 1))
            for g in tail_setup():
                at(e, g)
            at(e + RAT, stores(1), tag=("st", 1))
            fe = e + RAT + FAT
        elif u <= SMAX:
            either(e, stores(u), rl, ("x", u))
            either(e + RAT, rl, stores(u), ("x", u))
            if not rl:
                at(e + RAT, ["#mark"], tag=("x", u))
            fe = e + RAT + FAT
            rdone[k] = (e + RAT + SAT, ("x", u))
        else:
            at(e, stores(u), tag=("st", u))
            r = e + (RAT if u < 7 else 0)
            at(r, rl, tag=("r", k))
            fe = e + (FAT if u < 7 else F7)
            rdone[k] = (r + (cfg.get("S5_AT", SAT) if u == 7 else SAT), ("r", k))
        if not (Lab.sent and u == 7):
            at(fe, flag_store(u) + (["s_atomic_add s54, s[72:73], 64"] if u == 1 else []), wait=("x", u) if 1 < u <= SMAX else ("st", u))
        if u == UP:
            at(e + cfg.get("PIECE_AT", 18), piece, tag="r9")
            at(e + cfg.get("PIECE_AT", 18) + SAT, piece_sum, wait="r9")
        if u == 7:
            for g in (["ds_read_b64 %s, v9" % vr(MRES, 2), "ds_read_b64 %s, v9 offset:%d" % (vr(MRES + 2, 2), XT)],
                      ["ds_read_b64 %s, v9 offset:%d" % (vr(MRES + 4 + 2 * q, 2), (2 + q) * XT) for q in range(2)],
                      ["ds_read_b64 %s, v10" % vr(MRES + 8, 2)]):
                at(e - 24, g, tag="res")
            I = ["v_lshrrev_b32 v3, 1, v5", "v_and_b32 v2, 1, v5", "v_mul_u32_u24 v3, s74, v3", "v_mul_u32_u24 v4, s75, v6",
                 "v_mul_u32_u24 v8, s75, v15", "v_add3_u32 v11, v11, v3, v4", "v_add3_u32 v8, v8, v3, v14", "v_add_u32 v11, s76, v11",
                 "v_lshl_add_u32 v8, v2, 3, v8", "v_add_u32 v12, %d, v11" % (2 * XT), "v_add_u32 v8, s77, v8", "v_mov_b32 v4, 0xffff0000"]
            for r in range(8):
                a = (A9, A9B)[r >> 2] + (r & 3)
                I.append("v_add_f32_dpp %s, %s, %s row_ror:8 row_mask:0xf bank_mask:0xf" % (vr(ST + r), vr(a), vr(a)))
            for r in range(8):
                I.append("v_add_f32_dpp %s, %s, %s row_ror:4 row_mask:0xf bank_mask:0x%x" % (vr(A9 + (r & 3)), vr(ST + r), vr(ST + r), (0x5, 0xa)[r >> 2]))
            for k2 in range(0, len(I), 2):
                at(e + 9, I[k2:k2 + 2])
            for r in range(10):
                at(e + cfg.get("UNP_AT", 10), ["v_lshlrev_b32 %s, 16, %s" % (vr(T + 2 * r), vr(MRES + r)), "v_and_b32 %s, v4, %s" % (vr(T + 2 * r + 1), vr(MRES + r))],
                   wait="res" if r == 0 else None)
            for r in range(0, 4, 2):
                at(e + cfg.get("UNP_AT", 10), ["v_fmac_f32 %s, s56, %s" % (vr(T + 16 + r + q), vr(A9 + r + q)) for q in range(2)])
            at(e + cfg.get("UNP_AT", 10), ["v_cvt_pk_bf16_f32 %s, %s, %s" % (vr(MRES + 8 + r), vr(T + 16 + 2 * r), vr(T + 17 + 2 * r)) for r in range(2)])
            if Lab.sent:
                at(max(e + cfg.get("R7_AT", 62), rdone[5][0] + 1), spec(7), tag=("r", 7))
            r6 = e + F7 - 1 if SMAX < 6 else N - 6
            at(max(r6 - PAT, e + 1), poll(6))
            check(r6, 6)
            seq[0] += 1
            vq[-1]["key"] = (r6, seq[0])
            at(r6, recv_loads(6), tag=("r", 6))
    late = [6]
    for k in range(1, 6):
        at(rdone[k][0], recv_mfmas(k), wait=rdone[k][1])
    vq[p2:] = sorted(vq[p2:], key=lambda it: it["key"])
    ev = ["p" if it["g"][0].startswith("s_load") else "c" for it in vq[p2:] if it["g"] and it["g"][0].startswith(("s_load", "s_waitcnt lgkm"))]
    assert "".join(ev) == "pc" * 6, ev

    hw_left = {t: 4 for t in range(9)}
    done = set()
    sq = []
    nextw = ring.n
    last_load = -4
    bias_next = 2
    ptr_next = 0
    sq_age = 0
    D0 = seg_start[("p2", 2)] if cfg.get("D0", 1) else seg_start[("p2", 0)]
    drain_n0 = {}

    def ensure_stage(sg):
        if sg in done:
            return True
        if sg[0] == "x":
            while any(tag == sg for t, tag in gq):
                t, tag = gq.pop(0)
                b(t, vm=tag)
            b.wait(vm=sg)
        else:
            t = {"hA": 6, "hB": 7, "hC": 8}[sg]
            if hw_left[t]:
                return False
            b.wait(lg=[("hw", tt) for tt in range(t + 1)])
        b("s_barrier")
        done.add(sg)
        return True

    def emit_v():
        it = vq.pop(0)
        if it["wait"]:
            assert not any(tag == it["wait"] for t, tag in gq)
            b.wait(vm=[it["wait"]], lg=[it["wait"]])
        if any(t.startswith("s_") and not t.startswith(("s_nop", "s_mov", "s_atomic", "s_load")) for t in it["g"]):
            while sq:
                b(sq.pop(0))
        for t in it["g"]:
            if t == "s_waitcnt lgkmcnt(0)":
                b.lgq = []
            if t == "#mark":
                b.vmq.append(Mark(it["tag"]))
                continue
            b(t, vm=it["tag"], lg=it["tag"])
        if it["tag"] and it["tag"][0] == "hw":
            hw_left[it["tag"][1]] -= 1

    ensure_stage("xA")
    stamp(b, cfg, 6)
    trace(b, cfg, 47)
    while first_b[dq[0]] < LA:
        k = dq.pop(0)
        b(bread(*k), lg=k)
    for i, x in enumerate(mf):
        if i == 0:
            b.wait(lg=[(x.src, x.j, x.m)])
        if i % 72 == 0:
            trace(b, cfg, i // 72)
        a = vr(ACC + 16 * x.aset + 4 * x.m, 4)
        if x.j == 0 and x.seg != ("p2", 8):
            assert_free(vq, i, a)
        b(MFMA % (a, slot(x.n), mx(x.j, x.m), a if (x.j or x.seg == ("p2", 8)) else "0"))
        used = False
        budget = 2
        if i + 1 < N:
            y = mf[i + 1]
            ky = (y.src, y.j, y.m)
            while ky in dq:
                while not ensure_stage(stage(dq[0][0], dq[0][1])):
                    assert vq[0]["e"] <= i
                    emit_v()
                k = dq.pop(0)
                b(bread(*k), lg=k)
                cfg.setdefault("_late", []).append((i, k))
            assert y.n < nextw
            wl = [ky]
            if vq and vq[0]["e"] <= i and vq[0]["wait"]:
                wl.append(vq[0]["wait"])
            wv = []
            if b.pending(vm=[("W", y.n)], lg=[("W", y.n)]):
                wv = [("W", z.n) for z in mf[i + 1:i + 1 + cfg.get("WGRAN", 3)] if z.n < nextw]
            used = b.wait(vm=wv + wl, lg=wv + wl)
        if ptr_next < 8 and not sq and i >= seg_start[("p2", ptr_next)] + (40 if ptr_next >= 2 else 0):
            assert_free(vq, i, sr(60 + 2 * (ptr_next % 2), 2))
            assert_free(vq, i, sr(64 + 2 * (ptr_next % 2), 2))
            sq += send_ptr(ptr_next)
            if ptr_next == 1:
                sq += tail_scalars()
            ptr_next += 1
        if ptr_next == 8 and not sq and nextw == 324 and i >= seg_start[("p2", 7)] + 46:
            assert i < E[7] - 16
            sq += out_scalars()
            ptr_next += 1
        sq_age = sq_age + 1 if sq else 0
        if sq and (not used or sq_age > 1):
            b(sq.pop(0))
            sq_age = 0
        paced = True
        if cfg.get("DRAIN") and nextw < 324 and i >= D0:
            n0 = drain_n0.setdefault(0, nextw)
            paced = (i - D0) * (324 - n0) >= (nextw - n0) * (first_w[323] - cfg["DRAIN"] - D0)
        if gq:
            if i - last_load >= 2:
                while not gq[0][1]:
                    b(gq.pop(0)[0])
                t, tag = gq.pop(0)
                b(t, vm=tag)
                last_load = i
        elif nextw < 324 and (nextw < NB or i >= last_w[nextw - NB]) and i - last_load >= cfg.get("LDGAP", 3) and not any(t in MADV + MBACK for t in sq) and paced:
            if not (cfg.get("HALFW") and nextw & 1):
                b(mw_load(nextw), vm=("W", nextw))
            if nextw % 6 == 5 and nextw < 323:
                pos = 0
                while pos < len(sq) and sq[pos].startswith(("s_addc", "s_subb")):
                    pos += 1
                sq[pos:pos] = MBACK if (cfg.get("FAKEW") and nextw % 18 == 17) else MADV
            nextw += 1
            last_load = i
            if x.seg[0] == "p2" or x.seg == ("p1", 0):
                budget -= 1
        if bias_next < 9 and i >= seg_start[("p1", bias_next)] - cfg.get("BIAS_AT", 4):
            assert_free(vq, i, vr(BIAS + 4 * (bias_next % 2), 4))
            b("global_load_dwordx4 %s, v13, s[22:23] offset:%d%s" % (vr(BIAS + 4 * (bias_next % 2), 4), 256 * bias_next, Lab.wf), vm=("bias", bias_next))
            bias_next += 1
        while dq and budget > 0 and first_b[dq[0]] <= i + LA + (12 if budget == 1 and x.seg[0] == "p2" else 0):
            k = dq[0]
            if k[0] == "H" and last_x[(k[1], k[2])] > i:
                break
            if not ensure_stage(stage(k[0], k[1])):
                break
            dq.pop(0)
            b(bread(*k), lg=k)
            budget -= 1
        if vq and vq[0]["e"] <= i and (budget == 2 or vq[0]["force"] or (x.seg[0] == "p1" and x.seg[1] > 0)):
            emit_v()
    assert not dq and not sq and nextw == 324 and not gq
    while vq:
        emit_v()

    trace(b, cfg, 18)
    if not Lab.sent:
        pl, got = lab("rB_p"), lab("rB_g")
        b(poll(7)[0])
        for u in late:
            b.wait(vm=[("r", u)])
            for t in recv_mfmas(u): b(t)
        trace(b, cfg, 19)
        b("s_mov_b32 s41, 0")
        b("%s:" % pl)
        b.wait_all(vm=False)
        b("s_cmp_eq_u32 s28, 1")
        b("s_cbranch_scc1 %s" % got)
        b(poll(7)[0])
        b("s_add_u32 s41, s41, 1")
        b("s_cmp_gt_u32 s41, %d" % SPIN)
        b("s_cbranch_scc0 %s" % pl)
        b("s_waitcnt lgkmcnt(0)")
        b("%s:" % got)
        trace(b, cfg, 20)
        for t in recv_loads(7): b(t, vm=("r", 7))
    assert cfg["WQP"][0] == 0
    if Lab.sent:
        b.wait(vm=[("r", 6)])
        for t in recv_mfmas(6): b(t)
    b.wait(vm=[("r", 7)])
    if Lab.sent:
        trace(b, cfg, 19)
        for t in flag_store(7): b(t)
        ck, again, go = lab("sn_c"), lab("sn_a"), lab("sn_g")
        b("s_mov_b32 s41, 0")
        b("s_mov_b32 s40, 0")
        b("%s:" % ck)
        regs = [rbuf(7) + r for r in range(8)]
        b("v_max3_u32 v2, %s, %s, %s" % tuple(vr(r) for r in regs[0:3]))
        b("v_max3_u32 v3, %s, %s, %s" % tuple(vr(r) for r in regs[3:6]))
        for n, k in enumerate(range(6, 8, 2)):
            b("v_max3_u32 v%d, v%d, %s, %s" % (2 + n % 2, 2 + n % 2, vr(regs[k]), vr(regs[k + 1])))
        b("v_max_u32 v2, v2, v3")
        b("v_cmp_eq_u32 vcc, -1, v2")
        b("s_cbranch_vccnz %s" % again)
        b("%s:" % go)
        ool("%s:" % again)
        ool("s_cmp_eq_u32 s40, 2")
        ool("s_cbranch_scc1 %s" % go)
        ool("s_add_u32 s41, s41, 1")
        ool("s_cmp_gt_u32 s41, %d" % SPIN)
        ool("s_cbranch_scc1 %s" % go)
        ool("s_lshl_b32 s40, s40, 1")
        ool("s_load_dword s28, s[78:79], 28 glc")
        ool.L.extend(spec(7))
        ool("s_waitcnt vmcnt(0) lgkmcnt(0)")
        ool("s_max_u32 s40, s40, s28")
        ool("s_branch %s" % ck)
        trace(b, cfg, 20)
    trace(b, cfg, 21)
    for t in recv_mfmas(7): b(t)
    b("s_nop 4")
    for r in range(8):
        b("v_fmac_f32 %s, s56, %s" % (vr(T + 2 * r), vr(OWN + 2 * r)))
        b("v_fmac_f32 %s, s56, %s" % (vr(T + 2 * r + 1), vr(OWN + 2 * r + 1)))
        b("v_cvt_pk_bf16_f32 %s, %s, %s" % (vr(MRES + r), vr(T + 2 * r), vr(T + 2 * r + 1)))
    for h in range(2):
        for p in range(2):
            b("v_permlane16_swap_b32 %s, %s" % (vr(MRES + 4 * h + p), vr(MRES + 4 * h + 2 + p)))

    trace(b, cfg, 22)

    def out_stores(bb, base, fl):
        bb("global_store_dwordx4 v11, %s, %s%s" % (vr(MRES, 4), base, fl), vm="pub")
        bb("global_store_dwordx4 v12, %s, %s%s" % (vr(MRES + 4, 4), base, fl), vm="pub")
        bb("s_mov_b32 exec_lo, 0x00ff00ff")
        bb("s_mov_b32 exec_hi, 0x00ff00ff")
        bb("global_store_dwordx2 v8, %s, %s%s" % (vr(MRES + 8, 2), base, fl), vm="pub")
        bb("s_mov_b64 exec, -1")
    return out_stores


def spin_until(b, ptr, off, want, first=True, sleep=2):
    pl, ck, ok = lab("sp_p"), lab("sp_c"), lab("sp_k")
    b("s_mov_b32 s41, 0")
    if not first:
        b("s_branch %s" % ck)
    b("%s:" % pl)
    b.L.append("global_load_dword v3, v2, %s offset:%d sc1" % (ptr, off))
    b("s_waitcnt vmcnt(0)")
    b("%s:" % ck)
    b("v_cmp_ne_u32 vcc, %d, v3" % want)
    b("s_add_u32 s41, s41, 1")
    b("s_cmp_gt_u32 s41, %d" % SPIN)
    b("s_cbranch_scc1 %s" % ok)
    b("s_cbranch_vccz %s" % ok)
    b("s_sleep %d" % sleep)
    b("s_branch %s" % pl)
    b("%s:" % ok)


def first_layer(b, cfg):
    prep.gen_prep(b, cfg, "L_layer", "L_mega_last")
    trace(b, cfg, 50)
    b("v_mov_b32 v2, 0")
    b("global_load_dword v3, v2, s[20:21] offset:128 sc1", vm="pub")
    q_setup(b, 0)
    xa = x_items(range(0, 6), (0, 1), "xA")
    xb = x_items(range(6, 12), (2,), "xB")
    n0 = 4 * cfg.get("FX", 4)
    for t, tag in xa[:n0]:
        b(t, vm=tag)
    qw_base(b)
    b("s_lshl_b32 s40, s26, 8")
    b("s_add_u32 s40, s40, %d" % (FLAG_OFF + FL_CQ))
    add64(b, 66, 22, "s40")
    trace(b, cfg, 51)
    b.wait(vm="pub")
    b("s_barrier")
    trace(b, cfg, 52)
    b("s_cmp_lg_u32 s24, 0")
    b("s_cbranch_scc1 L_f_na")
    spin_until(b, "s[20:21]", 128, 1, first=False, sleep=4)
    b("s_cmp_eq_u32 s65, 0")
    b("s_cbranch_scc1 L_f_na")
    b("s_atomic_add s65, s[70:71], 0")
    b("L_f_na:")
    for t, tag in xa[n0:] + xb:
        b(t, vm=tag)
    b("s_cmp_lg_u32 s24, 0")
    b("s_cbranch_scc1 L_f_go")
    b("v_and_b32 v2, 1, v1")
    b("v_lshlrev_b32 v2, 8, v2")
    spin_until(b, "s[66:67]", 0, 3 * prep.NPART, sleep=cfg.get("QSLEEP", 4))
    b("s_waitcnt lgkmcnt(0)")
    b("L_f_go:")
    trace(b, cfg, 53)
    b.wait(vm="xA")
    b("s_barrier")
    qw_pre(b, range(sum(cfg["WQP"])))
    trace(b, cfg, 54)
    b("s_branch L_q_join")


def gen_mega(cfg):
    cfg.setdefault("RING", [14, 5, 10, 8, 5, 10])
    cfg.setdefault("WQP", [0, 2, 4])
    for k in ("RING", "WQP"):
        if isinstance(cfg[k], str):
            cfg[k] = [int(c) for c in cfg[k].split(".")]
    Lab.n = 0
    Lab.wf = cfg.get("WF", " sc1")
    Lab.sent = cfg.get("SENT", 1)
    cfg.setdefault("ONE", 1)
    name = cfg.get("name", "mega_kernel")
    b = B()
    ool = B()
    entry(b, name)
    b("s_cmp_ge_u32 s2, 256")
    b("s_cbranch_scc1 L_mega_end")
    probe(b, cfg, "s", layered=False)
    load_args(b)
    stamp(b, cfg, 0)
    b("v_and_b32 v1, 63, v0")
    b("v_lshrrev_b32 v2, 6, v0")
    b("v_lshrrev_b32 v5, 4, v1")
    b("v_readfirstlane_b32 s24, v2")
    b("v_and_b32 v6, 15, v1")
    b("v_lshlrev_b32 v7, 4, v1")
    decode_wg(b, cfg, 25, 26)
    b("s_lshl_b32 s27, s25, 2")
    b("s_add_u32 s27, s27, s24")
    b("s_waitcnt lgkmcnt(0)")
    if cfg["ONE"]:
        first_layer(b, cfg)
        qw_pre(b, range(sum(cfg["WQP"])))
        q_setup(b, 0)
    b("L_layer:")
    b.vmq = ["pre"] * 20
    ring = Ring()
    phase_q(b, cfg, ring, ool)
    R = cfg["RING"]
    npre = min(cfg.get("OPRE", 2), (R[0] // 4 * 16) // 10 * 2, 12)
    assert npre >= 2
    t1 = ["global_load_dword v2, v8, s[48:49] sc1", "global_load_dword v3, v8, s[48:49] offset:256 sc1", "global_load_dword v4, v9, s[48:49] sc1"]
    t2 = ["global_load_dword v2, v12, s[48:49] sc1", "global_load_dword v3, v12, s[48:49] offset:1024 sc1",
          "global_load_dword v4, v13, s[48:49] sc1", "global_load_dword v4, v14, s[48:49] sc1"]
    t3 = ["global_load_dword v2, v11, s[22:23] sc1", "global_load_dword v3, v12, s[22:23] sc1"]
    if cfg.get("TOUCH", 0) == 1:
        for t in t1: b(t, vm="pre")
    ring.load(b, R[1])
    sync(b, cfg, FL_C1, "pub", lambda g: ring.load(g, R[2]), lambda g: o_setup(g, npre), tr=30, touch=t1, shadow_first=cfg.get("SF", 0))
    assert ring.wo == 22
    phase_o(b, cfg, ring, npre)
    trace(b, cfg, 40)
    if cfg.get("TOUCH", 0) == 1:
        for t in t2: b(t, vm="pre")
    ring.load(b, R[4])
    sync(b, cfg, FL_C2, "pub", lambda g: (ring.load(g, R[5]), ring.scalars(g)), m_setup, tr=41, touch=t2)
    ring.scalars(b)
    out_stores = phase_m(b, cfg, ring, ool)
    probe(b, cfg, "e")
    b("s_cmp_lg_u32 s3, 0")
    b("s_cbranch_scc1 L_final")
    g = b.fork()
    out_stores(g, "s[22:23]", " sc1")
    stamp_end(g, cfg, 1, wait=False)
    W = cfg["WQP"]
    if cfg.get("TOUCH", 0) == 1:
        for t in t3: g(t, vm="pre")
    qw_pre(g, range(W[0], W[0] + W[1]))
    sync(g, cfg, FL_C3, "pub", lambda q: qw_pre(q, range(W[0] + W[1], sum(W))), lambda q: q_setup(q, 1), nbr=True, touch=t3)
    if cfg.get("stamp") != 3:
        stamp(g, cfg, 0)
    g("s_branch L_layer")
    b.extend(g)
    b("L_final:")
    out_stores(b, "s[18:19]", cfg.get("sc_out", ""))
    stamp_end(b, cfg, 1)
    probe_end(b, cfg)
    b("L_mega_end:")
    b("s_endpgm")
    b.extend(ool)
    b("L_mega_last:")
    return b, [(name, 512, 256)], [(name, 256, 256, LDSM)]
```

```python
from asmlib import *
from layout import *
from common import *

PL = 86 * KB
FR = 16
NZERO = 12
NPART = 3
P_W1, P_W2, P_WO, P_END = 96, 168, 240, 249


def srd(b, ptr, size):
    b("s_mov_b32 s28, s%d" % ptr)
    b("s_and_b32 s29, s%d, 0xffff" % (ptr + 1))
    b("s_mov_b32 s30, %d" % size)
    b("s_mov_b32 s31, 0x20000")


def div9(b, dst, rem, src):
    b("s_mul_i32 s%d, s%d, 57" % (dst, src))
    b("s_lshr_b32 s%d, s%d, 9" % (dst, dst))
    b("s_mul_i32 s%d, s%d, 9" % (rem, dst))
    b("s_sub_u32 s%d, s%d, s%d" % (rem, src, rem))


class Loader:
    def __init__(self, b, cfg, stride, nch, rot=False):
        self.b, self.stride, self.nch, self.next, self.rot = b, stride, nch, 0, rot
        self.per = 18 // nch
        b("s_mul_i32 s34, s24, %d" % (8 * self.per * stride))
        b("s_add_u32 s32, s32, s34")
        b("s_mul_i32 s34, s24, %d" % (8 * self.per * 128))
        b("s_add_u32 m0, s34, %d" % PL)
        trace(b, cfg, 60)

    def issue(self, n):
        b = self.b
        for _ in range(n):
            if self.next >= self.nch:
                return
            for k in range(self.per):
                b("s_nop 0")
                b("buffer_load_dwordx4 v8, s[28:31], s32 offen lds", vm=("ld", self.next))
                step = 8 + (24 * self.per if k == self.per - 1 else 0)
                b("s_add_u32 s32, s32, %d" % (step * self.stride))
                b("s_add_u32 m0, m0, %d" % (step * 128))
            self.next += 1
            if self.rot and self.next < self.nch:
                b("s_cmp_eq_u32 s38, %d" % (self.nch - self.next))
                b("s_cselect_b32 s34, %d, 0" % (576 * self.stride))
                b("s_sub_u32 s32, s32, s34")


def lane128(b, stride):
    b("v_lshrrev_b32 v8, 3, v1")
    b("v_mul_u32_u24 v8, %d, v8" % stride)
    b("v_and_b32 v9, 7, v1")
    b("v_lshl_add_u32 v8, v9, 4, v8")


def col128(b, dst, extra=0):
    b("v_lshl_add_u32 %s, v3, 3, %s" % (vr(dst), vr(dst)))
    b("s_lshl_b32 s35, s24, 5")
    b("s_add_u32 s35, s35, %d" % (PL + extra))
    b("v_add_u32 %s, s35, %s" % (vr(dst), vr(dst)))


def store(b, cfg, j, sstride, second=None):
    b("global_store_dwordx4 v9, %s, s[22:23] sc1" % vr(FR + 4 * j, 4), vm="pub")
    if second is not None:
        b("global_store_dwordx4 v9, %s, s[22:23] offset:%d sc1" % (vr(FR + 4 * j, 4), second), vm="pub")
    b("v_add_u32 v9, %s, v9" % sstride)


def process(b, cfg, ld, plan, pi, centred, emit_store, nout=18):
    if centred:
        b("v_mov_b32 v13, 0x3f803f80")
        b("v_mov_b32 v14, 0")
        b("v_mov_b32 v15, 0")
    todo = list(range(18))
    trace(b, cfg, 61)
    for ch in range(ld.nch):
        b.wait(vm=[("ld", ch)])
        b("s_barrier")
        if ch in (0, ld.nch - 1):
            trace(b, cfg, 62 + (ch > 0))
        now = []
        while todo and max(pi(todo[0], g, e) for g in range(4) for e in range(8)) < 576 // ld.nch * (ch + 1):
            now.append(todo.pop(0))
        for j in now:
            for h in range(2):
                base, imm = plan(j, h)
                assert 0 <= imm < 65536
                b("ds_read_b64_tr_b16 %s, %s offset:%d" % (vr(FR + 4 * j + 2 * h, 2), vr(base), imm), lg=("tr", j))
        for j in now:
            b.wait(lg=[("tr", j)])
            if centred:
                for r in range(4):
                    b("v_dot2c_f32_bf16 v%d, %s, v13" % (14 + (r & 1), vr(FR + 4 * j + r)))
            else:
                emit_store(j)
        ld.issue(1)
    if not centred:
        return
    b("s_nop 2")
    b("v_add_f32 v14, v14, v15")
    xlane_sum_g(b, 14, 15)
    b("v_mul_f32 v14, 0x%08x, v14" % f32(-1.0 / 576))
    b("v_mov_b32 v12, 0xffff0000")
    trace(b, cfg, 64)
    for j in range(nout):
        for r in range(4):
            x, t = FR + 4 * j + r, 90 + 2 * (r & 1)
            b("v_lshlrev_b32 %s, 16, %s" % (vr(t), vr(x)))
            b("v_and_b32 %s, v12, %s" % (vr(t + 1), vr(x)))
            b("v_pk_add_f32 %s, %s, v[14:15] op_sel_hi:[1,0]" % (vr(t, 2), vr(t, 2)))
            b("v_cvt_pk_bf16_f32 %s, %s, %s" % (vr(x), vr(t), vr(t + 1)))
        emit_store(j)


def gen_prep(b, cfg, code_lo, code_hi):
    assert all((x * 57) >> 9 == x // 9 for x in range(72))
    b("v_and_b32 v3, 3, v1")
    b("v_bfe_u32 v4, v1, 2, 2")
    b("s_cmp_lg_u32 s24, 3")
    b("s_cbranch_scc1 L_p_nocode")
    b("s_getpc_b64 s[36:37]")
    b("L_p_pc:")
    b("s_add_u32 s36, s36, %s-L_p_pc" % code_lo)
    b("s_addc_u32 s37, s37, 0")
    b("s_lshr_b32 s38, s2, 3")
    b("s_lshl_b32 s38, s38, 11")
    b("v_lshl_add_u32 v8, v6, 7, s38")
    b("v_min_u32 v8, %s-%s-4, v8" % (code_hi, code_lo))
    b.L.append("global_load_dword v95, v8, s[36:37]")
    b("L_p_nocode:")
    b("s_cmp_ge_u32 s2, %d" % P_END)
    b("s_cbranch_scc1 L_p_zero")
    b("s_cmp_ge_u32 s2, %d" % P_WO)
    b("s_cbranch_scc1 L_p_wo")
    b("s_cmp_ge_u32 s2, %d" % P_W2)
    b("s_cbranch_scc1 L_p_w2")
    b("s_cmp_ge_u32 s2, %d" % P_W1)
    b("s_cbranch_scc1 L_p_w1")
    b("s_and_b32 s39, s2, 31")
    b("s_cmp_ge_u32 s39, 27")
    b("s_cbranch_scc1 L_p_zero")

    g = b.fork()
    srd(g, 6, D * 3 * D * 2)
    g("s_lshr_b32 s38, s2, 5")
    g("s_lshl_b32 s32, s39, 7")
    g("s_mul_i32 s33, s38, %d" % (192 * 3456))
    g("s_add_u32 s32, s32, s33")
    lane128(g, 3456)
    ld = Loader(g, cfg, 3456, 3, rot=True)
    ld.issue(3)
    g("v_lshl_add_u32 v10, v5, 3, v4")
    g("v_lshlrev_b32 v10, 7, v10")
    col128(g, 10)
    g("v_add_u32 v11, 0x10000, v10")
    div9(g, 36, 37, 39)
    g("s_lshl_b32 s40, s37, 4")
    g("s_lshl_b32 s41, s24, 2")
    g("s_add_u32 s40, s40, s41")
    g("v_add_u32 v12, s40, v4")
    assert all((x * 57) >> 9 == x // 9 for x in range(144))
    g("v_mul_u32_u24 v13, 57, v12")
    g("v_lshrrev_b32 v13, 9, v13")
    g("v_mul_u32_u24 v14, 9, v13")
    g("v_sub_u32 v14, v12, v14")
    g("v_cmp_lt_u32 vcc, 4, v14")
    g("v_lshlrev_b32 v15, 1, v13")
    g("v_subrev_u32 v12, 5, v14")
    g("v_cndmask_b32 v12, v14, v12, vcc")
    g("v_addc_co_u32 v15, vcc, 0, v15, vcc")
    g("v_mul_u32_u24 v15, %d, v15" % (72 * KB))
    g("v_lshl_add_u32 v15, v12, 6, v15")
    g("s_lshl_b32 s40, s36, 10")
    g("v_add_u32 v15, s40, v15")
    g("v_and_b32 v12, 1, v13")
    g("v_lshrrev_b32 v13, 1, v13")
    g("v_mul_u32_u24 v13, %d, v13" % (4 * 72 * KB))
    g("v_lshl_add_u32 v13, v12, 6, v13")
    g("s_cmp_eq_u32 s36, 0")
    g("s_cselect_b32 s40, %d, 0" % (72 * KB))
    g("s_cmp_eq_u32 s36, 2")
    g("s_cselect_b32 s41, 128, 0")
    g("s_add_u32 s40, s40, s41")
    g("s_add_u32 s40, s40, %d" % (3 * KB))
    g("v_add_u32 v13, s40, v13")
    g("v_cmp_eq_u32 vcc, 4, v14")
    g("v_lshlrev_b32 v9, 8, v5")
    g("v_lshl_add_u32 v9, v3, 4, v9")
    g("v_cndmask_b32 v15, v15, v13, vcc")
    g("s_mul_i32 s40, s38, %d" % (6 * 4 * KB))
    g("s_add_u32 s40, s40, %d" % WQ_OFF)
    g("v_add3_u32 v9, v9, v15, s40")
    process(g, cfg, ld, lambda j, h: (10, 4096 * j + 512 * h) if j < 16 else (11, 4096 * (j - 16) + 512 * h), pi_nat, True,
            lambda j: store(g, cfg, j, "0x1000"), nout=6)
    g("s_lshl_b32 s40, s37, 8")
    g("s_add_u32 s40, s40, %d" % (FLAG_OFF + FL_CQ))
    g("s_branch L_p_fin")
    b.extend(g)

    b("L_p_w1:")
    g = b.fork()
    srd(g, 12, D * F * 2)
    g("s_sub_u32 s38, s2, %d" % P_W1)
    g("s_lshl_b32 s32, s38, 7")
    g("s_lshl_b32 s39, s38, 6")
    g("v_add_lshl_u32 v94, v1, s39, 1")
    g("global_load_ushort v88, v94, s[14:15]", vm="bias")
    lane128(g, F * 2)
    ld = Loader(g, cfg, F * 2, 3)
    ld.issue(3)
    g("v_lshl_add_u32 v10, v5, 2, v4")
    g("v_lshlrev_b32 v10, 7, v10")
    col128(g, 10)
    g("v_lshl_add_u32 v11, v5, 3, v4")
    g("v_lshlrev_b32 v11, 7, v11")
    col128(g, 11, 0x10000)
    div9(g, 36, 37, 38)
    g("s_lshl_b32 s39, s36, 2")
    g("s_add_u32 s39, s39, s24")
    g("s_mul_i32 s39, s39, %d" % WM_STREAM)
    g("s_mul_i32 s37, s37, %d" % (18 * KB))
    g("s_add_u32 s39, s39, s37")
    g("s_add_u32 s39, s39, %d" % WM_OFF)
    g("v_add_u32 v9, s39, v7")
    process(g, cfg, ld, lambda j, h: (10, 4096 * j + 2048 * h) if j < 16 else (11, 4096 * (j - 16) + 512 * h), pi_1, True,
            lambda j: store(g, cfg, j, "0x400"))
    g("v_lshlrev_b32 v88, 16, v88")
    g("v_mul_f32 v88, 0x%08x, v88" % f32(LOG2E))
    g("v_lshlrev_b32 v94, 1, v94")
    g("v_add_u32 v94, %d, v94" % B1_OFF)
    g("s_cmp_lg_u32 s24, 0")
    g("s_cbranch_scc1 L_p_wm_end")
    g("global_store_dword v94, v88, s[22:23] sc1")
    g("s_branch L_p_wm_end")
    b.extend(g)

    b("L_p_w2:")
    g = b.fork()
    srd(g, 16, D * F * 2)
    g("s_sub_u32 s38, s2, %d" % P_W2)
    div9(g, 36, 37, 38)
    g("s_mul_i32 s32, s36, %d" % (576 * 1152))
    g("s_lshl_b32 s33, s37, 7")
    g("s_add_u32 s32, s32, s33")
    lane128(g, D * 2)
    ld = Loader(g, cfg, D * 2, cfg.get("PCH", 9))
    ld.issue(cfg.get("PAH", 2))
    g("v_lshl_add_u32 v10, v5, 2, v4")
    g("v_lshlrev_b32 v10, 7, v10")
    col128(g, 10)
    g("v_add_u32 v11, 0x10000, v10")
    g("s_sub_u32 s38, s37, s36")
    g("s_add_u32 s38, s38, 7")
    g("s_and_b32 s38, s38, 7")
    g("s_add_u32 s38, s38, 1")
    g("s_cmp_eq_u32 s37, 8")
    g("s_cselect_b32 s38, 0, s38")
    g("s_mul_i32 s39, s38, 18")
    g("s_cmp_lt_u32 s38, 2")
    g("s_cselect_b32 s39, s38, s39")
    g("s_cselect_b32 s43, 2, 1")
    g("s_lshl_b32 s43, s43, 10")
    g("s_add_u32 s39, s39, 162")
    g("s_lshl_b32 s39, s39, 10")
    g("s_lshl_b32 s41, s36, 2")
    g("s_add_u32 s41, s41, s24")
    g("s_mul_i32 s41, s41, %d" % WM_STREAM)
    g("s_add_u32 s41, s41, s39")
    g("s_add_u32 s41, s41, %d" % WM_OFF)
    g("v_add_u32 v9, s41, v7")
    process(g, cfg, ld, lambda j, h: (10, 4096 * j + 2048 * h) if j < 16 else (11, 4096 * (j - 16) + 2048 * h), pi_blk, False,
            lambda j: store(g, cfg, j, "s43"))
    g("L_p_wm_end:")
    g("s_lshl_b32 s40, s36, 8")
    g("s_add_u32 s40, s40, %d" % (FLAG_OFF + FL_CW))
    g("s_branch L_p_fin")
    b.extend(g)

    b("L_p_wo:")
    g = b.fork()
    srd(g, 8, D * D * 2)
    g("s_sub_u32 s37, s2, %d" % P_WO)
    g("s_lshl_b32 s32, s37, 7")
    lane128(g, D * 2)
    ld = Loader(g, cfg, D * 2, cfg.get("PCH", 9))
    ld.issue(cfg.get("PAH", 2))
    g("v_lshrrev_b32 v10, 1, v5")
    g("v_mul_u32_u24 v10, 20, v10")
    g("v_and_b32 v11, 1, v5")
    g("v_lshl_add_u32 v10, v11, 3, v10")
    g("v_add_u32 v10, v10, v4")
    g("v_lshlrev_b32 v10, 7, v10")
    col128(g, 10)
    g("v_add_u32 v11, %d, v10" % (8 * 4608))
    g("v_mul_u32_u24 v12, 72, v5")
    g("v_add3_u32 v12, v12, v4, 16")
    g("v_lshlrev_b32 v12, 7, v12")
    col128(g, 12)
    g("s_mul_i32 s38, s37, %d" % WO_CG)
    g("s_lshl_b32 s39, s24, 10")
    g("s_add_u32 s38, s38, s39")
    g("s_mul_i32 s39, s24, %d" % (2 * WO_CG))
    g("s_add_u32 s39, s39, %d" % (4 * KB))
    g("s_cmp_eq_u32 s37, 8")
    g("s_cselect_b32 s38, s39, s38")
    g("s_cselect_b32 s39, %d, 0" % (WO_CG - 128))
    g("s_add_u32 s38, s38, %d" % WO_OFF)
    g("v_lshrrev_b32 v9, 3, v6")
    g("v_mul_u32_u24 v9, s39, v9")
    g("v_add3_u32 v9, v9, v7, s38")

    process(g, cfg, ld, lambda j, h: (10, 4608 * j + 512 * h) if j < 8 else
            (11, 4608 * (j - 8) + 512 * h) if j < 16 else (12, 36864 * (j - 16) + 4608 * h), pi_o, False,
            lambda j: store(g, cfg, j, "0x1400"))
    g("s_mov_b32 s40, %d" % (FLAG_OFF + FL_CO))
    g("s_branch L_p_fin")
    b.extend(g)

    b("L_p_zero:")
    b("s_mov_b32 s33, 0")
    b("s_mov_b32 s40, 0")
    b("s_cmp_ge_u32 s2, %d" % P_W1)
    b("s_cbranch_scc1 L_p_fin0")
    b("s_and_b32 s39, s2, 31")
    b("s_cmp_lt_u32 s39, 28")
    b("s_cbranch_scc1 L_p_fin0")
    assert FL_USED == NZERO * 32 * KB
    b("s_lshr_b32 s38, s2, 5")
    b("s_lshl_b32 s38, s38, 2")
    b("s_and_b32 s39, s2, 3")
    b("s_add_u32 s38, s38, s39")
    b("s_lshl_b32 s38, s38, 2")
    b("s_add_u32 s38, s38, s24")
    b("s_lshl_b32 s39, s38, 13")
    b("s_add_u32 s39, s39, %d" % (FLAG_OFF + 4 * KB))
    b("v_add_u32 v9, s39, v7")
    for r in range(4):
        b("v_mov_b32 v%d, 0" % (12 + r))
        b("v_mov_b32 v%d, 0x3f803f80" % (16 + r))
    for n in range(8):
        b("global_store_dwordx4 v9, v[12:15], s[22:23] offset:%d sc1" % (n * KB - 4 * KB))
    b("s_cmp_ge_u32 s38, 24")
    b("s_cbranch_scc1 L_p_noone")
    b("s_and_b32 s39, s38, 7")
    b("s_mul_i32 s39, s39, %d" % (4 * 72 * KB))
    b("s_lshr_b32 s38, s38, 3")
    b("s_mul_i32 s38, s38, %d" % (24 * KB))
    b("s_add_u32 s39, s39, s38")
    b("s_add_u32 s39, s39, %d" % (WQ_OFF + 75 * KB + 128))
    b("v_lshrrev_b32 v9, 3, v6")
    b("v_mul_u32_u24 v9, %d, v9" % (4 * KB - 128))
    b("v_add3_u32 v9, v9, v7, s39")
    for n in range(3):
        b("global_store_dwordx4 v9, v[16:19], s[22:23] sc1")
        b("v_add_u32 v9, 0x2000, v9")
    b("L_p_noone:")
    b("s_mov_b32 s28, 1")
    b.wait_all()
    b("s_barrier")
    b("s_cmp_lg_u32 s24, 0")
    b("s_cbranch_scc1 L_p_fin0")
    b("s_atomic_add s28, s[20:21], 0 glc")
    b("s_waitcnt lgkmcnt(0)")
    b("s_cmp_lg_u32 s28, %d" % (NZERO - 1))
    b("s_cbranch_scc1 L_p_fin0")
    b("s_mov_b32 s28, 1")
    b("s_atomic_add s28, s[20:21], 128")
    b("s_waitcnt lgkmcnt(0)")
    b("s_branch L_p_fin0")
    b("L_p_fin:")
    b("s_mov_b32 s33, 1")
    b("L_p_fin0:")
    add64(b, 70, 22, "s40")
    b("s_mov_b32 s65, s33")
    b.vmq, b.lgq = ["pub"], []
```
